```python
import torch

def _softmax(x, axis=-1):
    return torch.softmax(x, dim=axis)
def _gelu(x):
    return torch.nn.functional.gelu(x, approximate="tanh")
def _silu(x):
    return torch.nn.functional.silu(x)
def _sigmoid(x):
    return torch.sigmoid(x)
def _layernorm(x, axis=-1, eps=1e-5):
    m = x.mean(dim=axis, keepdim=True)
    v = x.var(dim=axis, keepdim=True, unbiased=False)
    return (x - m) / torch.sqrt(v + eps)
def _scatter_add(tgt, idx, src, axis=0):
    return tgt.clone().index_add_(axis, idx, src)
def _segment_sum(src, seg, n):
    out = torch.zeros((n,) + src.shape[1:], dtype=src.dtype)
    return out.index_add_(0, seg, src)
def _pad(x, pw):
    flat = tuple(v for pair in reversed(pw) for v in pair)
    return torch.nn.functional.pad(x, flat)

kernel_name = 'gated_mix__spectral_gfnet__ssm_conv_s5__prompt'

def setup_inputs():

    _w = (lambda a: (lambda t: t.to(torch.bfloat16) if t.is_floating_point() else t)(torch.as_tensor(a)))
    def _A_setup():
        B, S, D = 1, 2048, 1024
        Df = D // 2 + 1
        return {
            "x": _w((lambda *s: torch.randn(*s, dtype=torch.bfloat16) * 0.05)(B, S, D)),
            "w_r": _w((lambda *s: torch.randn(*s, dtype=torch.bfloat16) * 0.8)(S, Df) * 0.02),
            "w_i": _w((lambda *s: torch.randn(*s, dtype=torch.bfloat16) * 0.8)(S, Df) * 0.02),
        }
    _A_in = _A_setup()

    def _B_setup():
        B, S, D = 1, 2048, 1024
        P = D
        Lambda_re = -0.5 * (lambda _x: torch.exp(torch.as_tensor(_x)))((lambda *s: torch.randn(*s, dtype=torch.bfloat16) * 0.2)(P))
        Lambda_im = (lambda *s: torch.randn(*s, dtype=torch.bfloat16) * 0.4)(P) * 1.0
        B_re = (lambda *s: torch.randn(*s, dtype=torch.bfloat16) * 0.2)(P, D) * (D ** -0.5)
        B_im = (lambda *s: torch.randn(*s, dtype=torch.bfloat16) * 0.2)(P, D) * (D ** -0.5)
        C_re = (lambda *s: torch.randn(*s, dtype=torch.bfloat16) * 0.2)(D, P) * (P ** -0.5)
        C_im = (lambda *s: torch.randn(*s, dtype=torch.bfloat16) * 0.2)(D, P) * (P ** -0.5)
        log_dt = (lambda *s: torch.randn(*s, dtype=torch.bfloat16) * 0.2)(P) * 0.3 - 2.0
        Dskip = (lambda *s: torch.randn(*s, dtype=torch.bfloat16) * 0.05)(D)
        return {
            "x": _w((lambda *s: torch.randn(*s, dtype=torch.bfloat16) * 0.05)(B, S, D)),
            "Lambda_re": _w(Lambda_re),
            "Lambda_im": _w(Lambda_im),
            "B_re": _w(B_re),
            "B_im": _w(B_im),
            "C_re": _w(C_re),
            "C_im": _w(C_im),
            "log_dt": _w(log_dt),
            "Dskip": _w(Dskip),
        }
    _B_in = _B_setup()

    return {
        "A_x": _A_in["x"],
        "A_w_r": _A_in["w_r"],
        "A_w_i": _A_in["w_i"],
        "B_x": _B_in["x"],
        "B_Lambda_re": _B_in["Lambda_re"],
        "B_Lambda_im": _B_in["Lambda_im"],
        "B_B_re": _B_in["B_re"],
        "B_B_im": _B_in["B_im"],
        "B_C_re": _B_in["C_re"],
        "B_C_im": _B_in["C_im"],
        "B_log_dt": _B_in["log_dt"],
        "B_Dskip": _B_in["Dskip"],
        "gate_w": _w((lambda *s: torch.randn(*s, dtype=torch.bfloat16) * 0.05)(1024) * 16.0),
    }

def reference(A_x, A_w_r, A_w_i, B_x, B_Lambda_re, B_Lambda_im, B_B_re, B_B_im, B_C_re, B_C_im, B_log_dt, B_Dskip, gate_w):
    def _A_ref(x, w_r, w_i):
        B, S, D = x.shape
        X = (lambda x, axes=(-2,-1): torch.fft.rfft2(x.float(), dim=axes))(x, axes=(-2, -1))
        W = w_r + 1j * w_i
        X = X * W
        y = (lambda x, s, axes=(-2,-1): torch.fft.irfft2(x, s=s, dim=axes).to(torch.bfloat16))(X, (S, D), axes=(-2, -1))
        return y

    def _B_ref(x, Lambda_re, Lambda_im, B_re, B_im, C_re, C_im, log_dt, Dskip):
        Bsz, L, H = x.shape
        Lam = Lambda_re + 1j * Lambda_im
        Bmat = B_re + 1j * B_im
        Cmat = C_re + 1j * C_im
        dt = torch.exp(log_dt)
        Lam_bar = torch.exp(dt * Lam)
        B_bar = ((Lam_bar - 1.0) / Lam)[:, None] * Bmat
        Bu = torch.einsum("bld,pd->blp", x + 0j, B_bar)
        h = torch.zeros_like(Bu[:, 0, :])
        hs = []
        for t in range(L):
            h = Lam_bar[None, :] * h + Bu[:, t, :]
            hs.append(h)
        hseq = torch.stack(hs, 1)
        y = 2.0 * torch.einsum("blp,dp->bld", hseq, Cmat).real + x * Dskip[None, None, :]
        return y

    x = A_x
    g = _sigmoid((x * gate_w).sum(-1, keepdims=True))
    a = _A_ref(x, A_w_r, A_w_i)
    b = _B_ref(x, B_Lambda_re, B_Lambda_im, B_B_re, B_B_im, B_C_re, B_C_im, B_log_dt, B_Dskip)
    return g * a + (1 - g) * b
```

```python
import os
HEADER_REF = os.path.join(os.path.dirname(os.path.dirname(os.path.abspath(__file__))), "gated_mix__spectral_gfnet__ssm_conv_s5__prompt.s.ref")

class Asm:
    def __init__(self):
        self.L = []
        self.nlab = 0
    def __call__(self, s):
        for line in s.split("\n"):
            line = line.strip()
            if line:
                self.L.append(line if line.endswith(":") else "    " + line)
    def label(self, base="L"):
        self.nlab += 1
        return f"{base}_{self.nlab}"
    def text(self):
        return "\n".join(self.L) + "\n"

def vr(a, n=1):
    return f"v{a}" if n == 1 else f"v[{a}:{a+n-1}]"
def ar(a, n=1):
    return f"a{a}" if n == 1 else f"a[{a}:{a+n-1}]"
def sr(a, n=1):
    return f"s{a}" if n == 1 else f"s[{a}:{a+n-1}]"

def header_comments():
    out = []
    for line in open(HEADER_REF):
        if not line.startswith(";"):
            break
        if "@launch" in line or "Override launch" in line or "grid=ceil" in line:
            continue
        out.append(line.rstrip())
    return out

def build_file(kernels, extra_comments=()):
    L = header_comments() + ["; " + c for c in extra_comments]
    for k in kernels:
        g = k["grid"]; b = k["block"]
        L.append(f"; @launch kernel={k['name']} grid=({g},1,1) block=({b},1,1) lds={k['lds']}")
    L += ['.amdgcn_target "amdgcn-amd-amdhsa--gfx950"', ".text"]
    seen = []
    for k in kernels:
        if k["name"] in seen: continue
        seen.append(k["name"])
        L += [f".globl {k['name']}", ".p2align 8", f".type {k['name']},@function", f"{k['name']}:", k["body"].rstrip()]
    L += ['.section .rodata,"a"']
    seen = []
    for k in kernels:
        if k["name"] in seen: continue
        seen.append(k["name"])
        acc = (k["vgpr"] + 3) // 4 * 4
        tot = acc + k.get("agpr", 0) if k.get("agpr", 0) else k["vgpr"]
        L += [".p2align 6", f".amdhsa_kernel {k['name']}", f"  .amdhsa_next_free_vgpr {tot}",
              f"  .amdhsa_next_free_sgpr {k.get('sgpr', 102)}", f"  .amdhsa_accum_offset {acc}",
              "  .amdhsa_group_segment_fixed_size 0", "  .amdhsa_kernarg_size 128", "  .amdhsa_user_sgpr_count 2",
              "  .amdhsa_user_sgpr_kernarg_segment_ptr 1", "  .amdhsa_system_sgpr_workgroup_id_x 1",
              ".end_amdhsa_kernel"]
    return "\n".join(L) + "\n"
```

```python
import sys, os
sys.path.insert(0, os.path.dirname(os.path.abspath(__file__)))
from kb import *
from asmlib import build_file

ZS = 16384
WS_Z = 0
WS_WT = 5 << 20
WS_Y = 10 << 20
WS_H = 15 << 20
WS_COMB = 23 << 20
WS_AGG = 27 << 20
WS_OMG = WS_AGG + (256 << 10)
WS_FL1 = WS_OMG + (16 << 10)
WS_FL3 = WS_FL1 + 4096
WS_NONCE = WS_FL3 + 4096
WS_STAMP = 28 << 20
WS_SIZE = 32 << 20
MF = "v_mfma_f32_16x16x32_bf16"
HASH_A, HASH_B = 0x9E3779B1, 0x7F4A7C15
SPIN = 200000

def perm(m): return 8 * ((m & 3) >> 1) + 2 * (m >> 2) + (m & 1)

def srd(d, lo, hi, size):
    return L(f"s_mov_b32 s{d}, s{lo}\n s_mov_b32 s{d+1}, s{hi}\n s_mov_b32 s{d+2}, {size}\n s_mov_b32 s{d+3}, 0x00020000")

def sincos(ang, c, s):
    return L(f"v_cos_f32 v{c}, v{ang}\n v_sin_f32 v{s}, v{ang}")

def pk(op, d, a, b, c=None, sel=None, neg=None):
    srcs = [a, b] + ([c] if c is not None else [])
    txt = [x if isinstance(x, str) else vr(x, 2) for x in srcs]
    n = len(srcs); sel = sel or "p" * n; neg = neg or [0] * n
    lo = [1 if k == "h" else 0 for k in sel]; hi = [0 if k == "l" else 1 for k in sel]
    f = lambda v: "[" + ",".join(map(str, v)) + "]"
    t = f"v_pk_{op}_f32 {vr(d,2)}, " + ", ".join(txt)
    if any(lo): t += f" op_sel:{f(lo)}"
    if not all(hi): t += f" op_sel_hi:{f(hi)}"
    if any(neg): t += f" neg_lo:{f(neg)} neg_hi:{f(neg)}"
    return I(t)

def cmul1(dr, di, ar_, ai, br, bi, cr=None, ci=None):
    if cr is None:
        return L(f"v_mul_f32 v{dr}, v{ar_}, v{br}\n v_mul_f32 v{di}, v{ar_}, v{bi}\n v_fma_f32 v{dr}, -v{ai}, v{bi}, v{dr}\n v_fma_f32 v{di}, v{ai}, v{br}, v{di}")
    return L(f"v_fma_f32 v{dr}, v{ar_}, v{br}, v{cr}\n v_fma_f32 v{di}, v{ar_}, v{bi}, v{ci}\n v_fma_f32 v{dr}, -v{ai}, v{bi}, v{dr}\n v_fma_f32 v{di}, v{ai}, v{br}, v{di}")

class Stamps:
    def __init__(self, on, base=64): self.on = on; self.n = 0; self.base = base; self.names = []
    def __call__(self, name):
        if not self.on: return []
        r = self.base + 2 * self.n; self.n += 1; self.names.append(name)
        assert r + 1 < 100
        return L(f"s_memtime s[{r}:{r+1}]", tag="stamp") + [W("lg", "*")]
    def real(self, name):
        if not self.on: return []
        r = self.base + 2 * self.n; self.n += 1; self.names.append(name)
        return L(f"s_memrealtime s[{r}:{r+1}]", tag="stamp") + [W("lg", "*")]
    def dump(self, ws, swave, kidx):
        if not self.on: return []
        o = L(f"s_lshl_b32 s3, s2, 2\n s_add_u32 s3, s3, s{swave}\n s_lshl_b32 s3, s3, 7\n s_add_u32 s3, s3, {WS_STAMP + kidx * (1 << 20)}\n v_mov_b32 v2, 0")
        for i in range(self.n):
            o += L(f"v_mov_b32 v1, s{self.base + 2*i}\n buffer_store_dword v1, v2, s[{ws}:{ws+3}], s3 offen offset:{4*i}")
        return o

def wg_decode(sc, sj, t0, t1):
    return L(f"""
    s_and_b32 s{t0}, s2, 3
    s_lshl_b32 s{t0}, s{t0}, 2
    s_bfe_u32 s{t1}, s2, 0x20003
    s_add_u32 s{sc}, s{t0}, s{t1}
    s_bfe_u32 s{t0}, s2, 0x10002
    s_lshl_b32 s{t0}, s{t0}, 3
    s_lshr_b32 s{t1}, s2, 5
    s_add_u32 s{sj}, s{t0}, s{t1}
    """)

def kernel1(diag=False):
    o = []
    st = Stamps(diag)
    X, BS, WR, WI, WS, TMPS = 8, 12, 16, 20, 24, 28
    sC, sJ, sW, sT, sK, sM0 = 32, 33, 34, 35, 36, 37
    t0, t1, t2, t3 = 38, 39, 40, 41
    sCW = 42
    sN = 62
    SCR = 131072
    vL, vN, vQ = 0, 1, 2
    vDA, vDB = 16, 20
    vRA, vRB = 24, 26
    ACC = 32
    TWF, TWI = 96, 112
    LAM, COEF, L16, L32, L128, L32Q, L512Q = 128, 130, 132, 134, 136, 138, 140
    SA_R, SA_I, PFX = 142, 144, 146
    WU = 152
    WK = 184
    aFC, aF1, aGC, aFR = 0, 32, 40, 72
    acc = lambda tau, part: ACC + (tau * 2 + part) * 4

    o += L("""
    s_cmp_ge_u32 s2, 256
    s_cbranch_scc1 K1_END
    """)
    o += st.real("rt0") + st("start")
    o += L("""
    s_load_dwordx4 s[44:47], s[0:1], 0
    s_load_dwordx2 s[48:49], s[0:1], 16
    s_load_dwordx8 s[52:59], s[0:1], 32
    s_load_dwordx2 s[50:51], s[0:1], 80
    s_load_dwordx2 s[60:61], s[0:1], 120
    """, tag="ka")
    o += L(f"""
    v_lshrrev_b32 v3, 6, v0
    v_and_b32 v{vL}, 63, v0
    v_readfirstlane_b32 s{sW}, v3
    v_and_b32 v{vN}, 15, v{vL}
    v_lshrrev_b32 v{vQ}, 4, v{vL}
    """)
    o += wg_decode(sC, sJ, t0, t1)
    o += L(f"""
    s_getpc_b64 s[{TMPS}:{TMPS+1}]
    K1_PC:
    s_mov_b32 s{TMPS+2}, K1_CODE_END-K1_PC
    s_mov_b32 s{TMPS+3}, 0x00020000
    s_bfe_u32 s{t0}, s2, 0x30003
    s_lshl_b32 s{t0}, s{t0}, 2
    s_add_u32 s{t0}, s{t0}, s{sW}
    s_lshl_b32 s{t0}, s{t0}, 11
    v_lshl_add_u32 v3, v{vN}, 7, s{t0}
    v_cmp_gt_u32 vcc, 16, v{vL}
    v_cndmask_b32 v3, 2.0, v3, vcc
    """)
    o += L(f"buffer_load_dword v255, v3, s[{TMPS}:{TMPS+3}], 0 offen", tag="pf")
    o += L(f"""
    v_lshrrev_b32 v5, 2, v{vN}
    v_lshlrev_b32 v5, 1, v5
    v_and_b32 v6, 1, v{vN}
    v_bfe_u32 v7, v{vN}, 1, 1
    v_lshl_add_u32 v5, v7, 3, v5
    v_add_u32 v4, v5, v6
    v_lshlrev_b32 v5, 9, v{vQ}
    v_lshl_add_u32 v5, v4, 2, v5
    """)
    o += [W("lg", "ka")]
    o += L(f"s_load_dword s{sN}, s[60:61], {WS_NONCE}", tag="nonce") if WS_NONCE < (1 << 20) else \
         L(f"s_add_u32 s{t2}, s60, {WS_NONCE}\n s_addc_u32 s{t3}, s61, 0") + L(f"s_load_dword s{sN}, s[{t2}:{t3}], 0", tag="nonce")
    o += srd(X, 44, 45, 0x400000)
    XIN = WK
    o += L(f"""
    s_lshl_b32 s{t0}, s{sC}, 7
    s_and_b32 s{t1}, s{sW}, 1
    s_lshl_b32 s{t1}, s{t1}, 6
    s_add_u32 s{t0}, s{t0}, s{t1}
    s_lshl_b32 s{t1}, s{sJ}, 1
    s_add_u32 s{t0}, s{t0}, s{t1}
    s_lshr_b32 s{t1}, s{sW}, 1
    s_add_u32 s{t0}, s{t0}, s{t1}
    s_lshl_b32 s{t0}, s{t0}, 11
    s_add_u32 s{t1}, s{t0}, 65536
    """)
    for e in range(2):
        for tau in range(2):
            for r in range(4):
                o += L(f"buffer_load_dword v{XIN + e*8 + tau*4 + r}, v5, s[{X}:{X+3}], s{t0+e} offen offset:{128*r + 64*tau}", tag=f"x{e}")
    o += L(f"""
    s_cmp_lt_u32 s{sW}, 2
    s_cselect_b32 s{BS}, s56, s58
    s_cselect_b32 s{BS+1}, s57, s59
    s_mov_b32 s{BS+2}, 0x200000
    s_mov_b32 s{BS+3}, 0x00020000
    s_lshl_b32 s{sM0}, s{sW}, 12
    s_mov_b32 s{sK}, 0
    v_and_b32 v6, 7, v{vL}
    v_xor_b32 v6, v6, v{vQ}
    v_lshlrev_b32 v6, 4, v6
    v_xor_b32 v7, 64, v6
    v_lshrrev_b32 v8, 5, v{vL}
    v_lshlrev_b32 v8, 5, v8
    v_bfe_u32 v9, v{vL}, 3, 1
    v_lshl_add_u32 v8, v9, 4, v8
    v_bfe_u32 v9, v{vL}, 4, 1
    v_add_u32 v8, v8, v9
    s_lshl_b32 s{t0}, s{sC}, 7
    s_lshl_b32 s{t1}, s{sW}, 2
    s_add_u32 s{t0}, s{t0}, s{t1}
    v_add_u32 v8, s{t0}, v8
    v_lshrrev_b32 v9, 3, v{vL}
    s_lshl_b32 s{t0}, s{sJ}, 6
    s_and_b32 s{t1}, s{sW}, 1
    s_lshl_b32 s{t1}, s{t1}, 5
    s_add_u32 s{t0}, s{t0}, s{t1}
    v_add_u32 v9, s{t0}, v9
    """)
    for jj in range(4):
        o += L(f"""
        v_add_u32 v10, {64*(jj&1) + 2*(jj>>1)}, v8
        v_lshl_add_u32 v{vDA+jj}, v10, 11, v{6+(jj&1)}
        v_add_u32 v10, {8*jj}, v9
        v_lshl_add_u32 v{vDB+jj}, v10, 11, v{6+(jj&1)}
        """)
    def dma(stage):
        slot = stage % 4; r = []
        for jj in range(4):
            r += L(f"s_add_u32 m0, s{sM0}, {slot*32768 + jj*1024}")
            r += L(f"buffer_load_dwordx4 v{vDA+jj}, s[{X}:{X+3}], s{sK} offen lds", tag=f"d{stage}")
        for jj in range(4):
            r += L(f"s_add_u32 m0, s{sM0}, {slot*32768 + 16384 + jj*1024}")
            r += L(f"buffer_load_dwordx4 v{vDB+jj}, s[{BS}:{BS+3}], s{sK} offen lds", tag=f"d{stage}")
        r += L(f"s_add_u32 s{sK}, s{sK}, 128")
        return r
    o += dma(0)
    WRAW = 208
    o += srd(WR, 46, 47, 2048 * 1026) + srd(WI, 48, 49, 2048 * 1026) + srd(WS, 60, 61, WS_SIZE)
    o += L(f"""
    s_lshr_b32 s{t0}, s2, 6
    s_lshl_b32 s{t0}, s{t0}, 4
    s_and_b32 s{t1}, s2, 3
    s_lshl_b32 s{t1}, s{t1}, 2
    s_add_u32 s{t0}, s{t0}, s{t1}
    s_bfe_u32 s{t1}, s2, 0x40002
    s_lshl_b32 s{t1}, s{t1}, 7
    s_add_u32 s{t0}, s{t0}, s{t1}
    v_and_b32 v6, 3, v{vL}
    v_add_u32 v6, s{t0}, v6
    v_lshrrev_b32 v7, 2, v{vL}
    s_lshl_b32 s{t1}, s{sW}, 4
    v_add_u32 v7, s{t1}, v7
    s_movk_i32 s{t2}, 1026
    v_mul_u32_u24 v8, s{t2}, v6
    v_lshl_add_u32 v9, v7, 3, v8
    v_sub_u32 v10, 2048, v6
    v_and_b32 v11, 2047, v10
    v_subrev_u32 v10, 64, v10
    v_lshlrev_b32 v12, 3, v7
    v_sub_u32 v12, 1018, v12
    v_mad_u32_u24 v11, v11, s{t2}, v12
    v_mad_u32_u24 v10, v10, s{t2}, v12
    s_mov_b32 s{t3}, {64*1026}
    v_add_u32 v8, 512, v8
    v_cmp_eq_u32 vcc, 0, v7
    v_cndmask_b32 v8, 2.0, v8, vcc
    """)
    for ii in range(2):
        so = "0" if ii == 0 else f"s{t3}"
        up = 11 - ii
        o += L(f"""
        buffer_load_dwordx2 {vr(WRAW + ii*8 + 0, 2)}, v9, s[{WR}:{WR+3}], {so} offen nt
        buffer_load_dwordx2 {vr(WRAW + ii*8 + 2, 2)}, v9, s[{WI}:{WI+3}], {so} offen nt
        buffer_load_dwordx2 {vr(WRAW + ii*8 + 4, 2)}, v{up}, s[{WR}:{WR+3}], 0 offen nt
        buffer_load_dwordx2 {vr(WRAW + ii*8 + 6, 2)}, v{up}, s[{WI}:{WI+3}], 0 offen nt
        buffer_load_ushort v{WRAW + 16 + 2*ii}, v8, s[{WR}:{WR+3}], {so} offen nt
        buffer_load_ushort v{WRAW + 17 + 2*ii}, v8, s[{WI}:{WI+3}], {so} offen nt
        """, tag="w")
    o += L(f"""
    v_and_b32 v12, 3, v{vL}
    v_lshlrev_b32 v12, 4, v12
    s_mov_b32 s{t2}, {4*ZS}
    v_mad_u32_u24 v13, v7, s{t2}, v12
    v_add_u32 v14, {256*ZS}, v12
    v_cndmask_b32 v14, 2.0, v14, vcc
    """)
    o += dma(1) + dma(2)
    o += L(f"""
    s_cmp_eq_u32 s{sW}, 1
    s_cselect_b32 s{TMPS}, s56, s44
    s_cselect_b32 s{TMPS+1}, s57, s45
    s_cmp_eq_u32 s{sW}, 2
    s_cselect_b32 s{TMPS}, s58, s{TMPS}
    s_cselect_b32 s{TMPS+1}, s59, s{TMPS+1}
    s_lshl_b32 s{t0}, s{sC}, 7
    s_and_b32 s{t1}, s{sJ}, 7
    s_lshl_b32 s{t1}, s{t1}, 4
    s_add_u32 s{t0}, s{t0}, s{t1}
    s_lshl_b32 s{t1}, s{sJ}, 6
    s_and_b32 s{t2}, s{sC}, 3
    s_lshl_b32 s{t2}, s{t2}, 4
    s_add_u32 s{t1}, s{t1}, s{t2}
    s_cmp_eq_u32 s{sW}, 0
    s_cselect_b32 s{t0}, s{t0}, s{t1}
    s_cselect_b32 s{TMPS+2}, 0x400000, 0x200000
    s_cmp_eq_u32 s{sW}, 3
    s_cselect_b32 s{TMPS+2}, 0, s{TMPS+2}
    s_lshl_b32 s{t0}, s{t0}, 11
    v_lshlrev_b32 v6, 11, v{vN}
    v_lshl_add_u32 v6, v{vQ}, 7, v6
    """.replace("s_cselect_b32 s30, 0x400000, 0x200000", "s_mov_b32 s30, 0x200000\n s_cselect_b32 s30, 0x400000, s30"))
    for e in range(4):
        off = [384, 896, 1408, 1536][e]
        o += L(f"buffer_load_dword v255, v6, s[{TMPS}:{TMPS+3}], s{t0} offen offset:{off}", tag="pf")
    o += L(f"""
    s_lshl_b32 s{t0}, s{sJ}, 6
    s_lshl_b32 s{t1}, s{sW}, 4
    s_add_u32 s{t0}, s{t0}, s{t1}
    v_add_lshl_u32 v6, v{vN}, s{t0}, 1
    """)
    o += L(f"""
    global_load_ushort v148, v6, s[52:53]
    global_load_ushort v149, v6, s[54:55]
    global_load_ushort v150, v6, s[50:51]
    """, tag="par")
    o += st("issued")
    TWR = 232
    c_, s_, an = 10, 11, 12
    o += L(f"""
    v_cvt_f32_u32 v6, v{vN}
    v_cvt_f32_u32 v7, v{vQ}
    v_cvt_f32_u32 v8, v4
    """)
    o += L(f"v_mul_f32 v9, {fbits(1/16)}, v6\n v_mul_f32 v15, 4.0, v7\n v_mul_f32 v15, v15, v9")
    for r in range(4):
        o += L(f"v_fmamk_f32 v{an}, v9, {fbits(r)}, v15") + sincos(an, c_, s_)
        o += L(f"v_cvt_pk_bf16_f32 v3, v{c_}, v{s_}\n v_cvt_pk_bf16_f32 v5, -v{s_}, v{c_}\n v_accvgpr_write_b32 a{aF1+r}, v3\n v_accvgpr_write_b32 a{aF1+4+r}, v5")
    o += L(f"v_mul_f32 v9, {fbits(1/512)}, v6\n v_add_f32 v15, v7, v7\n v_mul_f32 v15, v15, v9")
    for tau in range(2):
        for i in range(4):
            o += L(f"v_fmamk_f32 v{an}, v9, {fbits(16*tau + 8*(i>>1) + (i&1))}, v15") + sincos(an, TWR + tau*4 + i, TWR + 8 + tau*4 + i)
    fc = lambda mu, tau, part: aFC + ((mu * 2 + tau) * 2 + part) * 4
    o += L(f"""
    v_mul_f32 v9, {fbits(1/32)}, v8
    v_add_f32 v15, v7, v7
    v_mul_f32 v15, v15, v9
    v_and_b32 v248, 1, v{vN}
    v_mul_u32_u24 v248, 0x8000, v248
    v_lshl_or_b32 v248, v248, 16, v248
    """)
    for r in range(4):
        o += L(f"v_fmamk_f32 v{an}, v9, {fbits(8*(r>>1) + (r&1))}, v15") + sincos(an, c_, s_)
        for part in range(2):
            a_, b_ = (f"v{c_}", f"v{s_}") if part == 0 else (f"-v{s_}", f"v{c_}")
            o += L(f"v_cvt_pk_bf16_f32 v3, {a_}, {b_}\n v_xor_b32 v5, v248, v3")
            o += L(f"v_accvgpr_write_b32 a{fc(0,0,part)+r}, v3\n v_accvgpr_write_b32 a{fc(0,1,part)+r}, v5")
            if r & 1:
                o += L(f"v_xor_b32 v3, 0x80008000, v3\n v_xor_b32 v5, 0x80008000, v5")
            o += L(f"v_accvgpr_write_b32 a{fc(1,0,part)+r}, v3\n v_accvgpr_write_b32 a{fc(1,1,part)+r}, v5")
    o += L(f"""
    s_lshl_b32 s{t0}, s{sW}, 4
    v_add_u32 v9, s{t0}, v{vN}
    v_cvt_f32_u32 v9, v9
    v_mul_f32 v9, {fbits(1/64)}, v9
    v_mul_f32 v15, 4.0, v7
    v_mul_f32 v15, v15, v9
    """)
    gc = lambda sg, part: aGC + (sg * 2 + part) * 4
    for sg in range(4):
        for r in range(4):
            o += L(f"v_fmamk_f32 v{an}, v9, {fbits(16*sg + r)}, v15") + sincos(an, c_, s_)
            o += L(f"v_cvt_pk_bf16_f32 v3, v{c_}, v{s_}\n v_cvt_pk_bf16_f32 v5, -v{s_}, v{c_}\n v_accvgpr_write_b32 a{gc(sg,0)+r}, v3\n v_accvgpr_write_b32 a{gc(sg,1)+r}, v5")
    o += L(f"v_mul_f32 v9, {fbits(1/32)}, v9\n v_add_f32 v15, v7, v7\n v_mul_f32 v15, v15, v9")
    for kap in range(4):
        for b in range(2):
            o += L(f"v_fmamk_f32 v{an}, v9, {fbits(8*kap + b)}, v15") + sincos(an, TWF + (kap*2+b)*2, TWF + (kap*2+b)*2 + 1)
    o += L(f"""
    v_lshl_add_u32 v15, v{vQ}, 2, s{t0}
    v_cvt_f32_u32 v15, v15
    """)
    for tp in range(2):
        o += L(f"v_add_f32 v9, {fbits(16*tp)}, v8\n v_mul_f32 v9, {fbits(1/2048)}, v9\n v_mul_f32 v5, v15, v9")
        for i in range(4):
            cc, ss = TWI + tp*8 + i, TWI + tp*8 + 4 + i
            o += L(f"v_fmamk_f32 v{an}, v9, {fbits(i)}, v5") + sincos(an, cc, ss)
            o += L(f"v_mul_f32 v{cc}, {fbits(2.0**-22)}, v{cc}\n v_mul_f32 v{ss}, {fbits(2.0**-22)}, v{ss}")
    o += L(f"""
    v_cvt_f32_u32 v9, s2
    v_mul_f32 v9, {fbits(1/1024)}, v9
    v_cos_f32 v{c_}, v9
    v_sin_f32 v{s_}, v9
    v_sub_f32 v{c_}, 0, v{c_}
    v_sub_f32 v{s_}, 0, v{s_}
    v_readfirstlane_b32 s{sCW+1}, v{c_}
    v_readfirstlane_b32 s{sCW}, v{s_}
    """)
    o += L(f"""
    v_lshrrev_b32 v9, 1, v{vN}
    v_xor_b32 v9, v9, v{vQ}
    v_lshlrev_b32 v9, 4, v9
    v_lshl_add_u32 v{vRA}, v{vN}, 7, v9
    v_xor_b32 v{vRA+1}, 64, v{vRA}
    s_lshl_b32 s{t0}, s{sW}, 11
    s_add_u32 s{t0}, s{t0}, 16384
    v_add_u32 v{vRB}, s{t0}, v{vRA}
    v_add_u32 v{vRB+1}, s{t0}, v{vRA+1}
    """)
    for k in range(4): o += L(f"v_add_u32 v{vRA+4+k}, 0x10000, v{vRA+k}")
    o += L(f"""
    s_lshr_b32 s{t0}, s{sW}, 1
    s_lshl_b32 s{t0}, s{t0}, 2
    s_and_b32 s{t1}, s{sW}, 1
    s_add_u32 s{t0}, s{t0}, s{t1}
    s_mul_i32 s{t0}, s{t0}, 2080
    s_add_u32 s{t0}, s{t0}, {SCR}
    v_lshl_add_u32 v3, v{vQ}, 5, v{vN}
    v_lshl_add_u32 v6, v3, 3, s{t0}
    v_sub_u32 v3, 112, v3
    s_add_u32 s{t0}, s{t0}, {2*2080}
    v_lshl_add_u32 v7, v3, 3, s{t0}
    v_and_b32 v3, 3, v{vL}
    v_lshrrev_b32 v5, 2, v{vL}
    s_lshl_b32 s{t1}, s{sW}, 4
    v_add_u32 v5, s{t1}, v5
    v_mul_u32_u24 v9, 4160, v3
    v_lshl_add_u32 v9, v5, 3, v9
    v_add_u32 v9, {SCR}, v9
    v_lshlrev_b32 v10, 4, v3
    s_mov_b32 s{t2}, {ZS}
    v_mad_u32_u24 v10, v5, s{t2}, v10
    v_and_b32 v3, 1, v3
    v_lshlrev_b32 v3, 11, v3
    v_cmp_eq_u32 vcc, 0, v5
    v_cndmask_b32 v3, 0, v3, vcc
    v_add_u32 v8, v9, v3
    """)
    o += st("consts")
    D1 = ACC
    TP = 152
    D2 = ACC + 32
    OUT = 168
    d1 = lambda e, tau, part: D1 + ((e*2 + tau)*2 + part)*4
    d2 = lambda e, mu, part: D2 + ((e*2 + mu)*2 + part)*4
    for e in range(2):
        o += [W("vm", f"x{e}")]
        for tau in range(2):
            for part in range(2):
                o += L(f"{MF} {vr(d1(e,tau,part),4)}, {vr(XIN+e*8+tau*4,4)}, {ar(aF1+4*part,4)}, 0")
    T0 = 200
    for e in range(2):
        for tau in range(2):
            for h in range(2):
                re, im = d1(e,tau,0) + 2*h, d1(e,tau,1) + 2*h
                cs, sn = TWR + tau*4 + 2*h, TWR + 8 + tau*4 + 2*h
                tr, ti = T0 + 4*h, T0 + 4*h + 2
                o += [pk("mul", tr, re, cs), pk("mul", ti, im, cs), pk("fma", tr, im, sn, tr), pk("fma", ti, re, sn, ti, neg=[1,0,0])]
            for i in range(4):
                o += L(f"v_cvt_pk_bf16_f32 v{TP+(e*2+tau)*4+i}, v{T0+4*(i>>1)+(i&1)}, v{T0+4*(i>>1)+2+(i&1)}")
    for e in range(2):
        for mu in range(2):
            for part in range(2):
                o += L(f"{MF} {vr(d2(e,mu,part),4)}, {ar(fc(mu,0,part),4)}, {vr(TP+(e*2)*4,4)}, 0")
        for mu in range(2):
            for part in range(2):
                o += L(f"{MF} {vr(d2(e,mu,part),4)}, {ar(fc(mu,1,part),4)}, {vr(TP+(e*2+1)*4,4)}, {vr(d2(e,mu,part),4)}")
    for e in range(2):
        for mu in range(2):
            for i in range(4):
                o += L(f"v_cvt_pk_bf16_f32 v{OUT+(mu*4+i)*2+e}, v{d2(e,mu,0)+i}, {'-' if mu else ''}v{d2(e,mu,1)+i}")
    for mu in range(2):
        for i in range(4):
            k = 128*(i>>1) + 16*(i&1)
            o += L(f"ds_write_b64 v{6+mu}, {vr(OUT+(mu*4+i)*2,2)} offset:{8*(k if mu == 0 else 144-k)}", tag="rfw")
    WO = ACC
    o += [W("vm", "w")]
    o += L(f"s_mov_b32 s{t0}, 0x05040100\n s_mov_b32 s{t1}, 0x07060302")
    for m in range(4):
        for ii in range(2):
            b = WRAW + ii*8
            o += L(f"v_perm_b32 v{WO+m*4+ii*2}, v{b+2+(m>>1)}, v{b+(m>>1)}, s{t0+(m&1)}")
            mm = 3 - m
            o += L(f"v_perm_b32 v{WO+m*4+ii*2+1}, v{b+6+(mm>>1)}, v{b+4+(mm>>1)}, s{t0+(mm&1)}")
    o += L(f"""
    v_lshl_or_b32 v{WRAW+16}, v{WRAW+17}, 16, v{WRAW+16}
    v_lshl_or_b32 v{WRAW+18}, v{WRAW+19}, 16, v{WRAW+18}
    s_lshl_b32 s{t2}, s2, 6
    s_add_u32 s{t2}, s{t2}, {WS_WT}
    """)
    o += L(f"buffer_store_dwordx4 {vr(WRAW+16,4)}, v14, s[{WS}:{WS+3}], s{t2} offen sc1", tag="st1")
    for m in range(4):
        o += L(f"buffer_store_dwordx4 {vr(WO+m*4,4)}, v13, s[{WS}:{WS+3}], s{t2} offen sc1", tag="st1")
        if m < 3: o += L(f"s_add_u32 s{t2}, s{t2}, {ZS}")
    o += [W("lg", "*")] + L("s_barrier")
    ZO = ACC + 16
    for rho in range(4):
        for h in range(2):
            o += L(f"ds_read_b64 {vr(ZO+rho*4+2*h,2)}, v{8 if rho == 0 else 9} offset:{h*2080 + rho*512}", tag=f"rfr{rho}")
    o += L(f"""
    s_lshr_b32 s{t0}, s{sJ}, 2
    s_lshl_b32 s{t0}, s{t0}, 2
    s_lshr_b32 s{t1}, s{sC}, 2
    s_add_u32 s{t0}, s{t0}, s{t1}
    s_lshl_b32 s{t0}, s{t0}, 4
    s_and_b32 s{t1}, s{sC}, 3
    s_lshl_b32 s{t1}, s{t1}, 2
    s_add_u32 s{t0}, s{t0}, s{t1}
    s_and_b32 s{t1}, s{sJ}, 3
    s_add_u32 s{t0}, s{t0}, s{t1}
    s_lshl_b32 s{t0}, s{t0}, 6
    s_add_u32 s{t0}, s{t0}, {WS_Z}
    s_mul_i32 s{sT}, s{sN}, {HASH_A}
    s_add_u32 s{sT}, s{sT}, {HASH_B}
    """)
    for rho in range(4):
        o += [W("lg", f"rfr{rho}")]
        o += L(f"buffer_store_dwordx4 {vr(ZO+rho*4,4)}, v10, s[{WS}:{WS+3}], s{t0} offen sc1", tag="st1")
        if rho < 3: o += L(f"s_add_u32 s{t0}, s{t0}, {64*ZS}")
    o += st("rf")
    o += [W("vm", "par")]
    o += L(f"""
    v_lshlrev_b32 v148, 16, v148
    v_lshlrev_b32 v149, 16, v149
    v_lshlrev_b32 v150, 16, v150
    v_mul_f32 v150, {fbits(1.4426950408889634)}, v150
    v_exp_f32 v150, v150
    v_cvt_pk_bf16_f32 v150, v150, v150
    v_lshlrev_b32 v150, 16, v150
    v_mul_f32 v3, v150, v148
    v_mul_f32 v4, v150, v149
    v_mul_f32 v3, {fbits(1.4426950408889634)}, v3
    v_mul_f32 v4, {fbits(0.15915494309189535)}, v4
    v_exp_f32 v3, v3
    v_fract_f32 v4, v4
    v_cos_f32 v5, v4
    v_sin_f32 v6, v4
    v_mul_f32 v{LAM}, v3, v5
    v_mul_f32 v{LAM+1}, v3, v6
    v_mul_f32 v3, v148, v148
    v_fma_f32 v3, v149, v149, v3
    v_rcp_f32 v3, v3
    v_add_f32 v4, -1.0, v{LAM}
    v_add_f32 v3, v3, v3
    v_mul_f32 v5, v4, v148
    v_fma_f32 v5, v{LAM+1}, v149, v5
    v_mul_f32 v6, v{LAM+1}, v148
    v_fma_f32 v6, -v4, v149, v6
    v_mul_f32 v{COEF}, v5, v3
    v_mul_f32 v{COEF+1}, v6, v3
    """)
    def csq(d, s):
        return L(f"v_mul_f32 v{d}, v{s}, v{s}\n v_mul_f32 v{d+1}, v{s}, v{s+1}\n v_fma_f32 v{d}, -v{s+1}, v{s+1}, v{d}\n v_add_f32 v{d+1}, v{d+1}, v{d+1}")
    o += csq(4, LAM) + csq(6, 4) + csq(4, 6) + csq(L16, 4) + csq(L32, L16) + csq(8, L32) + csq(L128, 8) + csq(4, L128) + csq(10, 4) + csq(12, 10)
    o += L(f"""
    v_and_b32 v3, 1, v{vQ}
    v_cmp_eq_u32 vcc, 1, v3
    v_cndmask_b32 v4, 1.0, v{L32}, vcc
    v_cndmask_b32 v5, 0, v{L32+1}, vcc
    v_cndmask_b32 v10, 1.0, v10, vcc
    v_cndmask_b32 v11, 0, v11, vcc
    v_cmp_lt_u32 vcc, 1, v{vQ}
    v_cndmask_b32 v8, 1.0, v8, vcc
    v_cndmask_b32 v9, 0, v9, vcc
    v_cndmask_b32 v12, 1.0, v12, vcc
    v_cndmask_b32 v13, 0, v13, vcc
    """)
    o += cmul1(L32Q, L32Q+1, 4, 5, 8, 9) + cmul1(L512Q, L512Q+1, 10, 11, 12, 13)
    o += L(f"v_lshlrev_b32 v3, 4, v{vL}")
    o += st("ssmc")
    ZL, WL, PL = WK, WK + 16, WK + 32
    fa = lambda ks, tau: aFR + ks * 40 + tau * 4
    fb = lambda ks, part: aFR + ks * 40 + 32 + part * 4
    def reads(s, ks):
        slot = s % 4; hi = 4 if slot >= 2 else 0; base = (slot & 1) * 32768; r = []
        for part in range(2):
            r += L(f"ds_read_b128 {ar(fb(ks,part),4)}, v{vRB+ks+hi} offset:{base + part*8192}", tag="fr")
        for tau in range(8):
            r += L(f"ds_read_b128 {ar(fa(ks,tau),4)}, v{vRA+ks+hi} offset:{base + tau*2048}", tag="fr")
        return r
    def mfmas(ks, first=False):
        r = []
        for tau in range(8):
            for part in range(2):
                a_ = vr(acc(tau, part), 4)
                r += L(f"{MF} {a_}, {ar(fa(ks,tau),4)}, {ar(fb(ks,part),4)}, {'0' if first else a_}")
        return r
    def half(main, rd, dm):
        r = []; j = 0
        for g, x in enumerate(main):
            r.append(x)
            if g < len(rd): r.append(rd[g])
            k = 1 if g < len(rd) else 2
            r += dm[j:j+k]; j += k
        return r + dm[j:]
    for s in range(16):
        o += [W("vm", f"d{s}"), W("lg", "fr")]
        if s == 13: o += [W("vm", "poll")]
        o += L("s_barrier")
        if s == 0: o += st("g0")
        dm = dma(s + 3) if s + 3 < 16 else []
        ex = []
        if s == 3:
            ex = L(f"""
            s_lshl_b32 s{t0}, s2, 2
            s_add_u32 s{t0}, s{t0}, {WS_FL1}
            s_cmp_eq_u32 s{sW}, 0
            s_cselect_b32 s{t1}, 1, 0
            v_mov_b32 v4, s{sT}
            v_cmp_gt_u32 vcc, s{t1}, v{vL}
            v_cndmask_b32 v5, 2.0, v{vL}, vcc
            """) + L(f"buffer_store_dword v4, v5, s[{WS}:{WS+3}], s{t0} offen sc1", tag="fl")
        if s == 11:
            dm = L(f"s_mov_b32 s{t0}, {WS_FL1}") + L(f"buffer_load_dwordx4 {vr(PL,4)}, v3, s[{WS}:{WS+3}], s{t0} offen sc1", tag="poll") + dm
        if s == 13:
            o += L(f"""
            s_mov_b32 s{t1}, 0
            K1_POLL1:
            v_xor_b32 v{PL}, s{sT}, v{PL}
            v_xor_b32 v{PL+1}, s{sT}, v{PL+1}
            v_xor_b32 v{PL+2}, s{sT}, v{PL+2}
            v_xor_b32 v{PL+3}, s{sT}, v{PL+3}
            v_or3_b32 v{PL}, v{PL}, v{PL+1}, v{PL+2}
            v_or_b32 v{PL}, v{PL}, v{PL+3}
            v_cmp_ne_u32 vcc, 0, v{PL}
            s_cbranch_vccz K1_POLL1_OK
            s_sleep 2
            """)
            o += L(f"""
            buffer_load_dwordx4 {vr(PL,4)}, v3, s[{WS}:{WS+3}], s{t0} offen sc1
            s_add_u32 s{t1}, s{t1}, 1
            s_cmp_lt_u32 s{t1}, {SPIN}
            s_waitcnt vmcnt(0)
            s_cbranch_scc1 K1_POLL1
            """, maybe=True)
            o += L("K1_POLL1_OK:")
            ex = L(f"""
            s_mul_i32 s{t0}, s2, {ZS}
            s_add_u32 s{t0}, s{t0}, s{sM0}
            s_add_u32 s{t1}, s{t0}, {WS_WT}
            s_add_u32 s{t0}, s{t0}, {WS_Z}
            """)
            for f in range(4):
                ex += L(f"buffer_load_dwordx4 {vr(ZL+4*f,4)}, v3, s[{WS}:{WS+3}], s{t0} offen offset:{1024*f} sc1", tag="zl")
            for f in range(4):
                ex += L(f"buffer_load_dwordx4 {vr(WL+4*f,4)}, v3, s[{WS}:{WS+3}], s{t1} offen offset:{1024*f} sc1", tag="wl")
        allx = dm + ex
        n0 = (len(allx) + 1) // 2
        if dm and not ex and s != 11: n0 = 8
        if s == 0: o += half([I("s_nop 0")] * 10, reads(0, 0), allx[:n0])
        else: o += half(mfmas(1), reads(s, 0), allx[:n0])
        o += [W("lg", "fr")]
        o += half(mfmas(0, s == 0), reads(s, 1), allx[n0:])
    o += [W("lg", "fr")]
    ex = L(f"s_add_u32 s{t0}, s{sM0}, {SCR}\n v_add_u32 v4, s{t0}, v3") + [W("vm", "zl")]
    for f in range(4): ex += L(f"ds_write_b128 v4, {vr(ZL+4*f,4)} offset:{1024*f}", tag="zw")
    o += half(mfmas(1), [], ex)
    o += st("g1")
    step = lambda k, part: acc(k >> 1, part) + 2 * (k & 1)
    G0, G1_ = 4, 8
    src = (step(0, 0), step(0, 1))
    for k in range(1, 16):
        d = (SA_R, SA_I) if k == 15 else ((G0, G0 + 2) if k & 1 else (G1_, G1_ + 2))
        o += [pk("fma", d[0], src[0], LAM, step(k, 0), sel="plp"), pk("fma", d[1], src[1], LAM, step(k, 1), sel="plp"),
              pk("fma", d[0], src[1], LAM, d[0], sel="php", neg=[1, 0, 0]), pk("fma", d[1], src[0], LAM, d[1], sel="php")]
        src = d
    o += [pk("mul", 4, SA_R, COEF, sel="pl"), pk("mul", 6, SA_I, COEF, sel="pl"),
          pk("fma", 4, SA_I, COEF, 4, sel="php", neg=[1, 0, 0]), pk("fma", SA_I, SA_R, COEF, 6, sel="php")]
    o += L(f"v_mov_b32 v{SA_R}, v4\n v_mov_b32 v{SA_R+1}, v5")
    o += cmul1(4, 8, SA_R, SA_I, L16, L16+1, SA_R+1, SA_I+1)
    o += L("""
    v_mov_b32 v6, v4
    v_mov_b32 v10, v8
    v_permlane32_swap_b32 v4, v6
    v_permlane32_swap_b32 v8, v10
    v_mov_b32 v5, v4
    v_mov_b32 v7, v6
    v_mov_b32 v9, v8
    v_mov_b32 v11, v10
    v_permlane16_swap_b32 v4, v5
    v_permlane16_swap_b32 v6, v7
    v_permlane16_swap_b32 v8, v9
    v_permlane16_swap_b32 v10, v11
    """)
    AG = WK + 36
    o += cmul1(12, 13, 4, 8, L32, L32+1, 5, 9)
    o += cmul1(14, 15, 12, 13, L32, L32+1, 6, 10)
    o += cmul1(AG, AG+1, 14, 15, L32, L32+1, 7, 11)
    o += L(f"""
    v_mov_b32 v{AG+2}, s{sT}
    v_mov_b32 v{AG+3}, s{sT}
    s_lshl_b32 s{t0}, s{sJ}, 4
    s_add_u32 s{t0}, s{t0}, s{sC}
    s_lshl_b32 s{t0}, s{t0}, 2
    s_add_u32 s{t0}, s{t0}, s{sW}
    s_lshl_b32 s{t0}, s{t0}, 8
    s_add_u32 s{t0}, s{t0}, {WS_AGG}
    v_cmp_gt_u32 vcc, 16, v{vL}
    v_cndmask_b32 v5, 2.0, v3, vcc
    """)
    o += L(f"buffer_store_dwordx4 {vr(AG,4)}, v5, s[{WS}:{WS+3}], s{t0} offen sc1", tag="ag")
    o += L(f"""
    v_cndmask_b32 v{PFX}, v4, 0, vcc
    v_cndmask_b32 v{PFX+1}, v8, 0, vcc
    v_cmp_eq_u32 vcc, 2, v{vQ}
    v_cndmask_b32 v{PFX}, v{PFX}, v12, vcc
    v_cndmask_b32 v{PFX+1}, v{PFX+1}, v13, vcc
    v_cmp_eq_u32 vcc, 3, v{vQ}
    v_cndmask_b32 v{PFX}, v{PFX}, v14, vcc
    v_cndmask_b32 v{PFX+1}, v{PFX+1}, v15, vcc
    """)
    o += st("scan1")
    o += [W("lg", "zw")] + L("s_barrier")
    o += L(f"v_add_u32 v4, {SCR}, v3")
    cf = lambda kap, sg: aFR + (kap * 4 + sg) * 4
    for kap in range(4):
        for sg in range(4):
            o += L(f"ds_read_b128 {ar(cf(kap,sg),4)}, v4 offset:{(kap*4+sg)*1024}", tag=f"cf{kap}")
    wu = lambda which, part, mu, i: WU + (which * 2 + part) * 8 + mu * 4 + i
    unp = [W("vm", "wl")]
    for io in range(4):
        for ii in range(2):
            for wh in range(2):
                raw = WL + io*4 + ii*2 + wh; mu, i = io >> 1, 2*(io & 1) + ii
                unp += L(f"v_lshlrev_b32 v{wu(wh,0,mu,i)}, 16, v{raw}\n v_and_b32 v{wu(wh,1,mu,i)}, 0xffff0000, v{raw}")
    CD = WK + 40
    CT = WK
    TT = 4
    cd1 = lambda kap, part: CD + (kap*2 + part)*4
    m1 = []
    for kap in range(4):
        m1.append(W("lg", f"cf{kap}"))
        for sg in range(4):
            for part in range(2):
                d = vr(cd1(kap, part), 4)
                m1 += L(f"{MF} {d}, {ar(cf(kap,sg),4)}, {ar(gc(sg,part),4)}, {'0' if sg == 0 else d}")
    o += weave(m1, unp, per=1, start=1)
    ct = lambda col, tau: CT + (col*2 + tau)*4
    for kap in range(4):
        for b in range(2):
            re, im = cd1(kap, 0) + 2*b, cd1(kap, 1) + 2*b
            tw = TWF + (kap*2 + b)*2
            tr, ti = TT + 4*b, TT + 4*b + 2
            o += [pk("mul", tr, re, tw, sel="pl"), pk("mul", ti, im, tw, sel="pl"), pk("fma", tr, im, tw, tr, sel="php"), pk("fma", ti, re, tw, ti, sel="php", neg=[1,0,0])]
        for b in range(2):
            for col in range(2):
                o += L(f"v_cvt_pk_bf16_f32 v{ct(col, kap>>1) + (kap&1)*2 + b}, v{TT+4*b+col}, v{TT+4*b+2+col}")
    cd2 = lambda col, mu, part: CD + ((col*2 + mu)*2 + part)*4
    for tau in range(2):
        for mu in range(2):
            for col in range(2):
                for part in range(2):
                    d = vr(cd2(col, mu, part), 4)
                    o += L(f"{MF} {d}, {ar(fc(mu,tau,part),4)}, {vr(ct(col,tau),4)}, {'0' if tau == 0 else d}")
    o += st("cc_f")
    SV = WK
    aSV = 160
    sp = L(f"""
    s_cmp_lg_u32 s2, 0
    s_cbranch_scc1 K1_NOSPECIAL
    s_nop 7
    s_mov_b32 s{t0}, {WS_WT + 256*ZS}
    s_add_u32 s{t0}, s{t0}, s{sM0}
    """)
    RV = 65536
    for f in range(4):
        sp += L(f"buffer_load_dwordx4 {vr(SV+4*f,4)}, v3, s[{WS}:{WS+3}], s{t0} offen offset:{1024*f} sc1")
    sp += L(f"""
    s_lshl_b32 s{t0}, s{sW}, 4
    v_lshl_add_u32 v4, v{vQ}, 7, v{vN}
    v_add_u32 v4, s{t0}, v4
    v_sub_u32 v5, 448, v4
    v_lshlrev_b32 v4, 2, v4
    v_lshlrev_b32 v5, 2, v5
    v_add_u32 v4, {RV}, v4
    v_add_u32 v5, {RV}, v5
    """)
    for mu in range(2):
        for h in range(2):
            for part in range(2):
                sp.append(pk("mul", cd2(0,mu,part)+2*h, cd2(0,mu,part)+2*h, "0.5", sel="pl"))
    for io in range(4):
        for ii in range(2):
            mu, i = io >> 1, 2*(io & 1) + ii
            sp += L(f"ds_write2st64_b32 v4, v{cd2(0,mu,0)+i}, v{cd2(0,mu,1)+i} offset0:{8*io+ii} offset1:{40+8*io+ii}")
            sp += L(f"ds_write2st64_b32 v4, v{WL+io*4+ii*2}, v{WL+io*4+ii*2+1} offset0:{80+8*io+ii} offset1:{120+8*io+ii}")
    sp += L(f"ds_write2st64_b32 v4, v{cd2(0,0,0)}, v{cd2(0,0,1)} offset0:32 offset1:72")
    sp += L(f"ds_write2st64_b32 v4, v{WL}, v{WL+1} offset0:112 offset1:152")
    sp += L("s_waitcnt vmcnt(0)")
    for io in range(4):
        for ii in range(2):
            mu, i = io >> 1, 2*(io & 1) + ii
            raw = SV + io*4 + ii*2
            qr, qi = cd2(1,mu,0)+i, cd2(1,mu,1)+i
            sp += L(f"v_lshlrev_b32 v6, 16, v{raw}\n v_and_b32 v7, 0xffff0000, v{raw}\n v_mul_f32 v6, 4.0, v6\n v_mul_f32 v7, 4.0, v7")
            sp += cmul1(8, 9, 6, 7, qr, qi)
            sp += L(f"v_cvt_pk_bf16_f32 v8, v8, -v9\n v_accvgpr_write_b32 a{aSV+mu*4+i}, v8")
    sp += L("s_waitcnt lgkmcnt(0)\n s_barrier")
    for io in range(4):
        mu, i = io >> 1, 2*(io & 1)
        for part in range(2):
            sp += L(f"ds_read2st64_b32 {vr(cd2(1,mu,part)+i,2)}, v5 offset0:{40*part+25-8*io} offset1:{40*part+24-8*io}")
        for wh in range(2):
            sp += L(f"ds_read2st64_b32 {vr(SV+io*4+2*wh,2)}, v5 offset0:{80+40*wh+25-8*io} offset1:{80+40*wh+24-8*io}")
    sp += L("s_waitcnt lgkmcnt(0)")
    for io in range(4):
        for ii in range(2):
            mu, i = io >> 1, 2*(io & 1) + ii
            sp += L(f"v_xor_b32 v{cd2(1,mu,1)+i}, 0x80000000, v{cd2(1,mu,1)+i}")
            for wh in range(2):
                raw = SV + io*4 + 2*wh + ii
                sp += L(f"v_lshlrev_b32 v6, 16, v{raw}\n v_and_b32 v7, 0xffff0000, v{raw}\n v_add_f32 v{wu(wh,0,mu,i)}, v{wu(wh,0,mu,i)}, v6\n v_sub_f32 v{wu(wh,1,mu,i)}, v{wu(wh,1,mu,i)}, v7")
    sp += L(f"""
    s_add_u32 s{t0}, s{sN}, 1
    v_mov_b32 v6, s{t0}
    v_mov_b32 v7, {WS_NONCE}
    buffer_store_dword v6, v7, s[{WS}:{WS+3}], 0 offen sc1
    """)
    for x in sp: x.maybe = True
    o += sp + L("K1_NOSPECIAL:\n s_nop 7")
    cw = f"s[{sCW}:{sCW+1}]"
    for mu in range(2):
        for h in range(2):
            Pr, Pi, Qr, Qi = (cd2(0,mu,0)+2*h, cd2(0,mu,1)+2*h, cd2(1,mu,0)+2*h, cd2(1,mu,1)+2*h)
            W1r, W1i, W2r, W2i = (wu(0,0,mu,2*h), wu(0,1,mu,2*h), wu(1,0,mu,2*h), wu(1,1,mu,2*h))
            A, B, C_, D_ = 4, 6, 8, 10
            o += [pk("add", A, Pr, Qr, neg=[0,1]), pk("add", B, Pi, Qi, neg=[0,1]),
                  pk("add", Pr, Pr, Qr), pk("add", Pi, Pi, Qi),
                  pk("mul", C_, A, cw, sel="pl"), pk("mul", D_, B, cw, sel="pl"),
                  pk("fma", C_, B, cw, C_, sel="php", neg=[1,0,0]), pk("fma", D_, A, cw, D_, sel="php"),
                  pk("add", Qr, Pr, C_, neg=[0,1]), pk("add", Qi, Pi, D_, neg=[0,1]),
                  pk("add", Pr, Pr, C_), pk("add", Pi, Pi, D_),
                  pk("mul", A, Pr, W1r), pk("mul", B, Pi, W1r), pk("mul", C_, Qr, W2r), pk("mul", D_, Qi, W2r),
                  pk("fma", A, Pi, W1i, A, neg=[1,0,0]), pk("fma", B, Pr, W1i, B),
                  pk("fma", C_, Qi, W2i, C_), pk("fma", D_, Qr, W2i, D_, neg=[1,0,0]),
                  pk("add", Qr, A, C_, neg=[0,1]), pk("add", Qi, B, D_, neg=[0,1]),
                  pk("add", Pr, A, C_), pk("add", Pi, B, D_),
                  pk("mul", A, Qr, cw, sel="pl"), pk("mul", B, Qi, cw, sel="pl"),
                  pk("fma", A, Qi, cw, A, sel="php"), pk("fma", B, Qr, cw, B, sel="php", neg=[1,0,0]),
                  pk("add", Qr, Pr, A, neg=[0,1]), pk("add", Qi, Pi, B, neg=[0,1]),
                  pk("add", Pr, Pr, A), pk("add", Pi, Pi, B)]
            for col in range(2):
                for ii in range(2):
                    i = 2*h + ii
                    o += L(f"v_cvt_pk_bf16_f32 v{ct(col,mu)+i}, v{cd2(col,mu,0)+i}, -v{cd2(col,mu,1)+i}")
    sp = L("s_cmp_lg_u32 s2, 0\n s_cbranch_scc1 K1_NOSPECIAL2")
    for mu in range(2):
        for i in range(4): sp += L(f"v_accvgpr_read_b32 v{ct(1,mu)+i}, a{aSV+mu*4+i}")
    o += sp + L("K1_NOSPECIAL2:\n s_nop 1")
    o += st("cc_m")
    LB = WL
    o += L(f"""
    s_lshl_b32 s{t2}, s{sJ}, 14
    s_lshl_b32 s{t1}, s{sW}, 8
    s_add_u32 s{t2}, s{t2}, s{t1}
    s_add_u32 s{t2}, s{t2}, {WS_AGG}
    v_lshlrev_b32 v4, 2, v{vQ}
    v_sub_u32 v4, s{sC}, v4
    """)
    LA = WU
    for e in range(4):
        o += L(f"""
        v_subrev_u32 v5, {e+1}, v4
        v_cmp_le_i32 vcc, 0, v5
        v_lshlrev_b32 v5, 10, v5
        v_lshl_add_u32 v5, v{vN}, 4, v5
        v_cndmask_b32 v{LA+e}, 2.0, v5, vcc
        """)
    cd3 = lambda col, tp, part: CD + ((col*2 + tp)*2 + part)*4
    mA = []
    for mu in range(2):
        for col in range(2):
            for tp in range(2):
                for part in range(2):
                    d = vr(cd3(col, tp, part), 4)
                    mA += L(f"{MF} {d}, {vr(ct(col,mu),4)}, {ar(fc(tp,mu,part),4)}, {'0' if mu == 0 else d}")
    ex = []
    for e in range(4):
        ex += L(f"buffer_load_dwordx4 {vr(LB+4*e,4)}, v{LA+e}, s[{WS}:{WS+3}], s{t2} offen sc1", tag="lb")
    ex += L(f"""
    v_bfe_u32 v12, v{vN}, 1, 1
    v_mul_u32_u24 v12, 4112, v12
    v_and_b32 v13, 1, v{vN}
    v_lshl_add_u32 v12, v13, 5, v12
    v_and_b32 v13, 60, v{vL}
    v_lshl_add_u32 v12, v13, 4, v12
    s_lshl_b32 s{t0}, s{sW}, 10
    v_add_u32 v12, s{t0}, v12
    """)
    o += weave(mA, ex, per=1)
    for col in range(2):
        for tp in range(2):
            for h in range(2):
                re, im = cd3(col,tp,0) + 2*h, cd3(col,tp,1) + 2*h
                cs, sn = TWI + tp*8 + 2*h, TWI + tp*8 + 4 + 2*h
                tr, ti = TT + 4*h, TT + 4*h + 2
                o += [pk("mul", tr, re, cs), pk("mul", ti, im, cs), pk("fma", tr, im, sn, tr), pk("fma", ti, re, sn, ti, neg=[1,0,0])]
            for i in range(4):
                o += L(f"v_cvt_pk_bf16_f32 v{ct(col,tp)+i}, v{TT+4*(i>>1)+(i&1)}, v{TT+4*(i>>1)+2+(i&1)}")
            o += L(f"ds_write_b128 v12, {vr(ct(col,tp),4)} offset:{tp*2*4112 + col*16}", tag="xw")
    o += [W("lg", "xw")] + L("s_barrier")
    for kap in range(4):
        for sg in range(4):
            o += L(f"ds_read_b128 {ar(cf(kap,sg),4)}, v3 offset:{kap*4112 + sg*1024}", tag=f"cg{kap}")
    for k in range(16):
        ur, ui = step(k, 0), step(k, 1)
        o += [pk("mul", 4 + 4*(k&1), ui, COEF, sel="ph"), pk("mul", 6 + 4*(k&1), ur, COEF, sel="ph"),
              pk("fma", ur, ur, COEF, 4 + 4*(k&1), sel="plp", neg=[0,0,1]), pk("fma", ui, ui, COEF, 6 + 4*(k&1), sel="plp")]
    o += L(f"""
    v_lshlrev_b32 v12, 4, v{vQ}
    v_lshrrev_b32 v13, 2, v{vN}
    v_add_u32 v12, v12, v13
    v_and_b32 v13, 3, v{vN}
    v_lshlrev_b32 v13, 4, v13
    s_mov_b32 s{t0}, {ZS}
    v_mad_u32_u24 v12, v12, s{t0}, v13
    s_mul_i32 s{t0}, s{sW}, {64*ZS}
    s_lshl_b32 s{t1}, s2, 6
    s_add_u32 s{t0}, s{t0}, s{t1}
    s_add_u32 s{t0}, s{t0}, {WS_Y}
    """)
    pend = []
    for kap in range(4):
        mB = [W("lg", f"cg{kap}")]
        for sg in range(4):
            for part in range(2):
                d = vr(cd1(kap, part), 4)
                mB += L(f"{MF} {d}, {ar(gc(sg,part),4)}, {ar(cf(kap,sg),4)}, {'0' if sg == 0 else d}")
        o += weave(mB, pend, per=2, start=5)
        pend = []
        for i in range(4):
            pend += L(f"v_cvt_pk_bf16_f32 v{CT+kap*4+i}, v{cd1(kap,0)+i}, v{cd1(kap,1)+i}")
        pend += L(f"buffer_store_dwordx4 {vr(CT+kap*4,4)}, v12, s[{WS}:{WS+3}], s{t0} offen", tag="yst")
        if kap < 3: pend += L(f"s_add_u32 s{t0}, s{t0}, {4*ZS}")
    o += pend
    o += st("cc_i")
    o += [W("vm", "lb")]
    o += L(f"s_mov_b32 s{t1}, 0\n K1_POLL2:")
    for e in range(4):
        o += L(f"""
        v_cmp_ne_u32 vcc, 2.0, v{LA+e}
        v_xor_b32 v{4+e}, s{sT}, v{LB+4*e+2}
        v_cndmask_b32 v{4+e}, 0, v{4+e}, vcc
        """)
    o += L(f"""
    v_or3_b32 v4, v4, v5, v6
    v_or_b32 v4, v4, v7
    v_cmp_ne_u32 vcc, 0, v4
    s_cbranch_vccz K1_POLL2_OK
    s_sleep 1
    """)
    for e in range(4):
        o += L(f"buffer_load_dwordx4 {vr(LB+4*e,4)}, v{LA+e}, s[{WS}:{WS+3}], s{t2} offen sc1", maybe=True)
    o += L(f"""
    s_add_u32 s{t1}, s{t1}, 1
    s_cmp_lt_u32 s{t1}, {SPIN}
    s_waitcnt vmcnt(0)
    s_cbranch_scc1 K1_POLL2
    """, maybe=True)
    o += L("K1_POLL2_OK:")
    o += cmul1(4, 5, LB+12, LB+13, L128, L128+1, LB+8, LB+9)
    o += cmul1(6, 7, 4, 5, L128, L128+1, LB+4, LB+5)
    o += cmul1(4, 5, 6, 7, L128, L128+1, LB, LB+1)
    o += cmul1(6, 8, 4, 5, L512Q, L512Q+1)
    o += L("""
    v_mov_b32 v7, v6
    v_mov_b32 v9, v8
    v_permlane32_swap_b32 v6, v7
    v_permlane32_swap_b32 v8, v9
    v_add_f32 v6, v6, v7
    v_add_f32 v8, v8, v9
    v_mov_b32 v7, v6
    v_mov_b32 v9, v8
    v_permlane16_swap_b32 v6, v7
    v_permlane16_swap_b32 v8, v9
    v_add_f32 v6, v6, v7
    v_add_f32 v8, v8, v9
    """)
    o += cmul1(10, 12, 6, 8, L32Q, L32Q+1, PFX, PFX+1)
    o += cmul1(11, 13, 10, 12, L16, L16+1, SA_R, SA_I)
    HB = 32768
    o += L(f"""
    v_and_b32 v14, 8, v{vN}
    v_and_b32 v15, 3, v{vN}
    v_lshl_or_b32 v14, v15, 1, v14
    v_bfe_u32 v15, v{vN}, 2, 1
    v_or_b32 v14, v14, v15
    v_lshlrev_b32 v15, 2, v{vQ}
    v_xor_b32 v14, v14, v15
    v_lshlrev_b32 v14, 4, v14
    v_lshl_add_u32 v14, v{vN}, 8, v14
    s_lshl_b32 s{t0}, s{sW}, 13
    s_add_u32 s{t0}, s{t0}, {HB}
    v_add_u32 v4, s{t0}, v14
    v_xor_b32 v5, 16, v4
    v_xor_b32 v6, 32, v4
    v_xor_b32 v7, 48, v4
    """)
    o += L(f"""
    v_and_b32 v14, 1, v{vQ}
    v_lshrrev_b32 v15, 2, v{vN}
    v_lshl_add_u32 v8, v14, 3, v15
    v_lshlrev_b32 v8, 8, v8
    v_lshrrev_b32 v9, 1, v{vQ}
    v_lshl_add_u32 v8, v9, 12, v8
    v_lshlrev_b32 v14, 3, v14
    v_lshl_or_b32 v14, v15, 1, v14
    v_bfe_u32 v15, v{vN}, 1, 1
    v_xor_b32 v14, v14, v15
    v_lshl_add_u32 v8, v14, 4, v8
    v_and_b32 v15, 1, v{vN}
    v_lshl_add_u32 v8, v15, 3, v8
    v_add_u32 v8, s{t0}, v8
    """)
    HP = WK
    src = (10, 12)
    for k in range(16):
        d = (step(k, 0), step(k, 1))
        o += [pk("fma", d[0], src[0], LAM, d[0], sel="plp"), pk("fma", d[1], src[1], LAM, d[1], sel="plp"),
              pk("fma", d[0], src[1], LAM, d[0], sel="php", neg=[1, 0, 0]), pk("fma", d[1], src[0], LAM, d[1], sel="php")]
        src = d
        if k & 1:
            tau = k >> 1
            for part in range(2):
                for i0 in range(2):
                    sg = "-" if part else ""
                    o += L(f"v_cvt_pk_bf16_f32 v{HP+(part*2+i0)*8+tau}, {sg}v{acc(tau,part)+i0}, {sg}v{acc(tau,part)+2+i0}")
        if k in (7, 15):
            half_ = k >> 3
            for part in range(2):
                for i0 in range(2):
                    o += L(f"ds_write_b128 v{4+2*i0+half_}, {vr(HP+(part*2+i0)*8+4*half_,4)} offset:{part*4096}", tag="hw")
    o += L(f"""
    s_lshl_b32 s{t0}, s{sC}, 19
    s_lshl_b32 s{t1}, s{sJ}, 12
    s_add_u32 s{t0}, s{t0}, s{t1}
    s_lshl_b32 s{t1}, s{sW}, 10
    s_add_u32 s{t0}, s{t0}, s{t1}
    s_add_u32 s{t0}, s{t0}, {WS_H}
    """)
    HO = ACC
    for T in range(8):
        o += L(f"v_xor_b32 v{WU+2*T}, {32*T}, v8\n v_xor_b32 v{WU+2*T+1}, {32*T+16}, v8")
    o += [W("lg", "hw")]
    for T in range(8):
        o += L(f"ds_read_b64_tr_b16 {vr(HO+4*T,2)}, v{WU+2*T}\n ds_read_b64_tr_b16 {vr(HO+4*T+2,2)}, v{WU+2*T+1} offset:1024", tag=f"hr{T}")
    for T in range(8):
        o += [W("lg", f"hr{T}")]
        o += L(f"buffer_store_dwordx4 {vr(HO+4*T,4)}, v3, s[{WS}:{WS+3}], s{t0} offen", tag="hst")
        if T < 7: o += L(f"s_add_u32 s{t0}, s{t0}, 65536")
    o += st("hst")
    if diag:
        o += L("s_waitcnt vmcnt(0)") + st("drain") + st.real("rt1") + st.dump(WS, sW, 0)
    o += L("K1_END:\n s_endpgm\n K1_CODE_END:")
    return dict(name="k1_kernel", body=finish(o), grid=256, block=256, lds=163840, vgpr=256, agpr=176, sgpr=100), st.names

def kernel2(diag=False, DEPTH=4):
    o = []
    st = Stamps(diag)
    X, CS, OUT_, WS, TMPS = 8, 12, 16, 24, 28
    sC, sJ, sW, sT, sK, sM0 = 32, 33, 34, 35, 36, 37
    t0, t1, t2, t3 = 38, 39, 40, 41
    sA0, sA1 = 42, 43
    sN = 62
    R = 8
    SCR = 131072
    vL, vN, vQ, vL16 = 0, 1, 2, 3
    vDC = 16
    vRB = 20
    ACC = 32
    BF = 64
    CB, OM = 96, 112
    CU = 120
    acc = lambda tau, jt: ACC + (tau*4 + jt)*4
    af = lambda s, tau, kap: (s % (DEPTH + 1)) * 32 + (tau*4 + kap)*4
    o += L("s_cmp_ge_u32 s2, 256\n s_cbranch_scc1 K2_END")
    o += st.real("rt0") + st("start")
    o += L("""
    s_load_dwordx2 s[44:45], s[0:1], 0
    s_load_dwordx4 s[48:51], s[0:1], 64
    s_load_dwordx4 s[52:55], s[0:1], 88
    s_load_dwordx2 s[56:57], s[0:1], 104
    s_load_dwordx2 s[60:61], s[0:1], 120
    """, tag="ka")
    o += L(f"""
    v_lshrrev_b32 v3, 6, v0
    v_and_b32 v{vL}, 63, v0
    v_readfirstlane_b32 s{sW}, v3
    v_and_b32 v{vN}, 15, v{vL}
    v_lshrrev_b32 v{vQ}, 4, v{vL}
    v_lshlrev_b32 v{vL16}, 4, v{vL}
    """)
    o += wg_decode(sC, sJ, t0, t1)
    o += L(f"""
    s_getpc_b64 s[{TMPS}:{TMPS+1}]
    K2_PC:
    s_mov_b32 s{TMPS+2}, K2_CODE_END-K2_PC
    s_mov_b32 s{TMPS+3}, 0x00020000
    s_bfe_u32 s{t0}, s2, 0x30003
    s_lshl_b32 s{t0}, s{t0}, 2
    s_add_u32 s{t0}, s{t0}, s{sW}
    s_lshl_b32 s{t0}, s{t0}, 11
    v_lshl_add_u32 v4, v{vN}, 7, s{t0}
    v_cmp_gt_u32 vcc, 16, v{vL}
    v_cndmask_b32 v4, 2.0, v4, vcc
    """)
    o += L(f"buffer_load_dword v255, v4, s[{TMPS}:{TMPS+3}], 0 offen", tag="pf")
    o += L(f"""
    v_lshlrev_b32 v5, 9, v{vQ}
    v_lshl_add_u32 v5, v{vN}, 3, v5
    s_lshl_b32 s{sM0}, s{sW}, 12
    s_lshl_b32 s{t0}, s{sC}, 4
    s_add_u32 s{t0}, s{t0}, s{sJ}
    s_mul_i32 s{t0}, s{t0}, {ZS}
    s_lshl_b32 s{t1}, s{sW}, 10
    s_add_u32 s{t0}, s{t0}, s{t1}
    s_add_u32 s{t0}, s{t0}, {WS_Y}
    """)
    o += [W("lg", "ka")]
    o += L(f"s_add_u32 s{t2}, s60, {WS_NONCE}\n s_addc_u32 s{t3}, s61, 0") + L(f"s_load_dword s{sN}, s[{t2}:{t3}], 0", tag="nonce")
    o += srd(WS, 60, 61, WS_SIZE) + srd(X, 44, 45, 0x400000)
    YL = 152
    XL = 168
    GW, DK = 184, 192
    for rho in range(4):
        o += L(f"buffer_load_dwordx4 {vr(YL+4*rho,4)}, v{vL16}, s[{WS}:{WS+3}], s{t0} offen", tag="y")
        if rho < 3: o += L(f"s_add_u32 s{t0}, s{t0}, 4096")
    o += L(f"""
    s_lshl_b32 s{t0}, s{sC}, 7
    s_and_b32 s{t1}, s{sW}, 1
    s_lshl_b32 s{t1}, s{t1}, 6
    s_add_u32 s{t0}, s{t0}, s{t1}
    s_lshl_b32 s{t1}, s{sJ}, 1
    s_add_u32 s{t0}, s{t0}, s{t1}
    s_lshr_b32 s{t1}, s{sW}, 1
    s_add_u32 s{t0}, s{t0}, s{t1}
    s_lshl_b32 s{t0}, s{t0}, 11
    s_add_u32 s{t1}, s{t0}, 65536
    """)
    for e in range(2):
        for i in range(4):
            o += L(f"buffer_load_dwordx2 {vr(XL+(e*4+i)*2,2)}, v5, s[{X}:{X+3}], s{t0+e} offen offset:{128*i}", tag="x")
    for i in range(4):
        o += L(f"global_load_dwordx2 {vr(GW+2*i,2)}, v5, s[54:55] offset:{128*i}\n global_load_dwordx2 {vr(DK+2*i,2)}, v5, s[52:53] offset:{128*i}", tag="x")
    o += L(f"""
    s_cmp_lt_u32 s{sW}, 2
    s_cselect_b32 s{CS}, s48, s50
    s_cselect_b32 s{CS+1}, s49, s51
    s_mov_b32 s{CS+2}, 0x200000
    s_mov_b32 s{CS+3}, 0x00020000
    v_and_b32 v6, 7, v{vL}
    v_xor_b32 v6, v6, v{vQ}
    v_lshlrev_b32 v6, 4, v6
    v_xor_b32 v7, 64, v6
    v_lshrrev_b32 v8, 3, v{vL}
    v_lshlrev_b32 v8, 2, v8
    s_lshl_b32 s{t0}, s{sJ}, 6
    s_and_b32 s{t1}, s{sW}, 1
    s_lshl_b32 s{t1}, s{t1}, 1
    s_add_u32 s{t0}, s{t0}, s{t1}
    v_add_u32 v8, s{t0}, v8
    """)
    for jj in range(4):
        o += L(f"v_add_u32 v9, {32*(jj&1) + (jj>>1)}, v8\n v_lshl_add_u32 v{vDC+jj}, v9, 11, v{6+(jj&1)}")
    o += L(f"""
    s_and_b32 s{sK}, s{sJ}, 8
    s_lshl_b32 s{sK}, s{sK}, 7
    s_and_b32 s{t0}, s{sW}, 1
    s_lshl_b32 s{t0}, s{t0}, 2
    s_lshr_b32 s{t1}, s{sW}, 1
    s_add_u32 s{t0}, s{t0}, s{t1}
    s_lshl_b32 s{t1}, s{sC}, 3
    s_add_u32 s{t0}, s{t0}, s{t1}
    s_lshl_b32 s{t0}, s{t0}, 16
    s_add_u32 s58, s{t0}, {WS_H}
    """)
    def loads(stage):
        slot = stage % R; r = []
        r += L(f"s_lshl_b32 s{sA0}, s{sK}, 5\n s_add_u32 s{sA0}, s{sA0}, s58\n s_add_u32 s{sA1}, s{sA0}, 0x20000")
        for jj in range(4):
            r += L(f"s_add_u32 m0, s{sM0}, {slot*16384 + jj*1024}")
            r += L(f"buffer_load_dwordx4 {ar(af(stage,0,jj),4)}, v{vL16}, s[{WS}:{WS+3}], s{sA0} offen offset:{1024*jj}", tag=f"d{stage}")
            r += L(f"buffer_load_dwordx4 v{vDC+jj}, s[{CS}:{CS+3}], s{sK} offen lds", tag=f"d{stage}")
            r += L(f"buffer_load_dwordx4 {ar(af(stage,1,jj),4)}, v{vL16}, s[{WS}:{WS+3}], s{sA1} offen offset:{1024*jj}", tag=f"d{stage}")
        r += L(f"s_add_u32 s{sK}, s{sK}, 128\n s_and_b32 s{sK}, s{sK}, 2047")
        return r
    for s in range(3): o += loads(s)
    o += st("issued")
    FA, FB, TW = 200, 232, 240
    TW = 96
    fa = lambda tp, mu, part: FA + ((tp*2 + mu)*2 + part)*4
    c_, s_, an = 10, 11, 12
    o += L(f"v_cvt_f32_u32 v6, v{vN}\n v_cvt_f32_u32 v7, v{vQ}\n v_mul_f32 v7, 4.0, v7")
    for tp in range(2):
        o += L(f"v_fma_f32 v8, v6, 2.0, {'1.0' if tp else '0'}\n v_mul_f32 v9, {fbits(1/32)}, v8\n v_mul_f32 v15, v7, v9")
        for r in range(4):
            o += L(f"v_fmamk_f32 v{an}, v9, {fbits(r)}, v15") + sincos(an, c_, s_)
            p_, n_ = ("", "-") if tp == 0 else ("-", "")
            o += L(f"""
            v_cvt_pk_bf16_f32 v{fa(tp,0,0)+r}, v{c_}, v{s_}
            v_cvt_pk_bf16_f32 v{fa(tp,0,1)+r}, -v{s_}, v{c_}
            v_cvt_pk_bf16_f32 v{fa(tp,1,0)+r}, {p_}v{c_}, {n_}v{s_}
            v_cvt_pk_bf16_f32 v{fa(tp,1,1)+r}, {n_}v{s_}, {n_}v{c_}
            v_mul_f32 v{an}, {fbits(1/16)}, v{an}
            """) + sincos(an, TW + tp*4 + r, TW + 8 + tp*4 + r)
    o += L(f"v_mul_f32 v9, {fbits(1/16)}, v6\n v_mul_f32 v15, v7, v9")
    for r in range(4):
        o += L(f"v_fmamk_f32 v{an}, v9, {fbits(r)}, v15") + sincos(an, c_, s_)
        o += L(f"v_cvt_pk_bf16_f32 v{FB+r}, v{c_}, v{s_}\n v_cvt_pk_bf16_f32 v{FB+4+r}, v{s_}, -v{c_}")
    o += L(f"""
    v_and_b32 v8, 1, v{vQ}
    v_lshrrev_b32 v9, 1, v{vN}
    v_xor_b32 v8, v8, v9
    v_lshlrev_b32 v8, 4, v8
    v_lshl_add_u32 v8, v{vN}, 7, v8
    v_lshrrev_b32 v9, 1, v{vQ}
    v_lshl_add_u32 v8, v9, 13, v8
    """)
    for kap in range(4):
        o += L(f"v_xor_b32 v{vRB+kap}, {32*kap}, v8\n v_add_u32 v{vRB+4+kap}, 0x10000, v{vRB+kap}")
    o += L(f"""
    s_lshr_b32 s{t0}, s{sW}, 1
    s_lshl_b32 s{t0}, s{t0}, 2
    s_and_b32 s{t1}, s{sW}, 1
    s_add_u32 s{t0}, s{t0}, s{t1}
    s_mul_i32 s{t0}, s{t0}, 2080
    s_add_u32 s{t0}, s{t0}, {SCR}
    v_lshl_add_u32 v4, v{vQ}, 6, v{vN}
    v_lshl_add_u32 v6, v4, 3, s{t0}
    v_sub_u32 v4, 208, v4
    s_add_u32 s{t0}, s{t0}, {2*2080}
    v_lshl_add_u32 v7, v4, 3, s{t0}
    v_and_b32 v4, 3, v{vL}
    v_lshrrev_b32 v5, 2, v{vL}
    s_lshl_b32 s{t1}, s{sW}, 4
    v_add_u32 v5, s{t1}, v5
    v_mul_u32_u24 v9, 4160, v4
    v_lshl_add_u32 v9, v5, 3, v9
    v_add_u32 v9, {SCR}, v9
    v_and_b32 v4, 1, v4
    v_lshlrev_b32 v4, 11, v4
    v_cmp_eq_u32 vcc, 0, v5
    v_cndmask_b32 v4, 0, v4, vcc
    v_add_u32 v8, v9, v4
    """)
    o += st("consts")
    o += [W("vm", "y")]
    for rho in range(4):
        for h in range(2):
            o += L(f"ds_write_b64 v{8 if rho == 0 else 9}, {vr(YL+4*rho+2*h,2)} offset:{h*2080 + rho*512}", tag="yw")
    o += [W("vm", "x")]
    for k in range(8):
        for e in range(2):
            o += L(f"v_dot2_f32_bf16 v{10+e}, v{XL+e*8+k}, v{GW+k}, {'0' if k == 0 else 'v%d' % (10+e)}")
    o += [W("lg", "*")] + L("s_barrier")
    AO = YL
    for e in range(2):
        for mu in range(2):
            for h in range(2):
                o0, o1 = (64*h + e, 64*h + 32 + e) if mu == 0 else (96 - 64*h + e, 64 - 64*h + e)
                o += L(f"ds_read2_b32 {vr(AO+(e*2+mu)*4+2*h,2)}, v{6+mu} offset0:{o0} offset1:{o1}", tag=f"yr{e}")
    o += loads(3) if DEPTH >= 4 else []
    for sh in ("row_ror:8", "row_ror:4", "row_ror:2", "row_ror:1"):
        for e in range(2):
            o += L(f"v_add_f32_dpp v{10+e}, v{10+e}, v{10+e} {sh} row_mask:0xf bank_mask:0xf")
    for sw in ("v_permlane32_swap_b32", "v_permlane16_swap_b32"):
        o += L(f"v_mov_b32 v12, v10\n v_mov_b32 v13, v11\n {sw} v10, v12\n {sw} v11, v13\n v_add_f32 v10, v10, v12\n v_add_f32 v11, v11, v13")
    o += L(f"""
    v_cvt_pk_bf16_f32 v12, v10, v11
    v_lshlrev_b32 v10, 16, v12
    v_and_b32 v11, 0xffff0000, v12
    v_mul_f32 v10, {fbits(-1.4426950408889634)}, v10
    v_mul_f32 v11, {fbits(-1.4426950408889634)}, v11
    v_exp_f32 v10, v10
    v_exp_f32 v11, v11
    v_add_f32 v10, 1.0, v10
    v_add_f32 v11, 1.0, v11
    v_rcp_f32 v10, v10
    v_rcp_f32 v11, v11
    v_cvt_pk_bf16_f32 v12, v10, v11
    v_lshlrev_b32 v10, 16, v12
    v_and_b32 v11, 0xffff0000, v12
    v_sub_f32 v12, 1.0, v10
    v_sub_f32 v13, 1.0, v11
    v_cvt_pk_bf16_f32 v13, v12, v13
    v_lshlrev_b32 v12, 16, v13
    v_and_b32 v13, 0xffff0000, v13
    """)
    DA = ACC
    da = lambda e, tp, part: DA + ((e*2 + tp)*2 + part)*4
    mA = []
    for e in range(2):
        mA.append(W("lg", f"yr{e}"))
        for mu in range(2):
            for tp in range(2):
                for part in range(2):
                    d = vr(da(e, tp, part), 4)
                    mA += L(f"{MF} {d}, {vr(AO+(e*2+mu)*4,4)}, {vr(fa(tp,mu,part),4)}, {'0' if mu == 0 else d}")
    XU, DU = 120, 64
    xu = lambda e, tp, part: XU + ((e*2 + tp)*2 + part)*4
    du = lambda tp, part: DU + (tp*2 + part)*4
    unp = []
    for i in range(4):
        for tp in range(2):
            unp += L(f"v_lshlrev_b32 v{du(tp,0)+i}, 16, v{DK+2*i+tp}\n v_and_b32 v{du(tp,1)+i}, 0xffff0000, v{DK+2*i+tp}")
            for e in range(2):
                unp += L(f"v_lshlrev_b32 v{xu(e,tp,0)+i}, 16, v{XL+(e*4+i)*2+tp}\n v_and_b32 v{xu(e,tp,1)+i}, 0xffff0000, v{XL+(e*4+i)*2+tp}")
    o += weave(mA, unp, per=2, start=1)
    for e in range(2):
        for tp in range(2):
            for part in range(2):
                for h in range(2):
                    o.append(pk("mul", xu(e,tp,part)+2*h, xu(e,tp,part)+2*h, du(tp,part)+2*h))
    for e in range(2):
        for tp in range(2):
            for part in range(2):
                for h in range(2):
                    o.append(pk("mul", xu(e,tp,part)+2*h, xu(e,tp,part)+2*h, 12, sel="p" + "lh"[e]))
    TP = XL
    T0 = 80
    for e in range(2):
        for tp in range(2):
            for h in range(2):
                re, im = da(e,tp,0) + 2*h, da(e,tp,1) + 2*h
                cs, sn = TW + tp*4 + 2*h, TW + 8 + tp*4 + 2*h
                tr, ti = T0 + 4*h, T0 + 4*h + 2
                o += [pk("mul", tr, re, cs), pk("mul", ti, im, cs), pk("fma", tr, im, sn, tr), pk("fma", ti, re, sn, ti, neg=[1,0,0])]
            for i in range(4):
                o += L(f"v_cvt_pk_bf16_f32 v{TP+(e*2+tp)*4+i}, v{T0+4*(i>>1)+(i&1)}, v{T0+4*(i>>1)+2+(i&1)}")
    mB = []
    for e in range(2):
        for tp in range(2):
            for part in range(2):
                mB += L(f"{MF} {vr(da(e,tp,part),4)}, {vr(FB+4*part,4)}, {vr(TP+(e*2+tp)*4,4)}, 0")
    ex = L(f"""
    s_lshl_b32 s{t0}, s{sJ}, 1
    s_lshr_b32 s{t1}, s{sW}, 1
    s_add_u32 s{t0}, s{t0}, s{t1}
    s_lshr_b32 s{t1}, s{t0}, 4
    s_lshl_b32 s{t1}, s{t1}, 1
    s_and_b32 s{t2}, s{sW}, 1
    s_add_u32 s{t1}, s{t1}, s{t2}
    s_lshl_b32 s{t3}, s{sC}, 2
    s_add_u32 s{t3}, s{t3}, s{t1}
    s_lshl_b32 s{t3}, s{t3}, 4
    s_and_b32 s{t2}, s{t0}, 15
    s_add_u32 s{t3}, s{t3}, s{t2}
    s_lshl_b32 s{t3}, s{t3}, 3
    s_add_u32 s{t3}, s{t3}, {WS_OMG}
    s_lshl_b32 s{t1}, s{t1}, 12
    s_and_b32 s{t2}, s{t0}, 3
    s_lshl_b32 s{t2}, s{t2}, 10
    s_add_u32 s{t1}, s{t1}, s{t2}
    s_bfe_u32 s{t2}, s{t0}, 0x20002
    s_lshl_b32 s{t2}, s{t2}, 8
    s_add_u32 s{t1}, s{t1}, s{t2}
    s_lshl_b32 s{t2}, s{sC}, 18
    s_add_u32 s{t1}, s{t1}, s{t2}
    s_add_u32 s{t1}, s{t1}, {WS_COMB}
    v_lshlrev_b32 v4, 16, v{vQ}
    v_lshl_add_u32 v4, v{vN}, 4, v4
    v_cmp_eq_u32 vcc, 0, v{vL}
    v_cndmask_b32 v5, 2.0, v{vL}, vcc
    s_mul_i32 s{sT}, s{sN}, {HASH_A}
    s_add_u32 s{sT}, s{sT}, {HASH_B}
    """)
    o += weave(mB, ex)
    o += L(f"buffer_store_dwordx2 v[12:13], v5, s[{WS}:{WS+3}], s{t3} offen sc1", tag="st")
    CO = YL
    for h in range(2):
        for e in range(2):
            for tp in range(2):
                for part in range(2):
                    o.append(pk("fma", xu(e,tp,part)+2*h, da(e,tp,part)+2*h, 10, xu(e,tp,part)+2*h, sel="p" + "lh"[e] + "p"))
        for i in (2*h, 2*h + 1):
            for e in range(2):
                for tp in range(2):
                    o += L(f"v_cvt_pk_bf16_f32 v{CO+i*4+e*2+tp}, v{xu(e,tp,0)+i}, v{xu(e,tp,1)+i}")
            o += L(f"buffer_store_dwordx4 {vr(CO+i*4,4)}, v4, s[{WS}:{WS+3}], s{t1} offen sc1", tag="st")
            if i < 3: o += L(f"s_add_u32 s{t1}, s{t1}, 16384")
    o += srd(OUT_, 56, 57, 0x800000)
    o += st("ri")
    def reads(s, kap):
        slot = s % R; hi = 4 if slot >= 4 else 0; base = (slot & 3) * 16384; r = []
        for jt in range(4):
            r += L(f"ds_read_b128 {vr(BF+(kap&1)*16+jt*4,4)}, v{vRB+kap+hi} offset:{base + jt*2048}", tag="fr")
        return r
    def mfmas(s, kap):
        r = []
        for jt in range(4):
            for tau in range(2):
                a_ = vr(acc(tau, jt), 4)
                r += L(f"{MF} {a_}, {ar(af(s,tau,kap),4)}, {vr(BF+(kap&1)*16+jt*4,4)}, {'0' if (s == 0 and kap == 0) else a_}")
        return r
    def half(main, rd, dm):
        r = []; j = 0
        for g, x in enumerate(main):
            r.append(x)
            if g < len(rd): r.append(rd[g])
            k = 1 if g < len(rd) else 2
            r += dm[j:j+k]; j += k
        return r + dm[j:]
    PL = 4
    SIG, POLL, CHK = DEPTH, 16 - DEPTH - 1, 14
    for s in range(16):
        o += [W("vm", f"d{s}"), W("lg", "fr")]
        if s == CHK: o += [W("vm", "poll")]
        o += L("s_barrier")
        if s == 0: o += st("g0")
        dm = loads(s + DEPTH) if s + DEPTH < 16 else []
        ex = []
        if s == SIG:
            ex = L(f"""
            s_lshl_b32 s{t0}, s{sC}, 7
            s_add_u32 s{t0}, s{t0}, {WS_FL3}
            s_lshl_b32 s{t2}, s{sJ}, 2
            s_add_u32 s{t2}, s{t2}, s{t0}
            s_cmp_eq_u32 s{sW}, 0
            s_cselect_b32 s{t1}, 1, 0
            v_mov_b32 v4, s{sT}
            v_cmp_gt_u32 vcc, s{t1}, v{vL}
            v_cndmask_b32 v5, 2.0, v{vL}, vcc
            """) + L(f"buffer_store_dword v4, v5, s[{WS}:{WS+3}], s{t2} offen sc1", tag="fl") + L(f"v_lshlrev_b32 v6, 2, v{vN}")
        if s == POLL:
            dm = L(f"buffer_load_dword v{PL}, v6, s[{WS}:{WS+3}], s{t0} offen sc1", tag="poll") + dm
        if s == CHK:
            o += L(f"""
            s_mov_b32 s{t1}, 0
            K2_POLL:
            v_cmp_ne_u32 vcc, s{sT}, v{PL}
            s_cbranch_vccz K2_POLL_OK
            s_sleep 2
            """)
            o += L(f"""
            buffer_load_dword v{PL}, v6, s[{WS}:{WS+3}], s{t0} offen sc1
            s_add_u32 s{t1}, s{t1}, 1
            s_cmp_lt_u32 s{t1}, {SPIN}
            s_waitcnt vmcnt(0)
            s_cbranch_scc1 K2_POLL
            """, maybe=True)
            o += L("K2_POLL_OK:")
            ex = L(f"""
            s_lshl_b32 s{t0}, s{sC}, 4
            s_add_u32 s{t0}, s{t0}, s{sJ}
            s_lshl_b32 s{t0}, s{t0}, 14
            s_add_u32 s{t0}, s{t0}, s{sM0}
            s_add_u32 s{t0}, s{t0}, {WS_COMB}
            s_lshl_b32 s{t1}, s{sC}, 2
            s_add_u32 s{t1}, s{t1}, s{sW}
            s_lshl_b32 s{t1}, s{t1}, 7
            s_add_u32 s{t1}, s{t1}, {WS_OMG}
            v_lshlrev_b32 v7, 5, v{vQ}
            """)
            for i in range(4):
                ex += L(f"buffer_load_dwordx4 {vr(CB+4*i,4)}, v{vL16}, s[{WS}:{WS+3}], s{t0} offen offset:{1024*i} sc1", tag="cb")
            for h in range(2):
                ex += L(f"buffer_load_dwordx4 {vr(OM+4*h,4)}, v7, s[{WS}:{WS+3}], s{t1} offen offset:{16*h} sc1", tag="cb")
        allx = dm + ex
        for kap in range(4):
            part = allx[kap*len(allx)//4:(kap+1)*len(allx)//4]
            if kap > 0: o += [W("lg", "fr")]
            if s == 0 and kap == 0: o += reads(0, 0) + part
            else: o += half(mfmas(s, kap - 1) if kap else mfmas(s - 1, 3), reads(s, kap), part)
    o += [W("lg", "fr")]
    ex = L(f"""
    s_lshl_b32 s{t0}, s{sC}, 7
    s_and_b32 s{t1}, s{sW}, 1
    s_lshl_b32 s{t1}, s{t1}, 6
    s_add_u32 s{t0}, s{t0}, s{t1}
    s_lshr_b32 s{t1}, s{sW}, 1
    s_lshl_b32 s{t1}, s{t1}, 4
    s_add_u32 s{t0}, s{t0}, s{t1}
    s_lshl_b32 s{t0}, s{t0}, 12
    s_lshl_b32 s{t1}, s{sJ}, 8
    s_add_u32 s{t0}, s{t0}, s{t1}
    v_lshlrev_b32 v4, 14, v{vQ}
    v_lshl_add_u32 v4, v{vN}, 4, v4
    """)
    o += half(mfmas(15, 3), [], ex)
    o += st("g2")
    o += [W("vm", "cb")]
    for i in range(4):
        for tau in range(2):
            d = CU + (i*2 + tau)*4
            for h in range(2):
                o += L(f"v_lshlrev_b32 v{d+2*h}, 16, v{CB+4*i+2*tau+h}\n v_and_b32 v{d+2*h+1}, 0xffff0000, v{CB+4*i+2*tau+h}")
            for jt in range(4):
                o += L(f"v_fmac_f32 v{d+jt}, v{acc(tau,jt)+i}, v{OM+2*i+tau}")
            o += L(f"s_add_u32 s{t1}, s{t0}, {(32*tau + i)*4096}") if (tau or i) else L(f"s_mov_b32 s{t1}, s{t0}")
            o += L(f"buffer_store_dwordx4 {vr(d,4)}, v4, s[{OUT_}:{OUT_+3}], s{t1} offen", tag="ost")
    o += st("ost")
    if diag:
        o += L("s_waitcnt vmcnt(0)") + st("drain") + st.real("rt1") + st.dump(WS, sW, 1)
    o += L("K2_END:\n s_endpgm\n K2_CODE_END:")
    return dict(name="k2_kernel", body=finish(o), grid=256, block=256, lds=163840, vgpr=256, agpr=(DEPTH+1)*32, sgpr=100), st.names

if __name__ == "__main__":
    diag = "--diag" in sys.argv
    k1, n1 = kernel1(diag)
    k2, n2 = kernel2(diag)
    ks = [k1, k2]
    out = [a for a in sys.argv[1:] if not a.startswith("--")]
    txt = build_file(ks, extra_comments=["stamps k1: " + " ".join(n1), "stamps k2: " + " ".join(n2)] if diag else [])
    open(out[0] if out else "k.s", "w").write(txt)
```

```python
import re, subprocess, struct

def vr(a, n=1): return f"v{a}" if n == 1 else f"v[{a}:{a+n-1}]"
def ar(a, n=1): return f"a{a}" if n == 1 else f"a[{a}:{a+n-1}]"
def sr(a, n=1): return f"s{a}" if n == 1 else f"s[{a}:{a+n-1}]"
def fbits(x): return "0x%08x" % struct.unpack("<I", struct.pack("<f", x))[0]

class I:
    __slots__ = ("t", "tag", "maybe")
    def __init__(self, t, tag=None, maybe=False):
        self.t = t; self.tag = tag; self.maybe = maybe
    def __repr__(self): return self.t

def W(kind, tag):
    return I(f"@wait {kind} {tag}")

def L(text, tag=None, maybe=False):
    out = []
    for line in text.split("\n"):
        line = line.split(";")[0].strip()
        if line: out.append(I(line, tag, maybe))
    return out

_REG = re.compile(r"^(-|\|)?(?:abs\()?([vas])(?:(\d+)|\[(\d+):(\d+)\])\)?\|?$")
def regs(op):
    op = op.strip()
    if op in ("vcc",): return {("s", 106), ("s", 107)}
    if op == "vcc_lo": return {("s", 106)}
    if op == "vcc_hi": return {("s", 107)}
    if op == "m0": return {("s", 124)}
    if op == "exec": return {("s", 126), ("s", 127)}
    m = _REG.match(op)
    if not m: return set()
    k = m.group(2)
    if m.group(3) is not None: return {(k, int(m.group(3)))}
    return {(k, i) for i in range(int(m.group(4)), int(m.group(5)) + 1)}

TRANS = ("v_exp_f32", "v_log_f32", "v_rcp_f32", "v_rsq_f32", "v_sqrt_f32", "v_sin_f32", "v_cos_f32")
class P:
    def __init__(self, t):
        self.t = t
        sp = t.split(None, 1)
        mn = self.mn = sp[0]
        rest = sp[1] if len(sp) > 1 else ""
        ops = [o.strip() for o in rest.split(",")] if rest else []
        fixed = []; depth = 0
        for o in ops:
            if depth > 0: fixed[-1] += "," + o
            else: fixed.append(o)
            depth += o.count("[") - o.count("]")
        self.mods = ""
        if fixed:
            last = fixed[-1].split(None, 1)
            fixed[-1] = last[0]; self.mods = last[1] if len(last) > 1 else ""
        self.ops = fixed
        R = [regs(o) for o in fixed]
        U = lambda xs: set().union(*xs) if xs else set()
        self.d = set(); self.s = set(); self.ab = set(); self.c = set(); self.cls = "other"; self.passes = 0
        if mn.startswith("v_mfma"):
            self.cls = "mfma"; self.d = R[0]; self.ab = R[1] | R[2]; self.c = R[3]; self.s = self.ab | self.c
            self.passes = 8 if "32x32" in mn else 4
        elif mn.startswith("v_"):
            self.cls = "valu"
            if "swap" in mn: self.d = U(R); self.s = U(R)
            elif mn == "v_nop": pass
            else:
                self.d = R[0]; self.s = U(R[1:])
                if mn.startswith(("v_fmac", "v_pk_fmac", "v_dot2c", "v_writelane")) or ("dpp" in mn) : self.s |= R[0]
        elif mn.startswith(("buffer_", "global_")):
            self.cls = "vmem"
            lds = " lds" in (" " + self.mods) or "_lds_" in mn
            if "load" in mn and not lds: self.d = R[0]; self.s = U(R[1:])
            else: self.s = U(R)
            if lds: self.s |= {("s", 124)}
            self.lds = lds
            self.wide_store = ("store" in mn) and ("x3" in mn or "x4" in mn)
            if self.wide_store: self.sdata = R[0] if mn.startswith("buffer_") else R[1]
        elif mn.startswith("ds_"):
            self.cls = "ds"
            if mn.startswith(("ds_read", "ds_bpermute", "ds_permute", "ds_swizzle")): self.d = R[0]; self.s = U(R[1:])
            else: self.s = U(R)
        elif mn.startswith("s_"):
            self.cls = "salu"
            if mn.startswith(("s_load", "s_memtime", "s_memrealtime")): self.cls = "smem"
            if mn.startswith(("s_cmp", "s_waitcnt", "s_barrier", "s_nop", "s_cbranch", "s_branch", "s_endpgm", "s_sleep", "s_setprio", "s_bitcmp")):
                self.s = U(R)
            else:
                self.d = R[0] if R else set(); self.s = U(R[1:])
                if "saveexec" in mn: self.d |= regs("exec")
        self.trans = mn.replace("_e32", "").replace("_e64", "") in TRANS
        self.dpp = any(k in self.mods for k in ("quad_perm", "row_", "wave_", "dpp"))
        self.dot = mn.startswith("v_dot")
        self.states = int(fixed[0], 0) + 1 if mn == "s_nop" else 1

def need(p, c):
    n = 0
    V = lambda s: {r for r in s if r[0] in "va"}
    S = lambda s: {r for r in s if r[0] == "s"}
    if p.cls == "valu":
        vd = V(p.d); sd = S(p.d)
        if c.cls == "mfma" and vd & c.s: n = max(n, 2)
        if c.cls == "valu":
            if p.trans and vd & c.s: n = max(n, 1)
            if c.mn.startswith(("v_readlane", "v_readfirstlane")) and vd & c.s: n = max(n, 1)
            if (c.dpp or c.mn.startswith("v_permlane")) and vd & c.s: n = max(n, 2)
            if sd & c.s: n = max(n, 4 if c.mn.startswith(("v_readlane", "v_writelane")) else 2)
            if p.dot and vd & (c.s | c.d):
                if not (c.mn == p.mn and not (vd & (regs(c.ops[1]) | regs(c.ops[2])))): n = max(n, 3)
        if p.trans and c.cls in ("vmem", "ds") and vd & c.s: n = max(n, 1)
        if p.dot and c.cls in ("vmem", "ds", "mfma") and vd & c.s: n = max(n, 3)
        if c.cls == "vmem" and sd & c.s: n = max(n, 5)
        if c.cls in ("salu", "smem") and sd & c.s: n = max(n, 1)
        if c.mn.startswith("s_cbranch_vcc") and sd & regs("vcc"): n = max(n, 1)
    if p.cls == "mfma":
        k = {4: (6, 8, 3), 8: (10, 12, 7)}[p.passes]
        if c.cls == "mfma":
            if p.d & c.ab: n = max(n, k[1])
            if p.d & c.c and not (p.d == c.c and p.passes == c.passes): n = max(n, k[0])
            if p.d & c.d and not (p.d == c.c): n = max(n, k[0])
        elif c.cls in ("valu", "vmem", "ds"):
            if p.d & (c.s | c.d): n = max(n, k[1])
            if c.cls == "valu" and p.c & c.d: n = max(n, k[2])
    if p.cls == "salu" and ("s", 124) in p.d and c.cls == "vmem" and getattr(c, "lds", False): n = max(n, 1)
    if p.cls == "vmem" and getattr(p, "wide_store", False) and p.sdata & c.d: n = max(n, 2)
    return n

def resolve_waits(ins):
    out = []; vm = []; lg = []
    def emit(kind, n):
        name = "vmcnt" if kind == "vm" else "lgkmcnt"
        if out and out[-1].t.startswith("s_waitcnt") and name not in out[-1].t:
            out[-1] = I(out[-1].t + f" {name}({n})")
        elif out and out[-1].t.startswith("s_waitcnt") and name in out[-1].t:
            old = int(re.search(name + r"\((\d+)\)", out[-1].t).group(1))
            out[-1] = I(re.sub(name + r"\(\d+\)", f"{name}({min(old, n)})", out[-1].t))
        else: out.append(I(f"s_waitcnt {name}({n})"))
    for x in ins:
        t = x.t
        if t.startswith("@wait"):
            _, kind, tag = t.split()
            q = vm if kind == "vm" else lg
            idx = [i for i, e in enumerate(q) if e[0] == tag or tag == "*"]
            if not idx: continue
            last = idx[-1]
            n = sum(1 for e in q[last + 1:] if not e[1])
            if kind == "lg" and any(e[2] for e in q): n = 0
            cap = 63 if kind == "vm" else 15
            n = min(n, cap)
            emit(kind, n)
            if n == 0: del q[:]
            else: del q[:last + 1]
            continue
        mn = t.split()[0]
        if mn.startswith(("buffer_", "global_")): vm.append((x.tag, x.maybe, False))
        elif mn.startswith("ds_"): lg.append((x.tag, x.maybe, False))
        elif mn.startswith(("s_load", "s_memtime", "s_memrealtime")): lg.append((x.tag, x.maybe, True))
        elif mn == "s_waitcnt" and not x.maybe:
            if "vmcnt(0)" in t: del vm[:]
            if "lgkmcnt(0)" in t: del lg[:]
        out.append(x)
    return out

def pad_hazards(ins):
    out = []; hist = []
    nn = 0
    for x in ins:
        t = x.t
        if t.endswith(":") or t.startswith("."):
            out.append(x); continue
        c = P(t)
        dist = 0; req = 0
        for p in reversed(hist):
            if dist >= 13: break
            r = need(p, c) - dist
            if r > req: req = r
            dist += p.states
        if req > 0:
            nop = I(f"s_nop {req-1}"); out.append(nop); hist.append(P(nop.t)); nn += 1
        out.append(x); hist.append(c)
        if len(hist) > 40: del hist[:20]
    return out

def sizes(ins):
    src = "\n".join(x.t for x in ins) + "\n"
    r = subprocess.run(["llvm-mc", "-triple=amdgcn-amd-amdhsa", "-mcpu=gfx950", "-show-encoding"], input=src, capture_output=True, text=True)
    if r.returncode:
        lines = src.split("\n")
        msg = r.stderr[:3000]
        raise SystemExit("assembly error:\n" + msg)
    enc = [l for l in r.stdout.split("\n") if "encoding:" in l]
    sz = [len(re.search(r"encoding: \[(.*?)\]", l).group(1).split(",")) for l in enc]
    names = [l.split()[0] for l in enc]
    return sz, names

def align8(ins, minrun=4):
    real = [i for i, x in enumerate(ins) if not (x.t.endswith(":") or x.t.startswith("."))]
    sz, names = sizes(ins)
    assert len(sz) == len(real), (len(sz), len(real))
    out = list(ins); inserts = []
    off = 0; k = 0; n = len(real)
    last4 = None
    while k < n:
        if sz[k] % 8 == 4:
            off ^= 4
            ok = sz[k] == 4 and names[k].endswith("_e32") and not names[k].startswith(("v_readfirstlane", "v_accvgpr", "v_permlane", "v_swap", "v_fmac", "v_nop"))
            last4 = k if ok else None
            k += 1; continue
        run = 0
        while k + run < n and sz[k + run] % 8 == 0: run += 1
        if off:
            if last4 is not None and last4 == k - 1:
                t = out[real[last4]].t.split(None, 1)
                mn = t[0].replace("_e32", "") + "_e64"
                o = out[real[last4]]
                out[real[last4]] = I(mn + " " + t[1], o.tag, o.maybe); off = 0
            elif run >= minrun:
                inserts.append(real[k]); off = 0
        k += run; last4 = None
    for i in reversed(inserts): out.insert(i, I("s_nop 0"))
    return out

def finish(ins, align=True):
    ins = resolve_waits(ins)
    ins = pad_hazards(ins)
    if align: ins = align8(ins)
    return "\n".join((x.t if x.t.endswith(":") else "    " + x.t) for x in ins) + "\n"

def weave(main, fill, per=None, start=0):
    out = []; n = len(main); m = len(fill); j = 0
    for i, x in enumerate(main):
        out.append(x)
        if per is None: tgt = (i + 1) * m // n
        else: tgt = m if i == n - 1 else min(m, max(0, (i + 1 - start)) * per)
        while j < tgt:
            out.append(fill[j]); j += 1
    return out

def zip2(a, b):
    out = []
    for i in range(max(len(a), len(b))):
        if i < len(a): out.append(a[i])
        if i < len(b): out.append(b[i])
    return out
```

```python
import sys, os
sys.path.insert(0, os.path.dirname(os.path.abspath(__file__)))
from kb import *
from asmlib import build_file, header_comments
from gen import pk, cmul1, srd, sincos, perm, wg_decode, MF, HASH_A, HASH_B, SPIN

KNAME = "gated_mix__spectral_gfnet__ssm_conv_s5__prompt_kernel"
ZS = 32768
YS = 16384
WS_Z = 0
WS_WT = 16384
WS_Y = 9 << 20
WS_COMB = 13 << 20
WS_PART = 17 << 20
WS_AGG = 21 << 20
WS_OMG = WS_AGG + (256 << 10)
WS_FL1 = WS_OMG + (16 << 10)
WS_FL2 = WS_FL1 + 4096
WS_FL3 = WS_FL2 + 4096
WS_FL4 = WS_FL3 + 4096
WS_NONCE = WS_FL4 + 4096
WS_STAMP = 22 << 20
WS_HDBG = 24 << 20
WS_SIZE = 32 << 20

class Stamps:
    def __init__(self, on, reg): self.on = on; self.reg = reg; self.names = []
    def _s(self, name, op):
        if not self.on: return []
        n = len(self.names); self.names.append(name); assert n < 64
        return L(f"{op} s[64:65]", tag="stamp") + [W("lg", "*")] + L(f"v_writelane_b32 v{self.reg}, s64, {n}")
    def __call__(self, name): return self._s(name, "s_memtime")
    def real(self, name): return self._s(name, "s_memrealtime")

def scout(ng, lead):
    T = []; nb = 16 // ng
    for g in range(ng):
        o = [g]
        for b in range(nb):
            hits = [ng * b + (g + k) % ng for k in range(1, ng)]
            if b + 1 < nb: hits.insert(min(len(hits), lead(g)), ng * (b + 1) + g)
            o += hits
        T.append(o)
    return T

def spread(main, *streams):
    n = len(main); out = []; st = []
    for s in streams:
        if isinstance(s, tuple): st.append([s[0], s[1], min(s[2], n - 1), 0])
        else: st.append([s, 0, n - 1, 0])
    for g, x in enumerate(main):
        out.append(x)
        for s in st:
            lst, a, b, j = s
            if g < a: continue
            tgt = len(lst) if g >= b else -(-(g - a + 1) * len(lst) // (b - a + 1))
            out += lst[j:tgt]; s[3] = max(j, tgt)
    return out

def take(lst, n):
    r = lst[:n]; del lst[:n]; return r

def kernel(diag=False, hdbg=False, P=None):
    P = dict(dict(zit=13, nsend0=2, touch="mid", local=False), **(P or {}))
    o = []
    vST = 31
    st = Stamps(diag, vST)
    X, BS, WR, WI, WS, TMPS = 8, 12, 16, 20, 24, 28
    CS, OUT_ = 16, 20
    sC, sJ, sW, sT, sK, sM0 = 32, 33, 34, 35, 36, 37
    t0, t1, t2, t3 = 38, 39, 40, 41
    sCW = 42
    sN, sKT = 62, 66
    u0, u1, u2, u3 = 68, 69, 70, 71
    sCK, sCM, sA = 72, 73, 74
    f0, f1 = 76, 77
    SCR = 131072
    HB = WS_HDBG if hdbg else WS_Z
    vL, vN, vQ, vL16 = 0, 1, 2, 3
    vDA, vDB = 16, 20
    vRA, vRB = 24, 26
    ACC = 32
    TWF, TWI = 96, 112
    LAM, COEF, L16, L32, L128, L32Q, L512Q = 128, 130, 132, 134, 136, 138, 140
    SA_R, SA_I, PFX = 142, 144, 146
    vRH = 148
    WU = 152
    WK = 184
    aFC, aF1, aGC, aFR, aSV, aTW, aS, aFA = 0, 32, 40, 72, 152, 160, 176, 224
    acc = lambda tau, part: ACC + (tau * 2 + part) * 4
    wsr = f"s[{WS}:{WS+3}]"

    def signal(addr_sreg, tag, flags="sc1", va=28, vb=29):
        return L(f"""
        s_cmp_eq_u32 s{sW}, 0
        s_cselect_b32 s{u3}, 1, 0
        v_mov_b32 v{va}, s{sT}
        v_cmp_gt_u32 vcc, s{u3}, v{vL}
        v_cndmask_b32 v{vb}, 2.0, v{vL}, vcc
        """) + L(f"buffer_store_dword v{va}, v{vb}, {wsr}, s{addr_sreg} offen {flags}", tag=tag)

    def poll_check(name, reg, n, load):
        r = L(f"s_mov_b32 s{u3}, 0\n {name}:")
        if n == 1: r += L(f"v_cmp_ne_u32 vcc, s{sT}, v{reg}")
        else:
            for k in range(4): r += L(f"v_xor_b32 v{reg+k}, s{sT}, v{reg+k}")
            r += L(f"v_or3_b32 v{reg}, v{reg}, v{reg+1}, v{reg+2}\n v_or_b32 v{reg}, v{reg}, v{reg+3}\n v_cmp_ne_u32 vcc, 0, v{reg}")
        r += L(f"s_cbranch_vccz {name}_OK")
        r += L(f"{load}\n s_add_u32 s{u3}, s{u3}, 1\n s_cmp_lt_u32 s{u3}, {SPIN}\n s_waitcnt vmcnt(0)\n s_cbranch_scc1 {name}", maybe=True)
        return r + L(f"{name}_OK:")

    o += L("s_cmp_ge_u32 s2, 256\n s_cbranch_scc1 K_END")
    o += L("""
    s_load_dwordx4 s[44:47], s[0:1], 0
    s_load_dwordx8 s[52:59], s[0:1], 32
    s_load_dwordx2 s[48:49], s[0:1], 16
    s_load_dwordx2 s[60:61], s[0:1], 120
    s_load_dwordx8 s[80:87], s[0:1], 64
    s_load_dwordx4 s[88:91], s[0:1], 96
    """, tag="ka")
    o += L(f"""
    v_lshrrev_b32 v3, 6, v0
    v_and_b32 v{vL}, 63, v0
    v_readfirstlane_b32 s{sW}, v3
    v_and_b32 v{vN}, 15, v{vL}
    v_lshrrev_b32 v{vQ}, 4, v{vL}
    v_lshlrev_b32 v{vL16}, 4, v{vL}
    """)
    o += wg_decode(sC, sJ, t0, t1)
    o += L(f"""
    s_getpc_b64 s[{TMPS}:{TMPS+1}]
    K_PC:
    s_mov_b32 s{TMPS+2}, K_CODE_END-K_PC
    s_mov_b32 s{TMPS+3}, 0x00020000
    s_bfe_u32 s{t0}, s2, 0x30003
    s_lshl_b32 s{t0}, s{t0}, 2
    s_add_u32 s{t0}, s{t0}, s{sW}
    s_lshl_b32 s{t0}, s{t0}, 11
    v_lshl_add_u32 v4, v{vN}, 7, s{t0}
    v_cmp_gt_u32 vcc, 16, v{vL}
    v_cndmask_b32 v4, 2.0, v4, vcc
    """)
    o += L(f"buffer_load_dword v255, v4, s[{TMPS}:{TMPS+3}], 0 offen", tag="pf")
    o += L(f"""
    v_lshrrev_b32 v5, 2, v{vN}
    v_lshlrev_b32 v5, 1, v5
    v_and_b32 v6, 1, v{vN}
    v_bfe_u32 v7, v{vN}, 1, 1
    v_lshl_add_u32 v5, v7, 3, v5
    v_add_u32 v4, v5, v6
    v_lshlrev_b32 v5, 9, v{vQ}
    v_lshl_add_u32 v30, v{vN}, 3, v5
    v_lshl_add_u32 v5, v4, 2, v5
    s_lshl_b32 s{u0}, s{sC}, 7
    s_and_b32 s{t1}, s{sW}, 1
    s_lshl_b32 s{t1}, s{t1}, 6
    s_add_u32 s{u0}, s{u0}, s{t1}
    s_lshl_b32 s{t1}, s{sJ}, 1
    s_add_u32 s{u0}, s{u0}, s{t1}
    s_lshr_b32 s{t1}, s{sW}, 1
    s_add_u32 s{u0}, s{u0}, s{t1}
    s_lshl_b32 s{u0}, s{u0}, 11
    s_add_u32 s{u1}, s{u0}, 65536
    """)
    o += L(f"""
    s_lshl_b32 s{sM0}, s{sW}, 12
    v_and_b32 v6, 7, v{vL}
    v_xor_b32 v6, v6, v{vQ}
    v_lshlrev_b32 v6, 4, v6
    v_xor_b32 v7, 64, v6
    v_lshrrev_b32 v8, 5, v{vL}
    v_lshlrev_b32 v8, 5, v8
    v_bfe_u32 v9, v{vL}, 3, 1
    v_lshl_add_u32 v8, v9, 4, v8
    v_bfe_u32 v9, v{vL}, 4, 1
    v_add_u32 v8, v8, v9
    s_lshl_b32 s{t0}, s{sC}, 7
    s_lshl_b32 s{t1}, s{sW}, 2
    s_add_u32 s{t0}, s{t0}, s{t1}
    v_add_u32 v8, s{t0}, v8
    v_lshrrev_b32 v9, 3, v{vL}
    s_lshl_b32 s{t0}, s{sJ}, 6
    s_and_b32 s{t1}, s{sW}, 1
    s_lshl_b32 s{t1}, s{t1}, 5
    s_add_u32 s{t0}, s{t0}, s{t1}
    v_add_u32 v9, s{t0}, v9
    """)
    for jj in range(4):
        o += L(f"""
        v_add_u32 v10, {64*(jj&1) + 2*(jj>>1)}, v8
        v_lshl_add_u32 v{vDA+jj}, v10, 11, v{6+(jj&1)}
        v_add_u32 v10, {8*jj}, v9
        v_lshl_add_u32 v{vDB+jj}, v10, 11, v{6+(jj&1)}
        """)
    tabs = scout(4, lambda g: g)
    o += L(f"s_add_u32 s{t0}, s{sC}, s{sJ}\n s_and_b32 s{t0}, s{t0}, 3")
    for g, t in enumerate(tabs):
        lo = sum(t[k] << (4 * k) for k in range(8)); hi = sum(t[8 + k] << (4 * k) for k in range(8))
        if g == 0: o += L(f"s_mov_b32 s{sKT}, {lo}\n s_mov_b32 s{sKT+1}, {hi}")
        else: o += L(f"s_cmp_eq_u32 s{t0}, {g}\n s_cselect_b32 s{sKT}, {lo}, s{sKT}\n s_cselect_b32 s{sKT+1}, {hi}, s{sKT+1}")
    o += [W("lg", "ka")]
    o += st.real("rt0") + st("start")
    o += L(f"s_add_u32 s{t2}, s60, {WS_NONCE}\n s_addc_u32 s{t3}, s61, 0") + L(f"s_load_dword s{sN}, s[{t2}:{t3}], 0", tag="nonce")
    o += srd(X, 44, 45, 0x400000)
    XIN = WK
    for e in range(2):
        for tau in range(2):
            for r in range(4):
                o += L(f"buffer_load_dword v{XIN + e*8 + tau*4 + r}, v5, s[{X}:{X+3}], s{u0+e} offen offset:{128*r + 64*tau}", tag=f"x{e}")
    o += L(f"""
    s_cmp_lt_u32 s{sW}, 2
    s_cselect_b32 s{BS}, s56, s58
    s_cselect_b32 s{BS+1}, s57, s59
    s_mov_b32 s{BS+2}, 0x200000
    s_mov_b32 s{BS+3}, 0x00020000
    """)
    def dma(stage):
        slot = stage % 4
        r = L(f"s_bfe_u32 s{sK}, s{sKT + (stage >> 3)}, {0x40000 | (4 * (stage & 7))}\n s_lshl_b32 s{sK}, s{sK}, 7")
        for jj in range(4):
            r += L(f"s_add_u32 m0, s{sM0}, {slot*32768 + jj*1024}")
            r += L(f"buffer_load_dwordx4 v{vDA+jj}, s[{X}:{X+3}], s{sK} offen lds", tag=f"d{stage}")
        for jj in range(4):
            r += L(f"s_add_u32 m0, s{sM0}, {slot*32768 + 16384 + jj*1024}")
            r += L(f"buffer_load_dwordx4 v{vDB+jj}, s[{BS}:{BS+3}], s{sK} offen lds", tag=f"d{stage}")
        return r
    TWR = 232
    c_, s_, an = 10, 11, 12
    k0 = L(f"v_cvt_f32_u32 v6, v{vN}\n v_cvt_f32_u32 v7, v{vQ}\n v_cvt_f32_u32 v8, v4")
    k0 += L(f"v_mul_f32 v9, {fbits(1/16)}, v6\n v_mul_f32 v15, 4.0, v7\n v_mul_f32 v15, v15, v9")
    for r in range(4):
        k0 += L(f"v_fmamk_f32 v{an}, v9, {fbits(r)}, v15") + sincos(an, c_, s_)
        k0 += L(f"v_cvt_pk_bf16_f32 v13, v{c_}, v{s_}\n v_cvt_pk_bf16_f32 v14, -v{s_}, v{c_}\n v_accvgpr_write_b32 a{aF1+r}, v13\n v_accvgpr_write_b32 a{aF1+4+r}, v14")
    k0 += L(f"v_mul_f32 v9, {fbits(1/512)}, v6\n v_add_f32 v15, v7, v7\n v_mul_f32 v15, v15, v9")
    for tau in range(2):
        for i in range(4):
            k0 += L(f"v_fmamk_f32 v{an}, v9, {fbits(16*tau + 8*(i>>1) + (i&1))}, v15") + sincos(an, TWR + tau*4 + i, TWR + 8 + tau*4 + i)
    fc = lambda mu, tau, part: aFC + ((mu * 2 + tau) * 2 + part) * 4
    k0 += L(f"""
    v_mul_f32 v9, {fbits(1/32)}, v8
    v_add_f32 v15, v7, v7
    v_mul_f32 v15, v15, v9
    v_and_b32 v248, 1, v{vN}
    v_mul_u32_u24 v248, 0x8000, v248
    v_lshl_or_b32 v248, v248, 16, v248
    """)
    for r in range(4):
        k0 += L(f"v_fmamk_f32 v{an}, v9, {fbits(8*(r>>1) + (r&1))}, v15") + sincos(an, c_, s_)
        for part in range(2):
            a_, b_ = (f"v{c_}", f"v{s_}") if part == 0 else (f"-v{s_}", f"v{c_}")
            k0 += L(f"v_cvt_pk_bf16_f32 v13, {a_}, {b_}\n v_xor_b32 v14, v248, v13")
            k0 += L(f"v_accvgpr_write_b32 a{fc(0,0,part)+r}, v13\n v_accvgpr_write_b32 a{fc(0,1,part)+r}, v14")
            if r & 1: k0 += L(f"v_xor_b32 v13, 0x80008000, v13\n v_xor_b32 v14, 0x80008000, v14")
            k0 += L(f"v_accvgpr_write_b32 a{fc(1,0,part)+r}, v13\n v_accvgpr_write_b32 a{fc(1,1,part)+r}, v14")
    o += spread(k0, (dma(0), 0, 40))
    o += L(f"v_mov_b32 v249, v6\n v_mov_b32 v250, v7\n v_mov_b32 v251, v8")
    WRAW = 208
    o += srd(WR, 46, 47, 2048 * 1026) + srd(WI, 48, 49, 2048 * 1026) + srd(WS, 60, 61, WS_SIZE)
    o += L(f"""
    s_lshr_b32 s{t0}, s2, 6
    s_lshl_b32 s{t0}, s{t0}, 4
    s_and_b32 s{t1}, s2, 3
    s_lshl_b32 s{t1}, s{t1}, 2
    s_add_u32 s{t0}, s{t0}, s{t1}
    s_bfe_u32 s{t1}, s2, 0x40002
    s_lshl_b32 s{t1}, s{t1}, 7
    s_add_u32 s{t0}, s{t0}, s{t1}
    v_and_b32 v6, 3, v{vL}
    v_add_u32 v6, s{t0}, v6
    v_lshrrev_b32 v7, 2, v{vL}
    s_lshl_b32 s{t1}, s{sW}, 4
    v_add_u32 v7, s{t1}, v7
    s_movk_i32 s{t2}, 1026
    v_mul_u32_u24 v8, s{t2}, v6
    v_lshl_add_u32 v9, v7, 3, v8
    v_sub_u32 v10, 2048, v6
    v_and_b32 v11, 2047, v10
    v_subrev_u32 v10, 64, v10
    v_lshlrev_b32 v12, 3, v7
    v_sub_u32 v12, 1018, v12
    v_mad_u32_u24 v11, v11, s{t2}, v12
    v_mad_u32_u24 v10, v10, s{t2}, v12
    s_mov_b32 s{u2}, {64*1026}
    v_add_u32 v8, 512, v8
    v_cmp_eq_u32 vcc, 0, v7
    v_cndmask_b32 v8, 2.0, v8, vcc
    v_and_b32 v12, 3, v{vL}
    v_lshlrev_b32 v12, 4, v12
    s_mov_b32 s{t2}, {4*ZS}
    v_mad_u32_u24 v13, v7, s{t2}, v12
    v_add_u32 v14, {256*ZS}, v12
    v_cndmask_b32 v14, 2.0, v14, vcc
    """)
    wl = []
    for ii in range(2):
        so = "0" if ii == 0 else f"s{u2}"; up = 11 - ii
        wl += L(f"""
        buffer_load_dwordx2 {vr(WRAW + ii*8 + 0, 2)}, v9, s[{WR}:{WR+3}], {so} offen
        buffer_load_dwordx2 {vr(WRAW + ii*8 + 2, 2)}, v9, s[{WI}:{WI+3}], {so} offen
        buffer_load_dwordx2 {vr(WRAW + ii*8 + 4, 2)}, v{up}, s[{WR}:{WR+3}], 0 offen
        buffer_load_dwordx2 {vr(WRAW + ii*8 + 6, 2)}, v{up}, s[{WI}:{WI+3}], 0 offen
        buffer_load_ushort v{WRAW + 16 + 2*ii}, v8, s[{WR}:{WR+3}], {so} offen
        buffer_load_ushort v{WRAW + 17 + 2*ii}, v8, s[{WI}:{WI+3}], {so} offen
        """, tag="w")
    k1 = L(f"""
    v_lshrrev_b32 v15, 1, v{vN}
    v_xor_b32 v15, v15, v{vQ}
    v_lshlrev_b32 v15, 4, v15
    v_lshl_add_u32 v{vRA}, v{vN}, 7, v15
    v_xor_b32 v{vRA+1}, 64, v{vRA}
    s_lshl_b32 s{t0}, s{sW}, 11
    s_add_u32 s{t0}, s{t0}, 16384
    v_add_u32 v{vRB}, s{t0}, v{vRA}
    v_add_u32 v{vRB+1}, s{t0}, v{vRA+1}
    """)
    for k in range(4): k1 += L(f"v_add_u32 v{vRH+k}, 0x10000, v{vRA+k}")
    k1 += L(f"""
    s_lshr_b32 s{t0}, s{sW}, 1
    s_lshl_b32 s{t0}, s{t0}, 2
    s_and_b32 s{t1}, s{sW}, 1
    s_add_u32 s{t0}, s{t0}, s{t1}
    s_mul_i32 s{t0}, s{t0}, 2080
    s_add_u32 s{t0}, s{t0}, {SCR}
    v_lshl_add_u32 v15, v{vQ}, 5, v{vN}
    v_lshl_add_u32 v252, v15, 3, s{t0}
    v_sub_u32 v15, 112, v15
    s_add_u32 s{t0}, s{t0}, {2*2080}
    v_lshl_add_u32 v253, v15, 3, s{t0}
    v_and_b32 v15, 3, v{vL}
    v_mul_u32_u24 v229, 4160, v15
    v_lshl_add_u32 v229, v7, 3, v229
    v_add_u32 v229, {SCR}, v229
    s_mov_b32 s{t2}, {ZS}
    v_mad_u32_u24 v230, v7, s{t2}, v12
    v_and_b32 v15, 1, v15
    v_lshlrev_b32 v15, 11, v15
    v_cndmask_b32 v15, 0, v15, vcc
    v_add_u32 v228, v229, v15
    """)
    o += k1
    o += st("consts")
    D1, TP, D2, OUT = ACC, 152, ACC + 32, 168
    d1 = lambda e, tau, part: D1 + ((e*2 + tau)*2 + part)*4
    d2 = lambda e, mu, part: D2 + ((e*2 + mu)*2 + part)*4
    rf = []
    for e in range(2):
        rf += [W("vm", f"x{e}")]
        for tau in range(2):
            for part in range(2):
                rf += L(f"{MF} {vr(d1(e,tau,part),4)}, {vr(XIN+e*8+tau*4,4)}, {ar(aF1+4*part,4)}, 0")
    o += rf[:1] + st("xwait") + spread(rf[1:], wl)
    T0 = 200
    rf = []
    for e in range(2):
        for tau in range(2):
            for h in range(2):
                re, im = d1(e,tau,0) + 2*h, d1(e,tau,1) + 2*h
                cs, sn = TWR + tau*4 + 2*h, TWR + 8 + tau*4 + 2*h
                tr, ti = T0 + 4*h, T0 + 4*h + 2
                rf += [pk("mul", tr, re, cs), pk("mul", ti, im, cs), pk("fma", tr, im, sn, tr), pk("fma", ti, re, sn, ti, neg=[1,0,0])]
            for i in range(4):
                rf += L(f"v_cvt_pk_bf16_f32 v{TP+(e*2+tau)*4+i}, v{T0+4*(i>>1)+(i&1)}, v{T0+4*(i>>1)+2+(i&1)}")
    o += rf
    rf = []
    for e in range(2):
        for tau in range(2):
            for mu in range(2):
                for part in range(2):
                    d = vr(d2(e,mu,part),4)
                    rf += L(f"{MF} {d}, {ar(fc(mu,tau,part),4)}, {vr(TP+(e*2+tau)*4,4)}, {'0' if tau == 0 else d}")
    XL, GW, DK, PAR = 96, 112, 120, 142
    xl = []
    for e in range(2):
        for i in range(4):
            xl += L(f"buffer_load_dwordx2 {vr(XL+(e*4+i)*2,2)}, v30, s[{X}:{X+3}], s{u0+e} offen offset:{128*i}", tag="xl")
    for i in range(4):
        xl += L(f"global_load_dwordx2 {vr(GW+2*i,2)}, v30, s[88:89] offset:{128*i}\n global_load_dwordx2 {vr(DK+2*i,2)}, v30, s[86:87] offset:{128*i}", tag="xl")
    xl += L(f"s_lshl_b32 s{t0}, s{sJ}, 6\n s_lshl_b32 s{t1}, s{sW}, 4\n s_add_u32 s{t0}, s{t0}, s{t1}\n v_add_lshl_u32 v15, v{vN}, s{t0}, 1")
    xl += L(f"global_load_ushort v{PAR}, v15, s[52:53]\n global_load_ushort v{PAR+1}, v15, s[54:55]\n global_load_ushort v{PAR+2}, v15, s[84:85]", tag="xl")
    o += spread(rf, xl)
    rf = []
    for mu in range(2):
        for i in range(4):
            for e in range(2):
                rf += L(f"v_cvt_pk_bf16_f32 v{OUT+(mu*4+i)*2+e}, v{d2(e,mu,0)+i}, {'-' if mu else ''}v{d2(e,mu,1)+i}")
            k = 128*(i>>1) + 16*(i&1)
            rf += L(f"ds_write_b64 v{252+mu}, {vr(OUT+(mu*4+i)*2,2)} offset:{8*(k if mu == 0 else 144-k)}", tag="rfw")
    o += spread(rf, dma(1))
    o += [W("lg", "*")] + L("s_barrier")
    ZO = ACC + 16
    for rho in range(4):
        for h in range(2):
            o += L(f"ds_read_b64 {vr(ZO+rho*4+2*h,2)}, v{228 if rho == 0 else 229} offset:{h*2080 + rho*512}", tag=f"rfr{rho}")
    o += L(f"""
    s_lshr_b32 s{t0}, s{sJ}, 2
    s_lshl_b32 s{t0}, s{t0}, 2
    s_lshr_b32 s{t1}, s{sC}, 2
    s_add_u32 s{t0}, s{t0}, s{t1}
    s_lshl_b32 s{t0}, s{t0}, 4
    s_and_b32 s{t1}, s{sC}, 3
    s_lshl_b32 s{t1}, s{t1}, 2
    s_add_u32 s{t0}, s{t0}, s{t1}
    s_and_b32 s{t1}, s{sJ}, 3
    s_add_u32 s{t0}, s{t0}, s{t1}
    s_lshl_b32 s{t0}, s{t0}, 6
    s_mul_i32 s{sT}, s{sN}, {HASH_A}
    s_add_u32 s{sT}, s{sT}, {HASH_B}
    """)
    for rho in range(4):
        o += [W("lg", f"rfr{rho}")]
        o += L(f"buffer_store_dwordx4 {vr(ZO+rho*4,4)}, v230, {wsr}, s{t0} offen sc1", tag="st1")
        if rho < 3: o += L(f"s_add_u32 s{t0}, s{t0}, {64*ZS}")
    o += st("rf")
    WO = ACC
    o += [W("vm", "w")]
    wt = L(f"s_mov_b32 s{t0}, 0x05040100\n s_mov_b32 s{t1}, 0x07060302\n s_lshl_b32 s{t2}, s2, 6\n s_add_u32 s{t2}, s{t2}, {WS_WT}")
    wt += L(f"v_lshl_or_b32 v{WRAW+16}, v{WRAW+17}, 16, v{WRAW+16}\n v_lshl_or_b32 v{WRAW+18}, v{WRAW+19}, 16, v{WRAW+18}")
    wt += L(f"buffer_store_dwordx4 {vr(WRAW+16,4)}, v14, {wsr}, s{t2} offen sc1", tag="st1")
    for m in range(4):
        for ii in range(2):
            b = WRAW + ii*8; mm = 3 - m
            wt += L(f"v_perm_b32 v{WO+m*4+ii*2}, v{b+2+(m>>1)}, v{b+(m>>1)}, s{t0+(m&1)}")
            wt += L(f"v_perm_b32 v{WO+m*4+ii*2+1}, v{b+6+(mm>>1)}, v{b+4+(mm>>1)}, s{t0+(mm&1)}")
        wt += L(f"buffer_store_dwordx4 {vr(WO+m*4,4)}, v13, {wsr}, s{t2} offen sc1", tag="st1")
        if m < 3: wt += L(f"s_add_u32 s{t2}, s{t2}, {ZS}")
    o += wt
    o += st("wt")
    gt = [W("vm", "xl")]
    for k in range(8):
        for e in range(2):
            gt += L(f"v_dot2_f32_bf16 v{10+e}, v{XL+e*8+k}, v{GW+k}, {'0' if k == 0 else 'v%d' % (10+e)}")
    XU, DU = WK, WK + 32
    xu = lambda e, tp, part: XU + ((e*2 + tp)*2 + part)*4
    du = lambda tp, part: DU + (tp*2 + part)*4
    unp = []
    for i in range(4):
        for tp in range(2):
            unp += L(f"v_lshlrev_b32 v{du(tp,0)+i}, 16, v{DK+2*i+tp}\n v_and_b32 v{du(tp,1)+i}, 0xffff0000, v{DK+2*i+tp}")
            for e in range(2):
                unp += L(f"v_lshlrev_b32 v{xu(e,tp,0)+i}, 16, v{XL+(e*4+i)*2+tp}\n v_and_b32 v{xu(e,tp,1)+i}, 0xffff0000, v{XL+(e*4+i)*2+tp}")
    red = []
    for sh in ("row_ror:8", "row_ror:4", "row_ror:2", "row_ror:1"):
        for e in range(2):
            red += L(f"v_add_f32_dpp v{10+e}, v{10+e}, v{10+e} {sh} row_mask:0xf bank_mask:0xf")
    for sw in ("v_permlane32_swap_b32", "v_permlane16_swap_b32"):
        red += L(f"v_mov_b32 v12, v10\n v_mov_b32 v13, v11\n {sw} v10, v12\n {sw} v11, v13\n v_add_f32 v10, v10, v12\n v_add_f32 v11, v11, v13")
    red += L(f"""
    v_cvt_pk_bf16_f32 v12, v10, v11
    v_lshlrev_b32 v10, 16, v12
    v_and_b32 v11, 0xffff0000, v12
    v_mul_f32 v10, {fbits(-1.4426950408889634)}, v10
    v_mul_f32 v11, {fbits(-1.4426950408889634)}, v11
    v_exp_f32 v10, v10
    v_exp_f32 v11, v11
    v_add_f32 v10, 1.0, v10
    v_add_f32 v11, 1.0, v11
    v_rcp_f32 v10, v10
    v_rcp_f32 v11, v11
    v_cvt_pk_bf16_f32 v12, v10, v11
    v_lshlrev_b32 v10, 16, v12
    v_and_b32 v11, 0xffff0000, v12
    v_sub_f32 v12, 1.0, v10
    v_sub_f32 v13, 1.0, v11
    v_cvt_pk_bf16_f32 v13, v12, v13
    v_lshlrev_b32 v12, 16, v13
    v_and_b32 v13, 0xffff0000, v13
    """)
    gt += spread(unp, red)
    gt += L(f"""
    s_lshl_b32 s{t0}, s{sJ}, 1
    s_lshr_b32 s{t1}, s{sW}, 1
    s_add_u32 s{t0}, s{t0}, s{t1}
    s_lshr_b32 s{t1}, s{t0}, 4
    s_lshl_b32 s{t1}, s{t1}, 1
    s_and_b32 s{t2}, s{sW}, 1
    s_add_u32 s{t1}, s{t1}, s{t2}
    s_lshl_b32 s{t3}, s{sC}, 2
    s_add_u32 s{t3}, s{t3}, s{t1}
    s_lshl_b32 s{t3}, s{t3}, 4
    s_and_b32 s{t2}, s{t0}, 15
    s_add_u32 s{t3}, s{t3}, s{t2}
    s_lshl_b32 s{t3}, s{t3}, 3
    s_add_u32 s{t3}, s{t3}, {WS_OMG}
    s_lshl_b32 s{t1}, s{t1}, 12
    s_and_b32 s{t2}, s{t0}, 3
    s_lshl_b32 s{t2}, s{t2}, 10
    s_add_u32 s{t1}, s{t1}, s{t2}
    s_bfe_u32 s{t2}, s{t0}, 0x20002
    s_lshl_b32 s{t2}, s{t2}, 8
    s_add_u32 s{t1}, s{t1}, s{t2}
    s_lshl_b32 s{t2}, s{sC}, 18
    s_add_u32 s{t1}, s{t1}, s{t2}
    s_add_u32 s75, s{t1}, {WS_COMB}
    v_cmp_eq_u32 vcc, 0, v{vL}
    v_cndmask_b32 v5, 2.0, v{vL}, vcc
    """)
    gt += L(f"buffer_store_dwordx2 v[12:13], v5, {wsr}, s{t3} offen sc1", tag="st1")
    gt += L(f"v_accvgpr_write_b32 a{aS+16}, v10\n v_accvgpr_write_b32 a{aS+17}, v11")
    for e in range(2):
        for tp in range(2):
            for part in range(2):
                for h in range(2):
                    gt.append(pk("mul", xu(e,tp,part)+2*h, xu(e,tp,part)+2*h, du(tp,part)+2*h))
            for part in range(2):
                for h in range(2):
                    gt.append(pk("mul", xu(e,tp,part)+2*h, xu(e,tp,part)+2*h, 12, sel="p" + "lh"[e]))
            for i in range(4):
                gt += L(f"v_cvt_pk_bf16_f32 v{6+(i&1)}, v{xu(e,tp,0)+i}, v{xu(e,tp,1)+i}\n v_accvgpr_write_b32 a{aS+(e*2+tp)*4+i}, v{6+(i&1)}")
    o += spread(gt, dma(2) + dma(3))
    o += st("gate")
    F = []
    fn, fq, fp = 249, 250, 251
    F += L(f"""
    v_lshlrev_b32 v{PAR}, 16, v{PAR}
    v_lshlrev_b32 v{PAR+1}, 16, v{PAR+1}
    v_lshlrev_b32 v{PAR+2}, 16, v{PAR+2}
    v_mul_f32 v{PAR+2}, {fbits(1.4426950408889634)}, v{PAR+2}
    v_exp_f32 v{PAR+2}, v{PAR+2}
    v_cvt_pk_bf16_f32 v{PAR+2}, v{PAR+2}, v{PAR+2}
    v_lshlrev_b32 v{PAR+2}, 16, v{PAR+2}
    v_mul_f32 v14, v{PAR+2}, v{PAR}
    v_mul_f32 v4, v{PAR+2}, v{PAR+1}
    v_mul_f32 v14, {fbits(1.4426950408889634)}, v14
    v_mul_f32 v4, {fbits(0.15915494309189535)}, v4
    v_exp_f32 v14, v14
    v_fract_f32 v4, v4
    v_cos_f32 v5, v4
    v_sin_f32 v6, v4
    v_mul_f32 v{LAM}, v14, v5
    v_mul_f32 v{LAM+1}, v14, v6
    v_mul_f32 v14, v{PAR}, v{PAR}
    v_fma_f32 v14, v{PAR+1}, v{PAR+1}, v14
    v_rcp_f32 v14, v14
    v_add_f32 v4, -1.0, v{LAM}
    v_add_f32 v14, v14, v14
    v_mul_f32 v5, v4, v{PAR}
    v_fma_f32 v5, v{LAM+1}, v{PAR+1}, v5
    v_mul_f32 v6, v{LAM+1}, v{PAR}
    v_fma_f32 v6, -v4, v{PAR+1}, v6
    v_mul_f32 v{COEF}, v5, v14
    v_mul_f32 v{COEF+1}, v6, v14
    """)
    def csq(d, s):
        return L(f"v_mul_f32 v{d}, v{s}, v{s}\n v_mul_f32 v{d+1}, v{s}, v{s+1}\n v_fma_f32 v{d}, -v{s+1}, v{s+1}, v{d}\n v_add_f32 v{d+1}, v{d+1}, v{d+1}")
    F += csq(4, LAM) + csq(6, 4) + csq(4, 6) + csq(L16, 4) + csq(L32, L16) + csq(8, L32) + csq(L128, 8) + csq(4, L128) + csq(10, 4) + csq(12, 10)
    F += L(f"""
    v_and_b32 v14, 1, v{vQ}
    v_cmp_eq_u32 s[78:79], 1, v14
    v_cndmask_b32 v4, 1.0, v{L32}, s[78:79]
    v_cndmask_b32 v5, 0, v{L32+1}, s[78:79]
    v_cndmask_b32 v10, 1.0, v10, s[78:79]
    v_cndmask_b32 v11, 0, v11, s[78:79]
    v_cmp_lt_u32 s[78:79], 1, v{vQ}
    v_cndmask_b32 v8, 1.0, v8, s[78:79]
    v_cndmask_b32 v9, 0, v9, s[78:79]
    v_cndmask_b32 v12, 1.0, v12, s[78:79]
    v_cndmask_b32 v13, 0, v13, s[78:79]
    """)
    F += cmul1(L32Q, L32Q+1, 4, 5, 8, 9) + cmul1(L512Q, L512Q+1, 10, 11, 12, 13)
    F += L(f"""
    s_lshl_b32 s{f0}, s{sW}, 4
    v_add_u32 v9, s{f0}, v{vN}
    v_cvt_f32_u32 v9, v9
    v_mul_f32 v9, {fbits(1/64)}, v9
    v_mul_f32 v15, 4.0, v{fq}
    v_mul_f32 v15, v15, v9
    """)
    gc = lambda sg, part: aGC + (sg * 2 + part) * 4
    for sg in range(4):
        for r in range(4):
            F += L(f"v_fmamk_f32 v{an}, v9, {fbits(16*sg + r)}, v15") + sincos(an, c_, s_)
            F += L(f"v_cvt_pk_bf16_f32 v13, v{c_}, v{s_}\n v_cvt_pk_bf16_f32 v14, -v{s_}, v{c_}\n v_accvgpr_write_b32 a{gc(sg,0)+r}, v13\n v_accvgpr_write_b32 a{gc(sg,1)+r}, v14")
    F += L(f"v_mul_f32 v9, {fbits(1/32)}, v9\n v_add_f32 v15, v{fq}, v{fq}\n v_mul_f32 v15, v15, v9")
    for kap in range(4):
        for b in range(2):
            F += L(f"v_fmamk_f32 v{an}, v9, {fbits(8*kap + b)}, v15") + sincos(an, TWF + (kap*2+b)*2, TWF + (kap*2+b)*2 + 1)
    F += L(f"v_lshl_add_u32 v15, v{vQ}, 2, s{f0}\n v_cvt_f32_u32 v15, v15")
    for tp in range(2):
        F += L(f"v_add_f32 v9, {fbits(16*tp)}, v{fp}\n v_mul_f32 v9, {fbits(1/2048)}, v9\n v_mul_f32 v5, v15, v9")
        for i in range(4):
            cc, ss = TWI + tp*8 + i, TWI + tp*8 + 4 + i
            F += L(f"v_fmamk_f32 v{an}, v9, {fbits(i)}, v5") + sincos(an, cc, ss)
            F += L(f"v_mul_f32 v{cc}, {fbits(2.0**-22)}, v{cc}\n v_mul_f32 v{ss}, {fbits(2.0**-22)}, v{ss}")
    F += L(f"""
    v_cvt_f32_u32 v9, s2
    v_mul_f32 v9, {fbits(1/1024)}, v9
    v_cos_f32 v{c_}, v9
    v_sin_f32 v{s_}, v9
    v_sub_f32 v{c_}, 0, v{c_}
    v_sub_f32 v{s_}, 0, v{s_}
    v_readfirstlane_b32 s{sCW+1}, v{c_}
    v_readfirstlane_b32 s{sCW}, v{s_}
    """)
    fa = lambda tp, mu, part: aFA + ((tp*2 + mu)*2 + part)*4
    F += L(f"v_mul_f32 v7, 4.0, v{fq}")
    for tp in range(2):
        F += L(f"v_fma_f32 v8, v{fn}, 2.0, {'1.0' if tp else '0'}\n v_mul_f32 v9, {fbits(1/32)}, v8\n v_mul_f32 v15, v7, v9")
        for r in range(4):
            F += L(f"v_fmamk_f32 v{an}, v9, {fbits(r)}, v15") + sincos(an, c_, s_)
            p_, n_ = ("", "-") if tp == 0 else ("-", "")
            F += L(f"""
            v_mul_f32 v{an}, {fbits(1/16)}, v{an}
            v_cvt_pk_bf16_f32 v4, v{c_}, v{s_}
            v_cvt_pk_bf16_f32 v5, -v{s_}, v{c_}
            v_cvt_pk_bf16_f32 v13, {p_}v{c_}, {n_}v{s_}
            v_cvt_pk_bf16_f32 v14, {n_}v{s_}, {n_}v{c_}
            v_cos_f32 v{c_}, v{an}
            v_sin_f32 v{s_}, v{an}
            v_accvgpr_write_b32 a{fa(tp,0,0)+r}, v4
            v_accvgpr_write_b32 a{fa(tp,0,1)+r}, v5
            v_accvgpr_write_b32 a{fa(tp,1,0)+r}, v13
            v_accvgpr_write_b32 a{fa(tp,1,1)+r}, v14
            v_accvgpr_write_b32 a{aTW+tp*4+r}, v{c_}
            v_accvgpr_write_b32 a{aTW+8+tp*4+r}, v{s_}
            """)
    ZL, WL, PL = WK, WK + 16, WK + 32
    fra = lambda ks, tau: aFR + ks * 40 + tau * 4
    frb = lambda ks, part: aFR + ks * 40 + 32 + part * 4
    def reads(s, ks):
        slot = s % 4; base = (slot & 1) * 32768; r = []
        ra, rb = (vRA + ks, vRB + ks) if slot < 2 else (vRH + ks, vRH + 2 + ks)
        for part in range(2): r += L(f"ds_read_b128 {ar(frb(ks,part),4)}, v{rb} offset:{base + part*8192}", tag="fr")
        for tau in range(8): r += L(f"ds_read_b128 {ar(fra(ks,tau),4)}, v{ra} offset:{base + tau*2048}", tag="fr")
        return r
    def mfmas(ks, first=False):
        r = []
        for tau in range(8):
            for part in range(2):
                a_ = vr(acc(tau, part), 4)
                r += L(f"{MF} {a_}, {ar(fra(ks,tau),4)}, {ar(frb(ks,part),4)}, {'0' if first else a_}")
        return r
    ZIT = P["zit"]
    nF = -(-len(F) // 23)
    pl1 = f"buffer_load_dwordx4 {vr(PL,4)}, v{vL16}, {wsr}, s{u0} offen sc1"
    vDC, vR2 = 16, 20
    g2a = L(f"""
    s_cmp_lt_u32 s{sW}, 2
    s_cselect_b32 s{CS}, s80, s82
    s_cselect_b32 s{CS+1}, s81, s83
    s_mov_b32 s{CS+2}, 0x200000
    s_mov_b32 s{CS+3}, 0x00020000
    v_and_b32 v6, 7, v{vL}
    v_xor_b32 v6, v6, v{vQ}
    v_lshlrev_b32 v6, 4, v6
    s_and_b32 s{t0}, s{sJ}, 8
    s_lshl_b32 s{t0}, s{t0}, 7
    v_add_u32 v6, s{t0}, v6
    v_xor_b32 v7, 64, v6
    v_lshrrev_b32 v8, 3, v{vL}
    v_lshlrev_b32 v8, 2, v8
    s_and_b32 s{t0}, s{sJ}, 7
    s_lshl_b32 s{t0}, s{t0}, 1
    s_lshr_b32 s{t1}, s{sJ}, 3
    s_add_u32 s{t0}, s{t0}, s{t1}
    s_mov_b32 s92, s{t0}
    s_xor_b32 s{t0}, s{t0}, 1
    s_lshl_b32 s{t0}, s{t0}, 6
    s_and_b32 s{t1}, s{sW}, 1
    s_lshl_b32 s{t1}, s{t1}, 1
    s_add_u32 s{t0}, s{t0}, s{t1}
    v_add_u32 v8, s{t0}, v8
    """)
    for jj in range(4):
        g2a += L(f"v_add_u32 v9, {32*(jj&1) + (jj>>1)}, v8\n v_lshl_add_u32 v{vDC+jj}, v9, 11, v{6+(jj&1)}")
    g2a += srd(OUT_, 90, 91, 0x800000)
    for s in range(16):
        o += [W("vm", f"d{s}"), W("lg", "fr")]
        if s == ZIT: o += [W("vm", "poll")]
        o += L("s_barrier")
        if s in (0, 4, 8, 12): o += st(f"g1_{s}")
        dm = dma(s + 3) if (1 <= s and s + 3 < 16) else []
        ex = []
        if s == 4:
            ex = L(f"s_lshl_b32 s{u1}, s2, 2\n s_add_u32 s{u1}, s{u1}, {WS_FL1}") + signal(u1, "fl")
        if s == ZIT - 2:
            dm = L(f"s_mov_b32 s{u0}, {WS_FL1}") + L(pl1, tag="poll") + dm
        if s == ZIT:
            o += poll_check("K_POLL1", PL, 4, pl1)
            ex = L(f"s_mul_i32 s{u0}, s2, {ZS}\n s_add_u32 s{u0}, s{u0}, s{sM0}\n s_add_u32 s{u1}, s{u0}, {WS_WT}")
            for f in range(4): ex += L(f"buffer_load_dwordx4 {vr(ZL+4*f,4)}, v{vL16}, {wsr}, s{u0} offen offset:{1024*f} sc1", tag="zl")
            for f in range(4): ex += L(f"buffer_load_dwordx4 {vr(WL+4*f,4)}, v{vL16}, {wsr}, s{u1} offen offset:{1024*f} sc1", tag="wl")
        if s == 14: ex += g2a
        allx = dm + ex
        n0 = (len(allx) + 1) // 2
        if s == 0: o += reads(0, 0)
        else: o += spread(mfmas(1), (reads(s, 0), 0, 10), allx[:n0], take(F, nF))
        o += [W("lg", "fr")]
        o += spread(mfmas(0, s == 0), (reads(s, 1), 0, 10), allx[n0:], take(F, nF))
    assert not F
    o += [W("lg", "fr")]
    ex = L(f"s_add_u32 s{t0}, s{sM0}, {SCR}\n v_add_u32 v4, s{t0}, v{vL16}") + [W("vm", "zl")]
    for f in range(4): ex += L(f"ds_write_b128 v4, {vr(ZL+4*f,4)} offset:{1024*f}", tag="zw")
    ex += L(f"""
    v_and_b32 v8, 1, v{vQ}
    v_lshrrev_b32 v9, 1, v{vN}
    v_xor_b32 v8, v8, v9
    v_lshlrev_b32 v8, 4, v8
    v_lshl_add_u32 v8, v{vN}, 7, v8
    v_lshrrev_b32 v9, 1, v{vQ}
    v_lshl_add_u32 v8, v9, 13, v8
    """)
    for kap in range(4): ex += L(f"v_xor_b32 v{vR2+kap}, {32*kap}, v8\n v_add_u32 v{vR2+4+kap}, 0x10000, v{vR2+kap}")
    o += spread(mfmas(1), ex)
    o += [W("lg", "zw")] + L("s_barrier")
    o += st("g1")
    def cdma(e, tag, rot=True):
        if rot: r = L(f"s_and_b32 s{sCM}, s{sC}, 3\n s_lshl_b32 s{sCM}, s{sCM}, 1\n s_add_u32 s{sCM}, s{sCM}, {e}\n s_and_b32 s{sCM}, s{sCM}, 7\n s_add_u32 s{sCK}, s{sCM}, s{sJ}\n s_lshl_b32 s{sCM}, s{sCM}, 14\n s_add_u32 s{sCM}, s{sCM}, s{sM0}")
        else: r = L(f"s_add_u32 s{sCK}, s{sJ}, {e}\n s_add_u32 s{sCM}, s{sM0}, {e << 14}")
        r += L(f"s_and_b32 s{sCK}, s{sCK}, 7\n s_lshl_b32 s{sCK}, s{sCK}, 7")
        for jj in range(4):
            r += L(f"s_add_u32 m0, s{sCM}, {jj*1024}")
            r += L(f"buffer_load_dwordx4 v{vDC+jj}, s[{CS}:{CS+3}], s{sCK} offen lds", tag=tag)
        return r
    touch = L(f"""
    s_lshl_b32 s{u0}, s92, 6
    s_and_b32 s{u1}, s{sW}, 1
    s_lshl_b32 s{u1}, s{u1}, 5
    s_add_u32 s{u0}, s{u0}, s{u1}
    s_lshl_b32 s{u0}, s{u0}, 11
    s_and_b32 s{u1}, s{sJ}, 8
    s_lshl_b32 s{u1}, s{u1}, 7
    s_add_u32 s{u0}, s{u0}, s{u1}
    s_and_b32 s{u1}, s{sC}, 3
    s_lshl_b32 s{u1}, s{u1}, 8
    s_add_u32 s{u0}, s{u0}, s{u1}
    v_lshrrev_b32 v28, 1, v{vL}
    v_lshlrev_b32 v28, 11, v28
    v_and_b32 v29, 1, v{vL}
    v_lshl_add_u32 v28, v29, 7, v28
    """) + L(f"buffer_load_dword v30, v28, s[{CS}:{CS+3}], s{u0} offen", tag="tch")
    CSEND = [cdma(e, "cs") for e in range(8)]
    o += L(f"v_add_u32 v28, {SCR}, v{vL16}")
    cf = lambda kap, sg: aFR + (kap * 4 + sg) * 4
    for kap in range(4):
        for sg in range(4):
            o += L(f"ds_read_b128 {ar(cf(kap,sg),4)}, v28 offset:{(kap*4+sg)*1024}", tag=f"cf{kap}")
    step = lambda k, part: acc(k >> 1, part) + 2 * (k & 1)
    G0, G1_ = 4, 8
    sc = []
    src = (step(0, 0), step(0, 1))
    for k in range(1, 16):
        d = (SA_R, SA_I) if k == 15 else ((G0, G0 + 2) if k & 1 else (G1_, G1_ + 2))
        sc += [pk("fma", d[0], src[0], LAM, step(k, 0), sel="plp"), pk("fma", d[1], src[1], LAM, step(k, 1), sel="plp"),
               pk("fma", d[0], src[1], LAM, d[0], sel="php", neg=[1, 0, 0]), pk("fma", d[1], src[0], LAM, d[1], sel="php")]
        src = d
    sc += [pk("mul", 4, SA_R, COEF, sel="pl"), pk("mul", 6, SA_I, COEF, sel="pl"),
           pk("fma", 4, SA_I, COEF, 4, sel="php", neg=[1, 0, 0]), pk("fma", SA_I, SA_R, COEF, 6, sel="php")]
    o += sc
    sc = L(f"v_mov_b32 v{SA_R}, v4\n v_mov_b32 v{SA_R+1}, v5")
    sc += cmul1(4, 8, SA_R, SA_I, L16, L16+1, SA_R+1, SA_I+1)
    sc += L("""
    v_mov_b32 v6, v4
    v_mov_b32 v10, v8
    v_permlane32_swap_b32 v4, v6
    v_permlane32_swap_b32 v8, v10
    v_mov_b32 v5, v4
    v_mov_b32 v7, v6
    v_mov_b32 v9, v8
    v_mov_b32 v11, v10
    v_permlane16_swap_b32 v4, v5
    v_permlane16_swap_b32 v6, v7
    v_permlane16_swap_b32 v8, v9
    v_permlane16_swap_b32 v10, v11
    """)
    AG = WK + 36
    sc += cmul1(12, 13, 4, 8, L32, L32+1, 5, 9) + cmul1(14, 15, 12, 13, L32, L32+1, 6, 10) + cmul1(AG, AG+1, 14, 15, L32, L32+1, 7, 11)
    sc += L(f"""
    v_mov_b32 v{AG+2}, s{sT}
    v_mov_b32 v{AG+3}, s{sT}
    s_lshl_b32 s{t0}, s{sJ}, 4
    s_add_u32 s{t0}, s{t0}, s{sC}
    s_lshl_b32 s{t0}, s{t0}, 2
    s_add_u32 s{t0}, s{t0}, s{sW}
    s_lshl_b32 s{t0}, s{t0}, 8
    s_add_u32 s{t0}, s{t0}, {WS_AGG}
    v_cmp_gt_u32 vcc, 16, v{vL}
    v_cndmask_b32 v5, 2.0, v{vL16}, vcc
    """)
    sc += L(f"buffer_store_dwordx4 {vr(AG,4)}, v5, {wsr}, s{t0} offen sc1", tag="ag")
    sc += L(f"""
    v_cndmask_b32 v{PFX}, v4, 0, vcc
    v_cndmask_b32 v{PFX+1}, v8, 0, vcc
    v_cmp_eq_u32 vcc, 2, v{vQ}
    v_cndmask_b32 v{PFX}, v{PFX}, v12, vcc
    v_cndmask_b32 v{PFX+1}, v{PFX+1}, v13, vcc
    v_cmp_eq_u32 vcc, 3, v{vQ}
    v_cndmask_b32 v{PFX}, v{PFX}, v14, vcc
    v_cndmask_b32 v{PFX+1}, v{PFX+1}, v15, vcc
    """)
    wu = lambda which, part, mu, i: WU + (which * 2 + part) * 8 + mu * 4 + i
    unp = [W("vm", "wl")]
    for io in range(4):
        for ii in range(2):
            for wh in range(2):
                raw = WL + io*4 + ii*2 + wh; mu, i = io >> 1, 2*(io & 1) + ii
                unp += L(f"v_lshlrev_b32 v{wu(wh,0,mu,i)}, 16, v{raw}\n v_and_b32 v{wu(wh,1,mu,i)}, 0xffff0000, v{raw}")
    CD, CT, TT = WK + 40, WK, 4
    cd1 = lambda kap, part: CD + (kap*2 + part)*4
    m1 = []
    for kap in range(4):
        m1.append(W("lg", f"cf{kap}"))
        for sg in range(4):
            for part in range(2):
                d = vr(cd1(kap, part), 4)
                m1 += L(f"{MF} {d}, {ar(cf(kap,sg),4)}, {ar(gc(sg,part),4)}, {'0' if sg == 0 else d}")
    o += spread(m1, sc)
    o += st("scan1+cc1")
    ct = lambda col, tau: CT + (col*2 + tau)*4
    tw = []
    for kap in range(4):
        for b in range(2):
            re, im = cd1(kap, 0) + 2*b, cd1(kap, 1) + 2*b
            t_ = TWF + (kap*2 + b)*2
            tr, ti = TT + 4*b, TT + 4*b + 2
            tw += [pk("mul", tr, re, t_, sel="pl"), pk("mul", ti, im, t_, sel="pl"), pk("fma", tr, im, t_, tr, sel="php"), pk("fma", ti, re, t_, ti, sel="php", neg=[1,0,0])]
        for b in range(2):
            for col in range(2):
                tw += L(f"v_cvt_pk_bf16_f32 v{ct(col, kap>>1) + (kap&1)*2 + b}, v{TT+4*b+col}, v{TT+4*b+2+col}")
    n0 = P["nsend0"]
    o += spread(tw, sum(CSEND[:n0], []))
    cd2 = lambda col, mu, part: CD + ((col*2 + mu)*2 + part)*4
    m2 = []
    for tau in range(2):
        for mu in range(2):
            for col in range(2):
                for part in range(2):
                    d = vr(cd2(col, mu, part), 4)
                    m2 += L(f"{MF} {d}, {ar(fc(mu,tau,part),4)}, {vr(ct(col,tau),4)}, {'0' if tau == 0 else d}")
    o += spread(m2, unp)
    o += st("cc2")
    LB, LA = TWF, 148
    lb = L(f"""
    s_lshl_b32 s93, s{sJ}, 14
    s_lshl_b32 s{t1}, s{sW}, 8
    s_add_u32 s93, s93, s{t1}
    s_add_u32 s93, s93, {WS_AGG}
    v_lshlrev_b32 v28, 2, v{vQ}
    v_sub_u32 v28, s{sC}, v28
    """)
    for e in range(4):
        lb += L(f"""
        v_subrev_u32 v29, {e+1}, v28
        v_cmp_le_i32 vcc, 0, v29
        v_lshlrev_b32 v29, 10, v29
        v_lshl_add_u32 v29, v{vN}, 4, v29
        v_cndmask_b32 v{LA+e}, 2.0, v29, vcc
        """)
    lbl = "\n".join(f"buffer_load_dwordx4 {vr(LB+4*e,4)}, v{LA+e}, {wsr}, s93 offen sc1" for e in range(4))
    lb += L(lbl, tag="lb")
    o += lb
    SV = WK
    RV = 81920
    sp = L(f"""
    s_cmp_lg_u32 s2, 0
    s_cbranch_scc1 K_NOSPECIAL
    s_mov_b32 s{t0}, {WS_WT + 256*ZS}
    s_add_u32 s{t0}, s{t0}, s{sM0}
    """)
    for f in range(4): sp += L(f"buffer_load_dwordx4 {vr(SV+4*f,4)}, v{vL16}, {wsr}, s{t0} offen offset:{1024*f} sc1")
    sp += L(f"""
    s_lshl_b32 s{t0}, s{sW}, 4
    v_lshl_add_u32 v4, v{vQ}, 7, v{vN}
    v_add_u32 v4, s{t0}, v4
    v_sub_u32 v5, 448, v4
    v_lshlrev_b32 v4, 2, v4
    v_lshlrev_b32 v5, 2, v5
    v_add_u32 v4, {RV}, v4
    v_add_u32 v5, {RV}, v5
    """)
    for mu in range(2):
        for h in range(2):
            for part in range(2):
                sp.append(pk("mul", cd2(0,mu,part)+2*h, cd2(0,mu,part)+2*h, "0.5", sel="pl"))
    for io in range(4):
        for ii in range(2):
            mu, i = io >> 1, 2*(io & 1) + ii
            sp += L(f"ds_write2st64_b32 v4, v{cd2(0,mu,0)+i}, v{cd2(0,mu,1)+i} offset0:{8*io+ii} offset1:{40+8*io+ii}")
            sp += L(f"ds_write2st64_b32 v4, v{WL+io*4+ii*2}, v{WL+io*4+ii*2+1} offset0:{80+8*io+ii} offset1:{120+8*io+ii}")
    sp += L(f"ds_write2st64_b32 v4, v{cd2(0,0,0)}, v{cd2(0,0,1)} offset0:32 offset1:72")
    sp += L(f"ds_write2st64_b32 v4, v{WL}, v{WL+1} offset0:112 offset1:152")
    sp += L("s_waitcnt vmcnt(0)")
    for io in range(4):
        for ii in range(2):
            mu, i = io >> 1, 2*(io & 1) + ii
            raw = SV + io*4 + ii*2
            sp += L(f"v_lshlrev_b32 v6, 16, v{raw}\n v_and_b32 v7, 0xffff0000, v{raw}\n v_mul_f32 v6, 4.0, v6\n v_mul_f32 v7, 4.0, v7")
            sp += cmul1(8, 9, 6, 7, cd2(1,mu,0)+i, cd2(1,mu,1)+i)
            sp += L(f"v_cvt_pk_bf16_f32 v8, v8, -v9\n v_accvgpr_write_b32 a{aSV+mu*4+i}, v8")
    sp += L("s_waitcnt lgkmcnt(0)\n s_barrier")
    for io in range(4):
        mu, i = io >> 1, 2*(io & 1)
        for part in range(2):
            sp += L(f"ds_read2st64_b32 {vr(cd2(1,mu,part)+i,2)}, v5 offset0:{40*part+25-8*io} offset1:{40*part+24-8*io}")
        for wh in range(2):
            sp += L(f"ds_read2st64_b32 {vr(SV+io*4+2*wh,2)}, v5 offset0:{80+40*wh+25-8*io} offset1:{80+40*wh+24-8*io}")
    sp += L("s_waitcnt lgkmcnt(0)\n s_barrier")
    for io in range(4):
        for ii in range(2):
            mu, i = io >> 1, 2*(io & 1) + ii
            sp += L(f"v_xor_b32 v{cd2(1,mu,1)+i}, 0x80000000, v{cd2(1,mu,1)+i}")
            for wh in range(2):
                raw = SV + io*4 + 2*wh + ii
                sp += L(f"v_lshlrev_b32 v6, 16, v{raw}\n v_and_b32 v7, 0xffff0000, v{raw}\n v_add_f32 v{wu(wh,0,mu,i)}, v{wu(wh,0,mu,i)}, v6\n v_sub_f32 v{wu(wh,1,mu,i)}, v{wu(wh,1,mu,i)}, v7")
    sp += L(f"""
    s_add_u32 s{t0}, s{sN}, 1
    v_mov_b32 v6, s{t0}
    v_mov_b32 v7, {WS_NONCE}
    buffer_store_dword v6, v7, {wsr}, 0 offen sc1
    """)
    for x in sp: x.maybe = True
    o += sp + L("K_NOSPECIAL:")
    cw = f"s[{sCW}:{sCW+1}]"
    md = []
    for mu in range(2):
        for h in range(2):
            Pr, Pi, Qr, Qi = (cd2(0,mu,0)+2*h, cd2(0,mu,1)+2*h, cd2(1,mu,0)+2*h, cd2(1,mu,1)+2*h)
            W1r, W1i, W2r, W2i = (wu(0,0,mu,2*h), wu(0,1,mu,2*h), wu(1,0,mu,2*h), wu(1,1,mu,2*h))
            A, B, C_, D_ = 4, 6, 8, 10
            md += [pk("add", A, Pr, Qr, neg=[0,1]), pk("add", B, Pi, Qi, neg=[0,1]),
                   pk("add", Pr, Pr, Qr), pk("add", Pi, Pi, Qi),
                   pk("mul", C_, A, cw, sel="pl"), pk("mul", D_, B, cw, sel="pl"),
                   pk("fma", C_, B, cw, C_, sel="php", neg=[1,0,0]), pk("fma", D_, A, cw, D_, sel="php"),
                   pk("add", Qr, Pr, C_, neg=[0,1]), pk("add", Qi, Pi, D_, neg=[0,1]),
                   pk("add", Pr, Pr, C_), pk("add", Pi, Pi, D_),
                   pk("mul", A, Pr, W1r), pk("mul", B, Pi, W1r), pk("mul", C_, Qr, W2r), pk("mul", D_, Qi, W2r),
                   pk("fma", A, Pi, W1i, A, neg=[1,0,0]), pk("fma", B, Pr, W1i, B),
                   pk("fma", C_, Qi, W2i, C_), pk("fma", D_, Qr, W2i, D_, neg=[1,0,0]),
                   pk("add", Qr, A, C_, neg=[0,1]), pk("add", Qi, B, D_, neg=[0,1]),
                   pk("add", Pr, A, C_), pk("add", Pi, B, D_),
                   pk("mul", A, Qr, cw, sel="pl"), pk("mul", B, Qi, cw, sel="pl"),
                   pk("fma", A, Qi, cw, A, sel="php"), pk("fma", B, Qr, cw, B, sel="php", neg=[1,0,0]),
                   pk("add", Qr, Pr, A, neg=[0,1]), pk("add", Qi, Pi, B, neg=[0,1]),
                   pk("add", Pr, Pr, A), pk("add", Pi, Pi, B)]
            for col in range(2):
                for ii in range(2):
                    i = 2*h + ii
                    md += L(f"v_cvt_pk_bf16_f32 v{ct(col,mu)+i}, v{cd2(col,mu,0)+i}, -v{cd2(col,mu,1)+i}")
    o += spread(md, touch if P["touch"] == "mid" else [])
    sp = L("s_cmp_lg_u32 s2, 0\n s_cbranch_scc1 K_NOSPECIAL2")
    for mu in range(2):
        for i in range(4): sp += L(f"v_accvgpr_read_b32 v{ct(1,mu)+i}, a{aSV+mu*4+i}")
    o += sp + L("K_NOSPECIAL2:")
    o += st("mid")
    cm = []
    for k in range(16):
        ur, ui = step(k, 0), step(k, 1)
        cm += [pk("mul", 4 + 4*(k&1), ui, COEF, sel="ph"), pk("mul", 6 + 4*(k&1), ur, COEF, sel="ph"),
               pk("fma", ur, ur, COEF, 4 + 4*(k&1), sel="plp", neg=[0,0,1]), pk("fma", ui, ui, COEF, 6 + 4*(k&1), sel="plp")]
    o += cm
    HW, HR = WU, WU + 4
    o += L(f"""
    v_and_b32 v14, 8, v{vN}
    v_and_b32 v15, 3, v{vN}
    v_lshl_or_b32 v14, v15, 1, v14
    v_bfe_u32 v15, v{vN}, 2, 1
    v_or_b32 v14, v14, v15
    v_lshlrev_b32 v15, 2, v{vQ}
    v_xor_b32 v14, v14, v15
    v_lshlrev_b32 v14, 4, v14
    v_lshl_add_u32 v14, v{vN}, 8, v14
    s_lshl_b32 s{t0}, s{sW}, 13
    s_add_u32 s{t0}, s{t0}, {SCR}
    v_add_u32 v{HW}, s{t0}, v14
    v_xor_b32 v{HW+1}, 16, v{HW}
    v_xor_b32 v{HW+2}, 32, v{HW}
    v_xor_b32 v{HW+3}, 48, v{HW}
    v_and_b32 v14, 1, v{vQ}
    v_lshrrev_b32 v15, 2, v{vN}
    v_lshl_add_u32 v12, v14, 3, v15
    v_lshlrev_b32 v12, 8, v12
    v_lshrrev_b32 v13, 1, v{vQ}
    v_lshl_add_u32 v12, v13, 12, v12
    v_lshlrev_b32 v14, 3, v14
    v_lshl_or_b32 v14, v15, 1, v14
    v_bfe_u32 v15, v{vN}, 1, 1
    v_xor_b32 v14, v14, v15
    v_lshl_add_u32 v12, v14, 4, v12
    v_and_b32 v15, 1, v{vN}
    v_lshl_add_u32 v12, v15, 3, v12
    v_add_u32 v12, {SCR}, v12
    s_and_b32 s{t0}, s{sW}, 1
    s_lshl_b32 s{t0}, s{t0}, 2
    s_lshr_b32 s{t1}, s{sW}, 1
    s_add_u32 s94, s{t0}, s{t1}
    s_lshl_b32 s{t0}, s94, 5
    v_xor_b32 v{HR}, s{t0}, v12
    v_xor_b32 v{HR+1}, 16, v{HR}
    v_xor_b32 v{HR+2}, 64, v{HR}
    v_xor_b32 v{HR+3}, 80, v{HR}
    s_lshl_b32 s94, s94, 12
    """)
    o += [W("vm", "lb")]
    o += st("lbwait")
    o += L(f"s_mov_b32 s{u3}, 0\n K_POLL2:")
    for e in range(4):
        o += L(f"v_cmp_ne_u32 vcc, 2.0, v{LA+e}\n v_xor_b32 v{4+e}, s{sT}, v{LB+4*e+2}\n v_cndmask_b32 v{4+e}, 0, v{4+e}, vcc")
    o += L(f"v_or3_b32 v4, v4, v5, v6\n v_or_b32 v4, v4, v7\n v_cmp_ne_u32 vcc, 0, v4\n s_cbranch_vccz K_POLL2_OK")
    o += L(f"{lbl}\n s_add_u32 s{u3}, s{u3}, 1\n s_cmp_lt_u32 s{u3}, {SPIN}\n s_waitcnt vmcnt(0)\n s_cbranch_scc1 K_POLL2", maybe=True)
    o += L("K_POLL2_OK:")
    fx = cmul1(4, 5, LB+12, LB+13, L128, L128+1, LB+8, LB+9) + cmul1(6, 7, 4, 5, L128, L128+1, LB+4, LB+5)
    fx += cmul1(4, 5, 6, 7, L128, L128+1, LB, LB+1) + cmul1(6, 8, 4, 5, L512Q, L512Q+1)
    fx += L("""
    v_mov_b32 v7, v6
    v_mov_b32 v9, v8
    v_permlane32_swap_b32 v6, v7
    v_permlane32_swap_b32 v8, v9
    v_add_f32 v6, v6, v7
    v_add_f32 v8, v8, v9
    v_mov_b32 v7, v6
    v_mov_b32 v9, v8
    v_permlane16_swap_b32 v6, v7
    v_permlane16_swap_b32 v8, v9
    v_add_f32 v6, v6, v7
    v_add_f32 v8, v8, v9
    """)
    fx += cmul1(10, 12, 6, 8, L32Q, L32Q+1, PFX, PFX+1) + cmul1(11, 13, 10, 12, L16, L16+1, SA_R, SA_I)
    HP = CD
    src = (10, 12)
    for k in range(16):
        d = (step(k, 0), step(k, 1))
        fx += [pk("fma", d[0], src[0], LAM, d[0], sel="plp"), pk("fma", d[1], src[1], LAM, d[1], sel="plp"),
               pk("fma", d[0], src[1], LAM, d[0], sel="php", neg=[1, 0, 0]), pk("fma", d[1], src[0], LAM, d[1], sel="php")]
        src = d
        if k & 1:
            tau = k >> 1
            for part in range(2):
                for i0 in range(2):
                    sg = "-" if part else ""
                    fx += L(f"v_cvt_pk_bf16_f32 v{HP+(part*2+i0)*8+tau}, {sg}v{acc(tau,part)+i0}, {sg}v{acc(tau,part)+2+i0}")
        if k in (7, 15):
            hf = k >> 3
            if k == 7: fx += L("s_barrier")
            for part in range(2):
                for i0 in range(2):
                    fx += L(f"ds_write_b128 v{HW+2*i0+hf}, {vr(HP+(part*2+i0)*8+4*hf,4)} offset:{part*4096}", tag="hw")
    o += spread(fx, sum(CSEND[n0:], []))
    o += [W("lg", "hw")] + L("s_barrier")
    A0 = 64
    for tau in range(2):
        for kap in range(4):
            r = A0 + (tau*4 + kap)*4
            o += L(f"ds_read_b64_tr_b16 {vr(r,2)}, v{HR+2*tau} offset:{kap*8192}\n ds_read_b64_tr_b16 {vr(r+2,2)}, v{HR+2*tau+1} offset:{kap*8192+1024}", tag=f"hr{tau}{kap}")
    o += st("fix")
    cd3 = lambda col, tp, part: CD + ((col*2 + tp)*2 + part)*4
    mA = []
    for mu in range(2):
        for col in range(2):
            for tp in range(2):
                for part in range(2):
                    d = vr(cd3(col, tp, part), 4)
                    mA += L(f"{MF} {d}, {vr(ct(col,mu),4)}, {ar(fc(tp,mu,part),4)}, {'0' if mu == 0 else d}")
    hs = L(f"s_mul_i32 s{u0}, s2, {ZS}\n s_add_u32 s{u0}, s{u0}, s94\n s_add_u32 s{u0}, s{u0}, {HB}\n s_add_u32 s{u1}, s{u0}, 8192")
    for tau in range(2):
        for kap in range(4):
            hs += [W("lg", f"hr{tau}{kap}")]
            hs += L(f"buffer_store_dwordx4 {vr(A0+(tau*4+kap)*4,4)}, v{vL16}, {wsr}, s{u0+tau} offen offset:{1024*kap} sc1", tag="hst")
    ex = L(f"""
    v_bfe_u32 v12, v{vN}, 1, 1
    v_mul_u32_u24 v12, 4112, v12
    v_and_b32 v13, 1, v{vN}
    v_lshl_add_u32 v12, v13, 5, v12
    v_and_b32 v13, 60, v{vL}
    v_lshl_add_u32 v12, v13, 4, v12
    s_lshl_b32 s{t0}, s{sW}, 10
    s_add_u32 s{t0}, s{t0}, {SCR}
    v_add_u32 v12, s{t0}, v12
    v_add_u32 v13, {SCR}, v{vL16}
    """)
    o += spread(mA, hs, ex)
    o += L("s_barrier")
    for col in range(2):
        for tp in range(2):
            for h in range(2):
                re, im = cd3(col,tp,0) + 2*h, cd3(col,tp,1) + 2*h
                cs, sn = TWI + tp*8 + 2*h, TWI + tp*8 + 4 + 2*h
                tr, ti = TT + 4*h, TT + 4*h + 2
                o += [pk("mul", tr, re, cs), pk("mul", ti, im, cs), pk("fma", tr, im, sn, tr), pk("fma", ti, re, sn, ti, neg=[1,0,0])]
            for i in range(4):
                o += L(f"v_cvt_pk_bf16_f32 v{ct(col,tp)+i}, v{TT+4*(i>>1)+(i&1)}, v{TT+4*(i>>1)+2+(i&1)}")
            o += L(f"ds_write_b128 v12, {vr(ct(col,tp),4)} offset:{tp*2*4112 + col*16}", tag="xw")
    o += [W("lg", "xw")] + L("s_barrier")
    for kap in range(4):
        for sg in range(4):
            o += L(f"ds_read_b128 {ar(cf(kap,sg),4)}, v13 offset:{kap*4112 + sg*1024}", tag=f"cg{kap}")
    FB, TW, SK, GG = 96, 104, 120, 136
    up = []
    for k in range(8): up += L(f"v_accvgpr_read_b32 v{FB+k}, a{aF1+k}")
    ya = L(f"""
    v_lshlrev_b32 v12, 4, v{vQ}
    v_lshrrev_b32 v14, 2, v{vN}
    v_add_u32 v12, v12, v14
    v_and_b32 v14, 3, v{vN}
    v_lshlrev_b32 v14, 4, v14
    v_lshl_add_u32 v12, v12, 14, v14
    s_lshl_b32 s{t0}, s{sW}, 20
    s_lshl_b32 s{t1}, s2, 6
    s_add_u32 s{t0}, s{t0}, s{t1}
    s_add_u32 s{t0}, s{t0}, {WS_Y}
    """)
    o += ya + up
    up = []
    for k in range(16): up += L(f"v_accvgpr_read_b32 v{TW+k}, a{aTW+k}")
    for k in range(18): up += L(f"v_accvgpr_read_b32 v{SK+k}, a{aS+k}")
    pend = []
    for kap in range(4):
        mB = [W("lg", f"cg{kap}")]
        for sg in range(4):
            for part in range(2):
                d = vr(cd1(kap, part), 4)
                mB += L(f"{MF} {d}, {ar(gc(sg,part),4)}, {ar(cf(kap,sg),4)}, {'0' if sg == 0 else d}")
        o += spread(mB, (take(up, 9), 1, 5), (pend, 5, 8))
        pend = []
        for i in range(4): pend += L(f"v_cvt_pk_bf16_f32 v{CT+kap*4+i}, v{cd1(kap,0)+i}, v{cd1(kap,1)+i}")
        pend += L(f"buffer_store_dwordx4 {vr(CT+kap*4,4)}, v12, {wsr}, s{t0} offen sc1", tag="yst")
        if kap < 3: pend += L(f"s_add_u32 s{t0}, s{t0}, {4*YS}")
    assert not up
    o += pend
    o += st("cci")
    AC2 = 32
    BF = 152
    ac2 = lambda tau, jt: AC2 + (tau*4 + jt)*4
    af = lambda k, tau, kap: (vr(A0 + (tau*4 + kap)*4, 4) if k == 0 else ar((k-1)*32 + (tau*4 + kap)*4, 4))
    def reads2(k, kap):
        hi = 4 if k >= 4 else 0; base = (k & 3) * 16384; r = []
        for jt in range(4): r += L(f"ds_read_b128 {vr(BF+(kap&1)*16+jt*4,4)}, v{vR2+kap+hi} offset:{base + jt*2048}", tag="fr")
        return r
    def mfmas2(k, kap):
        r = []
        for jt in range(4):
            for tau in range(2):
                a_ = vr(ac2(tau, jt), 4)
                r += L(f"{MF} {a_}, {af(k,tau,kap)}, {vr(BF+(kap&1)*16+jt*4,4)}, {'0' if (k == 0 and kap == 0) else a_}")
        return r
    def aload(k):
        r = L(f"s_add_u32 s{sA}, s2, {32*k}\n s_and_b32 s{sA}, s{sA}, 255\n s_mul_i32 s{sA}, s{sA}, {ZS}\n s_add_u32 s{sA}, s{sA}, s95\n s_add_u32 s96, s{sA}, 8192")
        for kap in range(4):
            r += L(f"buffer_load_dwordx4 {af(k,0,kap)}, v{vL16}, {wsr}, s{sA} offen offset:{1024*kap} sc1\n buffer_load_dwordx4 {af(k,1,kap)}, v{vL16}, {wsr}, s96 offen offset:{1024*kap} sc1", tag=f"a{k}")
        return r
    def gpass(hook, waits, first_reads_done=False):
        r = []
        for k in range(8):
            pre_rd, pre_mf = waits(k)
            ex = hook(k)
            for kap in range(4):
                part = ex[kap*len(ex)//4:(kap+1)*len(ex)//4]
                if kap == 0: r += [W("lg", "fr")] + pre_rd
                else: r += [W("lg", "fr")] + (pre_mf if kap == 1 else [])
                if k == 0 and kap == 0: r += reads2(0, 0) + part
                else: r += spread(mfmas2(k, kap - 1) if kap else mfmas2(k - 1, 3), (reads2(k, kap), 0, 3), part)
        return r
    o += L(f"""
    s_add_u32 s95, s94, {HB}
    s_and_b32 s{u0}, s2, 31
    s_lshl_b32 s{u0}, s{u0}, 7
    s_add_u32 s{u0}, s{u0}, {WS_FL2}
    s_lshr_b32 s{u1}, s2, 5
    s_lshl_b32 s{u1}, s{u1}, 2
    s_add_u32 s{u1}, s{u1}, s{u0}
    v_and_b32 v5, 7, v{vL}
    v_lshlrev_b32 v5, 2, v5
    """)
    o += [W("vm", "hst"), W("vm", "cs")] + L("s_barrier")
    o += signal(u1, "fl")
    o += st("hack")
    pl2 = f"buffer_load_dword v4, v5, {wsr}, s{u0} offen sc1"
    YL, PL3 = 184, 8
    pl3 = f"buffer_load_dwordx4 {vr(PL3,4)}, v{vL16}, {wsr}, s{u0} offen sc1"
    keepx = [I(f"v_xor_b32 v{vDC+jj}, 0x20000, v{vDC+jj}") for jj in range(4)]
    CKEEP = [cdma(e, f"ck{e}", rot=False) for e in range(8)]
    def hook0(k):
        if k == 0: return [I("s_nop 0")] * 2 + L(pl2, tag="poll") + [I("s_nop 0")]
        r = aload(k + 2) if 1 <= k <= 5 else []
        if k == 2: r = L(f"s_lshl_b32 s{u1}, s2, 2\n s_add_u32 s{u1}, s{u1}, {WS_FL3}") + signal(u1, "fl") + r
        if k == 5: r = r + L(f"s_mov_b32 s{u0}, {WS_FL3}") + L(pl3, tag="poll")
        if k == 6: r = keepx + CKEEP[0] + CKEEP[1]
        if k == 7:
            r = L(f"s_lshl_b32 s{u0}, s{sC}, 4\n s_add_u32 s{u0}, s{u0}, s{sJ}\n s_lshl_b32 s{u0}, s{u0}, 14\n s_lshl_b32 s{u1}, s{sW}, 10\n s_add_u32 s{u0}, s{u0}, s{u1}\n s_add_u32 s{u0}, s{u0}, {WS_Y}")
            for rho in range(4):
                r += L(f"buffer_load_dwordx4 {vr(YL+4*rho,4)}, v{vL16}, {wsr}, s{u0} offen sc1", tag="y")
                if rho < 3: r += L(f"s_add_u32 s{u0}, s{u0}, 4096")
            r += CKEEP[2]
        return r
    def waits0(k):
        pre_rd, pre_mf = [], []
        if k == 1:
            pre_rd = [W("vm", "poll")] + poll_check("K_POLL3", 4, 1, pl2) + st("hflag") + aload(1) + aload(2)
        if k == 2: pre_rd = [W("vm", "yst")] + L("s_barrier")
        if k == 6: pre_rd = L("s_barrier")
        if k == 7: pre_rd = [W("vm", "poll")] + poll_check("K_POLL4", PL3, 4, pl3)
        if k >= 1: pre_mf = [W("vm", f"a{k}")] + (st(f"a{k}") if k in (1, 2, 4, 7) else [])
        return pre_rd, pre_mf
    o += gpass(hook0, waits0)
    o += [W("lg", "fr")]
    ex = L(f"""
    s_lshr_b32 s{t0}, s{sW}, 1
    s_lshl_b32 s{t0}, s{t0}, 2
    s_and_b32 s{t1}, s{sW}, 1
    s_add_u32 s{t0}, s{t0}, s{t1}
    s_mul_i32 s{t0}, s{t0}, 2080
    s_add_u32 s{t0}, s{t0}, {SCR}
    v_lshl_add_u32 v4, v{vQ}, 6, v{vN}
    v_lshl_add_u32 v6, v4, 3, s{t0}
    v_sub_u32 v4, 208, v4
    s_add_u32 s{t0}, s{t0}, {2*2080}
    v_lshl_add_u32 v7, v4, 3, s{t0}
    v_and_b32 v4, 3, v{vL}
    v_lshrrev_b32 v5, 2, v{vL}
    s_lshl_b32 s{t1}, s{sW}, 4
    v_add_u32 v5, s{t1}, v5
    v_mul_u32_u24 v9, 4160, v4
    v_lshl_add_u32 v9, v5, 3, v9
    v_add_u32 v9, {SCR}, v9
    v_and_b32 v4, 1, v4
    v_lshlrev_b32 v4, 11, v4
    v_cmp_eq_u32 vcc, 0, v5
    v_cndmask_b32 v4, 0, v4, vcc
    v_add_u32 v8, v9, v4
    s_lshl_b32 s{t0}, s2, 14
    s_add_u32 s{t0}, s{t0}, s{sM0}
    s_add_u32 s{t0}, s{t0}, {WS_PART}
    """)
    o += spread(mfmas2(7, 3), ex)
    o += st("p0")
    PO = 200
    for i in range(4):
        for tau in range(2):
            for h in range(2):
                o += L(f"v_cvt_pk_bf16_f32 v{PO+i*4+tau*2+h}, v{ac2(tau,2*h)+i}, v{ac2(tau,2*h+1)+i}")
        o += L(f"buffer_store_dwordx4 {vr(PO+i*4,4)}, v{vL16}, {wsr}, s{t0} offen offset:{1024*i} sc1", tag="st4")
    o += [W("vm", "y")]
    o += st("ywait")
    for rho in range(4):
        for h in range(2):
            o += L(f"ds_write_b64 v{8 if rho == 0 else 9}, {vr(YL+4*rho+2*h,2)} offset:{h*2080 + rho*512}", tag="yw")
    o += [W("lg", "yw")] + L("s_barrier")
    AO = YL
    for e in range(2):
        for mu in range(2):
            for h in range(2):
                o0, o1 = (64*h + e, 64*h + 32 + e) if mu == 0 else (96 - 64*h + e, 64 - 64*h + e)
                o += L(f"ds_read2_b32 {vr(AO+(e*2+mu)*4+2*h,2)}, v{6+mu} offset0:{o0} offset1:{o1}", tag=f"yr{e}")
    o += CKEEP[3]
    DA = AC2
    da = lambda e, tp, part: DA + ((e*2 + tp)*2 + part)*4
    mA = []
    for e in range(2):
        mA.append(W("lg", f"yr{e}"))
        for mu in range(2):
            for tp in range(2):
                for part in range(2):
                    d = vr(da(e, tp, part), 4)
                    mA += L(f"{MF} {d}, {vr(AO+(e*2+mu)*4,4)}, {ar(fa(tp,mu,part),4)}, {'0' if mu == 0 else d}")
    XU = 216
    xu = lambda e, tp, part: XU + ((e*2 + tp)*2 + part)*4
    unp = []
    for e in range(2):
        for tp in range(2):
            for i in range(4):
                unp += L(f"v_lshlrev_b32 v{xu(e,tp,0)+i}, 16, v{SK+(e*2+tp)*4+i}\n v_and_b32 v{xu(e,tp,1)+i}, 0xffff0000, v{SK+(e*2+tp)*4+i}")
    o += spread(mA, (unp, 1, 17))
    TP, T0 = BF, BF + 16
    ri = []
    for e in range(2):
        for tp in range(2):
            for h in range(2):
                re, im = da(e,tp,0) + 2*h, da(e,tp,1) + 2*h
                cs, sn = TW + tp*4 + 2*h, TW + 8 + tp*4 + 2*h
                tr, ti = T0 + 4*h, T0 + 4*h + 2
                ri += [pk("mul", tr, re, cs), pk("mul", ti, im, cs), pk("fma", tr, im, sn, tr), pk("fma", ti, re, sn, ti, neg=[1,0,0])]
            for i in range(4):
                ri += L(f"v_cvt_pk_bf16_f32 v{TP+(e*2+tp)*4+i}, v{T0+4*(i>>1)+(i&1)}, v{T0+4*(i>>1)+2+(i&1)}")
    o += ri
    mB = []
    for e in range(2):
        for tp in range(2):
            for part in range(2):
                mB += L(f"{MF} {vr(da(e,tp,part),4)}, {vr(FB+4*part,4)}, {vr(TP+(e*2+tp)*4,4)}, 0")
    o += spread(mB, L(f"v_lshlrev_b32 v4, 16, v{vQ}\n v_lshl_add_u32 v4, v{vN}, 4, v4") + CKEEP[4])
    CO = YL
    for h in range(2):
        for e in range(2):
            for tp in range(2):
                for part in range(2):
                    o.append(pk("fma", xu(e,tp,part)+2*h, da(e,tp,part)+2*h, GG, xu(e,tp,part)+2*h, sel="p" + "lh"[e] + "p", neg=[part, 0, 0]))
        for i in (2*h, 2*h + 1):
            for e in range(2):
                for tp in range(2):
                    o += L(f"v_cvt_pk_bf16_f32 v{CO+i*4+e*2+tp}, v{xu(e,tp,0)+i}, v{xu(e,tp,1)+i}")
            o += L(f"buffer_store_dwordx4 {vr(CO+i*4,4)}, v4, {wsr}, s75 offen sc1", tag="st4")
            if i < 3: o += L(f"s_add_u32 s75, s75, 16384")
    o += st("ri")
    CB, PB, OM, CU = 96, 112, 128, 184
    pl4 = f"buffer_load_dword v4, v5, {wsr}, s{u0} offen sc1"
    SIG4, POLL4, CHK4 = 3, 5, 7
    def hook1(k):
        r = []
        if k < 3: r = CKEEP[5 + k]
        if k == SIG4:
            r = L(f"s_lshl_b32 s{u0}, s{sC}, 7\n s_add_u32 s{u0}, s{u0}, {WS_FL4}\n s_lshl_b32 s{u1}, s{sJ}, 2\n s_add_u32 s{u1}, s{u1}, s{u0}") + signal(u1, "fl") + L(f"v_lshlrev_b32 v5, 2, v{vN}")
        if k == POLL4: r = [I("s_nop 0")] * 3 + L(pl4, tag="poll")
        if k == CHK4:
            r = L(f"""
            s_lshl_b32 s{u0}, s{sC}, 4
            s_add_u32 s{u0}, s{u0}, s92
            s_lshl_b32 s{u0}, s{u0}, 14
            s_add_u32 s{u0}, s{u0}, s{sM0}
            s_add_u32 s{u0}, s{u0}, {WS_COMB}
            s_xor_b32 s{u2}, s2, 4
            s_lshl_b32 s{u2}, s{u2}, 14
            s_add_u32 s{u2}, s{u2}, s{sM0}
            s_add_u32 s{u2}, s{u2}, {WS_PART}
            """)
            for i in range(4):
                r += L(f"buffer_load_dwordx4 {vr(CB+4*i,4)}, v{vL16}, {wsr}, s{u0} offen offset:{1024*i} sc1\n buffer_load_dwordx4 {vr(PB+4*i,4)}, v{vL16}, {wsr}, s{u2} offen offset:{1024*i} sc1", tag=f"cb{i}")
            r += [I("s_nop 0")] * 20
        if k == 4:
            r = L(f"s_lshl_b32 s{u1}, s{sC}, 2\n s_add_u32 s{u1}, s{u1}, s{sW}\n s_lshl_b32 s{u1}, s{u1}, 7\n s_add_u32 s{u1}, s{u1}, {WS_OMG}\n v_lshlrev_b32 v7, 5, v{vQ}")
            for h in range(2): r += L(f"buffer_load_dwordx4 {vr(OM+4*h,4)}, v7, {wsr}, s{u1} offen offset:{16*h} sc1", tag="om")
        return r
    def waits1(k):
        pre = []
        if k == 0: pre = [W("vm", "ck2")] + L("s_barrier")
        if k == 3: pre = [W("vm", "ck4"), W("vm", "st4")] + L("s_barrier")
        if k == 5: pre = [W("vm", "ck7")] + L("s_barrier")
        if k == CHK4: pre = [W("vm", "poll")] + poll_check("K_POLL5", 4, 1, pl4)
        if k in (0, 3, 5, 7): pre += st(f"k{k}")
        return pre, []
    body = gpass(hook1, waits1)
    o += [x for x in body if x.t != "s_nop 0"]
    o += [W("lg", "fr")]
    ex = L(f"""
    s_lshl_b32 s{t0}, s{sC}, 7
    s_and_b32 s{t1}, s{sW}, 1
    s_lshl_b32 s{t1}, s{t1}, 6
    s_add_u32 s{t0}, s{t0}, s{t1}
    s_lshr_b32 s{t1}, s{sW}, 1
    s_lshl_b32 s{t1}, s{t1}, 4
    s_add_u32 s{t0}, s{t0}, s{t1}
    s_lshl_b32 s{t0}, s{t0}, 12
    s_lshl_b32 s{t1}, s92, 8
    s_add_u32 s{t0}, s{t0}, s{t1}
    v_lshlrev_b32 v4, 14, v{vQ}
    v_lshl_add_u32 v4, v{vN}, 4, v4
    """)
    o += spread(mfmas2(7, 3), ex)
    o += st("p1")
    for i in range(4):
        o += [W("vm", f"cb{i}")]
        if i == 0: o += st("cbwait")
        for tau in range(2):
            d = CU + (i*2 + tau)*4
            for h in range(2):
                o += L(f"""
                v_lshlrev_b32 v6, 16, v{PB+4*i+2*tau+h}
                v_and_b32 v7, 0xffff0000, v{PB+4*i+2*tau+h}
                v_lshlrev_b32 v{d+2*h}, 16, v{CB+4*i+2*tau+h}
                v_and_b32 v{d+2*h+1}, 0xffff0000, v{CB+4*i+2*tau+h}
                v_add_f32 v6, v6, v{ac2(tau,2*h)+i}
                v_add_f32 v7, v7, v{ac2(tau,2*h+1)+i}
                v_fmac_f32 v{d+2*h}, v6, v{OM+2*i+tau}
                v_fmac_f32 v{d+2*h+1}, v7, v{OM+2*i+tau}
                """)
            o += L(f"s_add_u32 s{t1}, s{t0}, {(32*tau + i)*4096}") if (tau or i) else L(f"s_mov_b32 s{t1}, s{t0}")
            o += L(f"buffer_store_dwordx4 {vr(d,4)}, v4, s[{OUT_}:{OUT_+3}], s{t1} offen {P.get('outfl', '')}", tag="ost")
    o += st("ost")
    if diag:
        o += L("s_waitcnt vmcnt(0)") + st("drain") + st.real("rt1")
        o += L(f"s_lshl_b32 s3, s2, 2\n s_add_u32 s3, s3, s{sW}\n s_lshl_b32 s3, s3, 8\n s_add_u32 s3, s3, {WS_STAMP}\n v_lshlrev_b32 v4, 2, v{vL}\n buffer_store_dword v{vST}, v4, {wsr}, s3 offen")
    o += L("K_END:\n s_endpgm\n K_CODE_END:")
    return dict(name=KNAME, body=finish(o), grid=256, block=256, lds=163840, vgpr=256, agpr=256, sgpr=100), st.names

def build(diag=False, hdbg=False, P=None, single=True):
    k, names = kernel(diag, hdbg, P)
    txt = build_file([k], extra_comments=(["stamps: " + " ".join(names)] if diag else []) + (["hdbg"] if hdbg else []))
    if single: txt = txt.replace(f"@launch kernel={KNAME} ", "@launch ")
    return txt

if __name__ == "__main__":
    P = {}
    for a in sys.argv[1:]:
        if a.startswith("-P"):
            k, v = a[2:].split("="); P[k] = int(v) if v.lstrip("-").isdigit() else v
    out = [a for a in sys.argv[1:] if not a.startswith("-")]
    open(out[0] if out else "k.s", "w").write(build("--diag" in sys.argv, "--hdbg" in sys.argv, P, "--list" not in sys.argv))
```

```python
import re, subprocess, struct

def vr(a, n=1): return f"v{a}" if n == 1 else f"v[{a}:{a+n-1}]"
def ar(a, n=1): return f"a{a}" if n == 1 else f"a[{a}:{a+n-1}]"
def sr(a, n=1): return f"s{a}" if n == 1 else f"s[{a}:{a+n-1}]"
def fbits(x): return "0x%08x" % struct.unpack("<I", struct.pack("<f", x))[0]

class I:
    __slots__ = ("t", "tag", "maybe", "gid")
    def __init__(self, t, tag=None, maybe=False, gid=0):
        self.t = t; self.tag = tag; self.maybe = maybe; self.gid = gid
    def __repr__(self): return self.t

def W(kind, tag):
    return I(f"@wait {kind} {tag}")

_gid = [0]
def L(text, tag=None, maybe=False, glue=True):
    out = []
    _gid[0] += 1
    for line in text.split("\n"):
        line = line.split(";")[0].strip()
        if not line: continue
        if glue and out and line.startswith(("s_cselect", "s_addc", "s_cbranch_scc")) and out[-1].t.startswith(("s_cmp", "s_add_u32", "s_bitcmp")):
            out[-1].t += "\n" + line
        else: out.append(I(line, tag, maybe, _gid[0]))
    return out

_REG = re.compile(r"^(-|\|)?(?:abs\()?([vas])(?:(\d+)|\[(\d+):(\d+)\])\)?\|?$")
def regs(op):
    op = op.strip()
    if op in ("vcc",): return {("s", 106), ("s", 107)}
    if op == "vcc_lo": return {("s", 106)}
    if op == "vcc_hi": return {("s", 107)}
    if op == "m0": return {("s", 124)}
    if op == "exec": return {("s", 126), ("s", 127)}
    m = _REG.match(op)
    if not m: return set()
    k = m.group(2)
    if m.group(3) is not None: return {(k, int(m.group(3)))}
    return {(k, i) for i in range(int(m.group(4)), int(m.group(5)) + 1)}

TRANS = ("v_exp_f32", "v_log_f32", "v_rcp_f32", "v_rsq_f32", "v_sqrt_f32", "v_sin_f32", "v_cos_f32")
class P:
    def __init__(self, t):
        self.t = t
        sp = t.split(None, 1)
        mn = self.mn = sp[0]
        rest = sp[1] if len(sp) > 1 else ""
        ops = [o.strip() for o in rest.split(",")] if rest else []
        fixed = []; depth = 0
        for o in ops:
            if depth > 0: fixed[-1] += "," + o
            else: fixed.append(o)
            depth += o.count("[") - o.count("]")
        self.mods = ""
        if fixed:
            last = fixed[-1].split(None, 1)
            fixed[-1] = last[0]; self.mods = last[1] if len(last) > 1 else ""
        self.ops = fixed
        R = [regs(o) for o in fixed]
        U = lambda xs: set().union(*xs) if xs else set()
        self.d = set(); self.s = set(); self.ab = set(); self.c = set(); self.cls = "other"; self.passes = 0
        if mn.startswith("v_mfma"):
            self.cls = "mfma"; self.d = R[0]; self.ab = R[1] | R[2]; self.c = R[3]; self.s = self.ab | self.c
            self.passes = 8 if "32x32" in mn else 4
        elif mn.startswith("v_"):
            self.cls = "valu"
            if "swap" in mn: self.d = U(R); self.s = U(R)
            elif mn == "v_nop": pass
            else:
                self.d = R[0]; self.s = U(R[1:])
                if mn.startswith(("v_fmac", "v_pk_fmac", "v_dot2c", "v_writelane")) or ("dpp" in mn) : self.s |= R[0]
        elif mn.startswith(("buffer_", "global_")):
            self.cls = "vmem"
            lds = " lds" in (" " + self.mods) or "_lds_" in mn
            if "load" in mn and not lds: self.d = R[0]; self.s = U(R[1:])
            else: self.s = U(R)
            if lds: self.s |= {("s", 124)}
            self.lds = lds
            self.wide_store = ("store" in mn) and ("x3" in mn or "x4" in mn)
            if self.wide_store: self.sdata = R[0] if mn.startswith("buffer_") else R[1]
        elif mn.startswith("ds_"):
            self.cls = "ds"
            if mn.startswith(("ds_read", "ds_bpermute", "ds_permute", "ds_swizzle")): self.d = R[0]; self.s = U(R[1:])
            else: self.s = U(R)
        elif mn.startswith("s_"):
            self.cls = "salu"
            if mn.startswith(("s_load", "s_memtime", "s_memrealtime")): self.cls = "smem"
            if mn.startswith(("s_cmp", "s_waitcnt", "s_barrier", "s_nop", "s_cbranch", "s_branch", "s_endpgm", "s_sleep", "s_setprio", "s_bitcmp")):
                self.s = U(R)
            else:
                self.d = R[0] if R else set(); self.s = U(R[1:])
                if "saveexec" in mn: self.d |= regs("exec")
        self.trans = mn.replace("_e32", "").replace("_e64", "") in TRANS
        self.dpp = any(k in self.mods for k in ("quad_perm", "row_", "wave_", "dpp"))
        self.dot = mn.startswith("v_dot")
        self.states = int(fixed[0], 0) + 1 if mn == "s_nop" else 1

def need(p, c):
    n = 0
    V = lambda s: {r for r in s if r[0] in "va"}
    S = lambda s: {r for r in s if r[0] == "s"}
    if p.cls == "valu":
        vd = V(p.d); sd = S(p.d)
        if c.cls == "mfma" and vd & c.s: n = max(n, 2)
        if c.cls == "valu":
            if p.trans and vd & c.s: n = max(n, 1)
            if c.mn.startswith(("v_readlane", "v_readfirstlane")) and vd & c.s: n = max(n, 1)
            if (c.dpp or c.mn.startswith("v_permlane")) and vd & c.s: n = max(n, 2)
            if sd & c.s: n = max(n, 4 if c.mn.startswith(("v_readlane", "v_writelane")) else 2)
            if p.dot and vd & (c.s | c.d):
                if not (c.mn == p.mn and not (vd & (regs(c.ops[1]) | regs(c.ops[2])))): n = max(n, 3)
        if p.trans and c.cls in ("vmem", "ds") and vd & c.s: n = max(n, 1)
        if p.dot and c.cls in ("vmem", "ds", "mfma") and vd & c.s: n = max(n, 3)
        if c.cls == "vmem" and sd & c.s: n = max(n, 5)
        if c.cls in ("salu", "smem") and sd & c.s: n = max(n, 1)
        if c.mn.startswith("s_cbranch_vcc") and sd & regs("vcc"): n = max(n, 1)
    if p.cls == "mfma":
        k = {4: (6, 8, 3), 8: (10, 12, 7)}[p.passes]
        if c.cls == "mfma":
            if p.d & c.ab: n = max(n, k[1])
            if p.d & c.c and not (p.d == c.c and p.passes == c.passes): n = max(n, k[0])
            if p.d & c.d and not (p.d == c.c): n = max(n, k[0])
        elif c.cls in ("valu", "vmem", "ds"):
            if p.d & (c.s | c.d): n = max(n, k[1])
            if c.cls == "valu" and p.c & c.d: n = max(n, k[2])
    if p.cls == "salu" and ("s", 124) in p.d and c.cls == "vmem" and getattr(c, "lds", False): n = max(n, 1)
    if p.cls == "vmem" and getattr(p, "wide_store", False) and p.sdata & c.d: n = max(n, 2)
    return n

def resolve_waits(ins):
    out = []; vm = []; lg = []
    def emit(kind, n):
        name = "vmcnt" if kind == "vm" else "lgkmcnt"
        if out and out[-1].t.startswith("s_waitcnt") and name not in out[-1].t:
            out[-1] = I(out[-1].t + f" {name}({n})")
        elif out and out[-1].t.startswith("s_waitcnt") and name in out[-1].t:
            old = int(re.search(name + r"\((\d+)\)", out[-1].t).group(1))
            out[-1] = I(re.sub(name + r"\(\d+\)", f"{name}({min(old, n)})", out[-1].t))
        else: out.append(I(f"s_waitcnt {name}({n})"))
    for x in ins:
        t = x.t
        if t.startswith("@wait"):
            _, kind, tag = t.split()
            q = vm if kind == "vm" else lg
            idx = [i for i, e in enumerate(q) if e[0] == tag or tag == "*"]
            if not idx: continue
            last = idx[-1]
            n = sum(1 for e in q[last + 1:] if not e[1])
            if kind == "lg" and any(e[2] for e in q): n = 0
            cap = 63 if kind == "vm" else 15
            n = min(n, cap)
            emit(kind, n)
            if n == 0: del q[:]
            else: del q[:last + 1]
            continue
        mn = t.split()[0]
        if mn.startswith(("buffer_", "global_")): vm.append((x.tag, x.maybe, False))
        elif mn.startswith("ds_"): lg.append((x.tag, x.maybe, False))
        elif mn.startswith(("s_load", "s_memtime", "s_memrealtime")): lg.append((x.tag, x.maybe, True))
        elif mn == "s_waitcnt" and not x.maybe:
            if "vmcnt(0)" in t: del vm[:]
            if "lgkmcnt(0)" in t: del lg[:]
        out.append(x)
    return out

def pad_hazards(ins):
    out = []; hist = []
    nn = 0
    for x in ins:
        t = x.t
        if t.endswith(":") or t.startswith("."):
            out.append(x); continue
        c = P(t)
        dist = 0; req = 0
        for p in reversed(hist):
            if dist >= 13: break
            r = need(p, c) - dist
            if r > req: req = r
            dist += p.states
        if req > 0:
            nop = I(f"s_nop {req-1}"); out.append(nop); hist.append(P(nop.t)); nn += 1
        out.append(x); hist.append(c)
        if len(hist) > 40: del hist[:20]
    return out

def sizes(ins):
    src = "\n".join(x.t for x in ins) + "\n"
    if "K_CODE_END" in src and "K_CODE_END:" not in src: src += "K_CODE_END:\n"
    r = subprocess.run(["llvm-mc", "-triple=amdgcn-amd-amdhsa", "-mcpu=gfx950", "-show-encoding"], input=src, capture_output=True, text=True)
    if r.returncode:
        lines = src.split("\n")
        msg = r.stderr[:3000]
        raise SystemExit("assembly error:\n" + msg)
    enc = [l for l in r.stdout.split("\n") if "encoding:" in l]
    sz = [len(re.search(r"encoding: \[(.*?)\]", l).group(1).split(",")) for l in enc]
    names = [l.split()[0] for l in enc]
    return sz, names

def align8(ins, minrun=4):
    real = [i for i, x in enumerate(ins) if not (x.t.endswith(":") or x.t.startswith("."))]
    sz, names = sizes(ins)
    assert len(sz) == len(real), (len(sz), len(real))
    out = list(ins); inserts = []
    off = 0; k = 0; n = len(real)
    last4 = None
    while k < n:
        if sz[k] % 8 == 4:
            off ^= 4
            ok = sz[k] == 4 and names[k].endswith("_e32") and not names[k].startswith(("v_readfirstlane", "v_accvgpr", "v_permlane", "v_swap", "v_fmac", "v_nop"))
            last4 = k if ok else None
            k += 1; continue
        run = 0
        while k + run < n and sz[k + run] % 8 == 0: run += 1
        if off:
            if last4 is not None and last4 == k - 1:
                t = out[real[last4]].t.split(None, 1)
                mn = t[0].replace("_e32", "") + "_e64"
                o = out[real[last4]]
                out[real[last4]] = I(mn + " " + t[1], o.tag, o.maybe); off = 0
            elif run >= minrun:
                inserts.append(real[k]); off = 0
        k += run; last4 = None
    for i in reversed(inserts): out.insert(i, I("s_nop 0"))
    return out

NO_SCC = ("s_mov", "s_movk", "s_cselect", "s_mul_i32", "s_mul_hi", "s_waitcnt", "s_barrier", "s_nop", "s_cbranch", "s_branch", "s_load", "s_memtime",
          "s_memrealtime", "s_getpc", "s_sleep", "s_setprio", "s_endpgm", "s_getreg")
def check_flags(ins, verbose=False):
    scc = vcc = None
    for x in ins:
        t = x.t
        if t.startswith("@") or t.endswith(":") or t.startswith("."): continue
        mn = t.split()[0]
        if mn.startswith(("s_cselect", "s_cbranch_scc", "s_addc")):
            ok = scc is not None and scc.gid == x.gid and scc.t.startswith("s_add_u32" if mn.startswith("s_addc") else ("s_cmp", "s_bitcmp"))
            assert ok, f"SCC: {t} sees {scc}"
        if (mn.startswith("v_cndmask") and t.rstrip().endswith("vcc")) or mn.startswith("s_cbranch_vcc"):
            if vcc.gid != x.gid:
                assert 0 < x.gid - vcc.gid <= 12, f"VCC: {t} sees {vcc}"
                if verbose: print("vcc across blocks:", vcc, "->", t)
        if mn.startswith("s_") and not mn.startswith(NO_SCC): scc = x
        if mn.startswith("v_cmp") and " vcc," in t: vcc = x

def expand(ins):
    out = []
    for x in ins:
        if "\n" in x.t:
            e = L(x.t, x.tag, x.maybe, glue=False)
            if x.gid:
                for y in e: y.gid = x.gid
            out += e
        else: out.append(x)
    return out

def finish(ins, tail=(), align=True):
    ins = expand(ins); tail = expand(tail)
    check_flags(ins + tail, bool(__import__("os").environ.get("KBV")))
    assert not any(x.t.startswith("@") for x in tail)
    ins = resolve_waits(ins) + list(tail)
    ins = pad_hazards(ins)
    if align: ins = align8(ins)
    return "\n".join((x.t if x.t.endswith(":") else "    " + x.t) for x in ins) + "\n"

def weave(main, fill, per=None, start=0):
    out = []; n = len(main); m = len(fill); j = 0
    for i, x in enumerate(main):
        out.append(x)
        if per is None: tgt = (i + 1) * m // n
        else: tgt = m if i == n - 1 else min(m, max(0, (i + 1 - start)) * per)
        while j < tgt:
            out.append(fill[j]); j += 1
    return out

def zip2(a, b):
    out = []
    for i in range(max(len(a), len(b))):
        if i < len(a): out.append(a[i])
        if i < len(b): out.append(b[i])
    return out
```

```python
import sys, os
sys.path.insert(0, os.path.dirname(os.path.abspath(__file__)))
from kb import *
from asmlib import build_file

KNAME = "gated_mix__spectral_gfnet__ssm_conv_s5__prompt_kernel"
MF = "v_mfma_f32_16x16x32_bf16"
HASH_A, HASH_B = 0x9E3779B1, 0x7F4A7C15
SPIN = 200000
ZS = 32768
YS = 16384
WS_Z = 0
WS_W256 = 0
WS_Y = 9 << 20
WS_COMB = 13 << 20
WS_PART = 17 << 20
WS_AGG = 21 << 20
WS_OMG = WS_AGG + (256 << 10)
WS_FL1 = WS_OMG + (16 << 10)
WS_FL2 = WS_FL1 + 4096
WS_FL3 = WS_FL2 + 4096
WS_FL4 = WS_FL3 + 4096
WS_FL5 = WS_FL4 + 16384
WS_NONCE = WS_FL5 + 16384
WS_STAMP = 22 << 20
WS_HDBG = 24 << 20
WS_SIZE = 32 << 20
LOG2E = 1.4426950408889634

def srd(d, lo, size):
    return L(f"s_mov_b64 s[{d}:{d+1}], s[{lo}:{lo+1}]\n s_mov_b32 s{d+2}, {size}\n s_mov_b32 s{d+3}, 0x00020000")

def pk(op, d, a, b, c=None, sel=None, neg=None):
    srcs = [a, b] + ([c] if c is not None else [])
    txt = [x if isinstance(x, str) else vr(x, 2) for x in srcs]
    n = len(srcs); sel = sel or "p" * n; neg = neg or [0] * n
    lo = [1 if k == "h" else 0 for k in sel]; hi = [0 if k == "l" else 1 for k in sel]
    f = lambda v: "[" + ",".join(map(str, v)) + "]"
    t = f"v_pk_{op}_f32 {vr(d,2)}, " + ", ".join(txt)
    if any(lo): t += f" op_sel:{f(lo)}"
    if not all(hi): t += f" op_sel_hi:{f(hi)}"
    if any(neg): t += f" neg_lo:{f(neg)} neg_hi:{f(neg)}"
    return I(t)

def cmul1(dr, di, ar_, ai, br, bi, cr=None, ci=None):
    if cr is None:
        return L(f"v_mul_f32 v{dr}, v{ar_}, v{br}\n v_mul_f32 v{di}, v{ar_}, v{bi}\n v_fma_f32 v{dr}, -v{ai}, v{bi}, v{dr}\n v_fma_f32 v{di}, v{ai}, v{br}, v{di}")
    return L(f"v_fma_f32 v{dr}, v{ar_}, v{br}, v{cr}\n v_fma_f32 v{di}, v{ar_}, v{bi}, v{ci}\n v_fma_f32 v{dr}, -v{ai}, v{bi}, v{dr}\n v_fma_f32 v{di}, v{ai}, v{br}, v{di}")

def twid(re, im, cs, sn, tr, ti, sel="p", sel2=None):
    s2 = sel2 or sel
    return [pk("mul", tr, re, cs, sel="p" + sel), pk("mul", ti, im, cs, sel="p" + sel),
            pk("fma", tr, im, sn, tr, sel="p" + s2 + "p"), pk("fma", ti, re, sn, ti, sel="p" + s2 + "p", neg=[1, 0, 0])]

def angles(step, base, ks, an, cs, sn):
    r = []
    for k, a in zip(ks, an): r += L(f"v_fmamk_f32 v{a}, v{step}, {fbits(k)}, v{base}")
    for a, c in zip(an, cs): r += L(f"v_cos_f32 v{c}, v{a}")
    for a, s in zip(an, sn): r += L(f"v_sin_f32 v{s}, v{a}")
    return r

class Stamps:
    def __init__(self, on, reg, only=None): self.on = on; self.reg = reg; self.names = []; self.only = only
    def _s(self, name, op):
        if not self.on: return []
        if self.only and not (name.startswith(self.only) or name in ("rt0", "start", "drain", "rt1")): return []
        if not self.only and name.startswith("@"): return []
        n = len(self.names); self.names.append(name); assert n < 64
        return L(f"{op} s[64:65]", tag="stamp") + [W("lg", "*")] + L(f"v_writelane_b32 v{self.reg}, s64, {n}")
    def __call__(self, name): return self._s(name, "s_memrealtime" if self.on == 2 else "s_memtime")
    def real(self, name): return self._s(name, "s_memrealtime")

def scout(ng, lead):
    T = []; nb = 16 // ng
    for g in range(ng):
        o = [g]
        for b in range(nb):
            hits = [ng * b + (g + k) % ng for k in range(1, ng)]
            if b + 1 < nb: hits.insert(min(len(hits), lead(g)), ng * (b + 1) + g)
            o += hits
        T.append(o)
    return T

def spread(main, *streams):
    n = len(main); out = []; st = []
    for s in streams:
        if isinstance(s, tuple): st.append([s[0], min(s[1], n - 1), min(s[2], n - 1), 0])
        else: st.append([s, 0, n - 1, 0])
    for g, x in enumerate(main):
        out.append(x)
        for s in st:
            lst, a, b, j = s
            if g < a: continue
            tgt = len(lst) if g >= b else -(-(g - a + 1) * len(lst) // (b - a + 1))
            out += lst[j:tgt]; s[3] = max(j, tgt)
    return out

def take(lst, n):
    r = lst[:n]; del lst[:n]; return r

DEFAULTS = dict(xx=1, lead=0, zit=13, sig1=7, poll1=12, st0=3, stn=8, local=1, slp=2, wtit=1, nd0=10, ng0=150, pd1=0.0, pd1e=1.0,
                touchs="no", touchk="fx0", cmf=0, c13=0, c14=1, c15=1, ctw=1, cmd=1, ccm=2, cfx=0, ch=1, cmb=1, lb0=30, prew=0, ckfl="nt", cpf=10, cpf2=4, d0first=0, d0e=110, rfr=-1, lfl="sc1", once="sc1_nt",
                outfl="", ydef=0, sig3=2, poll3=6, chk3=7, sig4=3, poll4=23, chk4=28, poll5=15, chk5=20)

def kernel(diag=False, hdbg=False, P=None):
    P = dict(DEFAULTS, **(P or {}))
    for k in ("once", "outfl", "lfl"): P[k] = P[k].replace("_", " ")
    o = []
    vST = 31
    st = Stamps(diag, vST, P.get("only"))
    X, BS, WR, WI, WS, TMPS = 8, 12, 16, 20, 24, 28
    CS, OUT_ = 16, 28
    osr = f"s[{OUT_}:{OUT_+3}]"
    sPI, sSL = 4, 5
    vF = 24
    sC, sJ, sW, sT, sK, sM0 = 32, 33, 34, 35, 36, 37
    t0, t1, t2, t3 = 38, 39, 40, 41
    sCT = 42
    sN, sKT = 62, 66
    u0, u1, u2, u3 = 68, 69, 70, 71
    sCK, sA, sA2, sCOMB = 72, 73, 74, 75
    f0, f1 = 76, 77
    sNT, sLBA, sHT, sHB, sXC, sPT, sE, sO = 92, 93, 94, 95, 96, 97, 98, 99
    sLOC, sFL2, sW16, sAH = 50, 51, 63, 6
    sNLOC = 7
    SCR = 131072
    HB = WS_HDBG if hdbg else WS_Z
    vL, vN, vQ, vL16 = 0, 1, 2, 3
    vDA, vDB, vRA, vRB, vRH = 16, 20, 24, 26, 148
    ACC = 32
    TWF, TWI = 96, 112
    LAM, COEF, L16, L32, L128, L32Q, L512Q = 128, 130, 132, 134, 136, 138, 140
    SA_R, SA_I, PFX = 142, 144, 146
    WU, WK = 152, 184
    aGC, aFR, aSV, aW2, aTW, aS, aAD = 0, 32, 112, 120, 136, 152, 170
    aF1, aFA, aNA, aF2 = 224, 232, 240, 248
    acc = lambda tau, part: ACC + (tau * 2 + part) * 4
    wsr = f"s[{WS}:{WS+3}]"
    vONE = 30

    def signal(addr_sreg, flags="sc1", val=None):
        return L(f"v_mov_b32 v28, s{val or sT}") + L(f"buffer_store_dword v28, v{vONE}, {wsr}, s{addr_sreg} offen {flags}", tag="fl")

    def poll_check(name, reg, sexp, load):
        r = L(f"v_cmp_ne_u32 vcc, s{sexp}, v{reg}\n s_cbranch_vccnz {name}\n {name}_OK:")
        tail.extend(L(f"""
        {name}:
        s_mov_b32 s{u3}, 0
        {name}_L:
        s_sleep {P['slp']}
        {load}
        s_add_u32 s{u3}, s{u3}, 1
        s_waitcnt vmcnt(0)
        v_cmp_ne_u32 vcc, s{sexp}, v{reg}
        s_cbranch_vccz {name}_OK
        s_cmp_lt_u32 s{u3}, {SPIN}
        s_cbranch_scc1 {name}_L
        s_branch {name}_OK
        """))
        return r
    tail = []

    if diag: o += L("s_memrealtime s[100:101]", tag="stamp")
    o += L(f"s_load_dwordx2 s[{X}:{X+1}], s[0:1], 0\n s_load_dwordx2 s[60:61], s[0:1], 120", tag="ka")
    o += L(f"""
    s_cmp_ge_u32 s2, 256
    s_cbranch_scc1 K_END
    s_getpc_b64 s[{TMPS}:{TMPS+1}]
    K_PC:
    s_mov_b32 s{TMPS+2}, K_CODE_END-K_PC
    s_mov_b32 s{TMPS+3}, 0x00020000
    s_bfe_u32 s{t0}, s2, 0x30003
    s_lshl_b32 s{t0}, s{t0}, 13
    v_lshl_add_u32 v4, v0, 5, s{t0}
    v_lshrrev_b32 v3, 6, v0
    """)
    o += L(f"buffer_load_dword v255, v4, s[{TMPS}:{TMPS+3}], 0 offen", tag="pf")
    o += L("""
    s_load_dwordx8 s[52:59], s[0:1], 32
    s_load_dwordx4 s[44:47], s[0:1], 8
    s_load_dwordx8 s[80:87], s[0:1], 64
    s_load_dwordx4 s[88:91], s[0:1], 96
    """, tag="ka")
    o += L(f"""
    v_readfirstlane_b32 s{sW}, v3
    v_and_b32 v{vN}, 15, v0
    v_bfe_u32 v{vQ}, v0, 4, 2
    s_and_b32 s{t0}, s2, 3
    s_bfe_u32 s{t1}, s2, 0x20003
    s_lshl2_add_u32 s{sC}, s{t0}, s{t1}
    s_bfe_u32 s{t0}, s2, 0x10002
    s_lshr_b32 s{t1}, s2, 5
    s_lshl3_add_u32 s{sJ}, s{t0}, s{t1}
    s_and_b32 s{sAH}, s{sW}, 1
    s_lshr_b32 s{t3}, s{sW}, 1
    s_lshl1_add_u32 s{t0}, s{sC}, s{sAH}
    s_lshl_b32 s{t0}, s{t0}, 5
    s_add_u32 s{t0}, s{t0}, s{sJ}
    s_lshl1_add_u32 s{u0}, s{t0}, s{t3}
    s_lshl_b32 s{u0}, s{u0}, 11
    s_add_u32 s{u1}, s{u0}, 65536
    v_lshlrev_b32 v5, 9, v{vQ}
    v_lshl_add_u32 v29, v{vN}, 3, v5
    s_mov_b32 s{X+2}, 0x400000
    s_mov_b32 s{X+3}, s{TMPS+3}
    """)
    o += [W("lg", "ka")]
    if diag:
        st.names.append("rt0"); o += L(f"v_writelane_b32 v{vST}, s100, 0") + st("ka")
    pr2 = L(f"""
    v_cmp_eq_u32 vcc, 0, v0
    s_lshl4_add_u32 s{sPI}, s{sC}, s{sJ}
    s_lshl_b32 s{sM0}, s{sW}, 12
    v_cndmask_b32 v{vONE}, 2.0, v0, vcc
    v_and_b32 v{vL}, 63, v0
    v_lshlrev_b32 v{vL16}, 4, v{vL}
    s_lshl_b32 s{sW16}, s{sW}, 4
    s_lshl2_add_u32 s{sHT}, s{sAH}, s{t3}
    v_and_b32 v6, 7, v{vL}
    v_xor_b32 v6, v6, v{vQ}
    v_lshlrev_b32 v6, 4, v6
    v_and_b32 v8, 32, v{vL}
    v_bfe_u32 v9, v{vL}, 3, 1
    v_lshl_add_u32 v8, v9, 4, v8
    v_bfe_u32 v9, v{vL}, 4, 1
    s_lshl_b32 s{t0}, s{sC}, 5
    s_add_u32 s{t0}, s{t0}, s{sW}
    s_lshl_b32 s{t0}, s{t0}, 2
    v_add3_u32 v8, v8, v9, s{t0}
    v_lshl_add_u32 v{vDA}, v8, 11, v6
    v_lshrrev_b32 v9, 3, v{vL}
    s_lshl1_add_u32 s{t0}, s{sJ}, s{sAH}
    s_lshl_b32 s{t0}, s{t0}, 5
    v_add_u32 v9, s{t0}, v9
    v_lshl_add_u32 v{vDB}, v9, 11, v6
    v_xor_b32 v8, 64, v{vDA}
    v_xor_b32 v9, 64, v{vDB}
    v_add_u32 v{vDA+1}, {64*2048 - 1024}, v8
    v_add_u32 v{vDA+2}, {2*2048 - 2048}, v{vDA}
    v_add_u32 v{vDA+3}, {66*2048 - 3072}, v8
    v_add_u32 v{vDB+1}, {8*2048 - 1024}, v9
    v_add_u32 v{vDB+2}, {16*2048 - 2048}, v{vDB}
    v_add_u32 v{vDB+3}, {24*2048 - 3072}, v9
    s_add_u32 s{t0}, s{sC}, s{sJ}
    s_and_b32 s{t0}, s{t0}, 3
    """)
    for g, t in enumerate(scout(4, [lambda g: g, lambda g: 3, lambda g: 0, lambda g: 2*(g&1), lambda g: 1 + (g >> 1), lambda g: 2 + (g >> 1)][P['lead']])):
        lo = sum(t[k] << (4 * k) for k in range(8)); hi = sum(t[8 + k] << (4 * k) for k in range(8))
        if g == 0: pr2 += L(f"s_mov_b32 s{sKT}, {lo}\n s_mov_b32 s{sKT+1}, {hi}")
        else: pr2 += L(f"s_cmp_eq_u32 s{t0}, {g}\n s_cselect_b32 s{sKT}, {lo}, s{sKT}\n s_cselect_b32 s{sKT+1}, {hi}, s{sKT+1}")
    if P["xx"]:
        pr2 += L(f"s_and_b32 s{t0}, s2, 3\n s_mul_i32 s{t0}, s{t0}, 0x44444444\n s_xor_b32 s{sKT}, s{sKT}, s{t0}\n s_xor_b32 s{sKT+1}, s{sKT+1}, s{t0}")
    pr2 += L(f"s_mov_b32 s{BS+2}, 0x200000\n s_mov_b32 s{BS+3}, s{TMPS+3}")
    XL, GW, DK, PAR = 96, 112, 120, 142
    xld = []
    for e in range(2):
        for r in range(4):
            xld += L(f"buffer_load_dwordx2 {vr(XL+(e*4+r)*2,2)}, v29, s[{X}:{X+3}], s{u0+e} offen offset:{128*r}", tag=f"x{e}")
    xr = lambda e, tau: XL + e*8 + tau*4
    def dma(stage):
        slot = stage % 4
        r = L(f"s_bfe_u32 s{sK}, s{sKT + (stage >> 3)}, {0x40000 | (4 * (stage & 7))}\n s_add_u32 m0, s{sM0}, {slot*32768}\n s_lshl_b32 s{sK}, s{sK}, 7")
        for jj in range(4):
            r += L(f"buffer_load_dwordx4 v{vDA+jj}, s[{X}:{X+3}], s{sK} offen offset:{1024*jj} lds", tag=f"d{stage}")
        r += L(f"s_add_u32 m0, s{sM0}, {slot*32768 + 16384}")
        for jj in range(4):
            r += L(f"buffer_load_dwordx4 v{vDB+jj}, s[{BS}:{BS+3}], s{sK} offen offset:{1024*jj} lds", tag=f"d{stage}")
        return r
    GD = SCR + 16640
    pre = L(f"s_add_u32 s{t2}, s60, {WS_NONCE}\n s_addc_u32 s{t3}, s61, 0") + L(f"s_load_dword s{sN}, s[{t2}:{t3}], 0", tag="nonce")
    pre += L(f"""
    s_cmp_lt_u32 s{sW}, 2
    s_cselect_b64 s[{BS}:{BS+1}], s[56:57], s[58:59]
    s_cselect_b64 s[{TMPS}:{TMPS+1}], s[88:89], s[86:87]
    s_mov_b32 s{TMPS+2}, 2048
    s_lshl_b32 s{t0}, s{sAH}, 10
    s_lshl_b32 s{t1}, s{sW}, 10
    s_add_u32 m0, s{t1}, {GD}
    s_lshl2_add_u32 s{t1}, s{sJ}, s{sW}
    """) + L(f"buffer_load_dwordx4 v{vL16}, s[{TMPS}:{TMPS+3}], s{t0} offen lds", tag="gd")
    pre += L(f"s_lshl_b32 s{t1}, s{t1}, 4\n v_add_lshl_u32 v28, v{vN}, s{t1}, 1")
    pre += L(f"global_load_ushort v{PAR}, v28, s[52:53]\n global_load_ushort v{PAR+1}, v28, s[54:55]\n global_load_ushort v{PAR+2}, v28, s[84:85]", tag="par")
    D0 = dma(0)
    TWR = 232
    fn, fq4 = 249, 250
    A4, C4, S4 = [4, 5, 6, 7], [8, 9, 10, 11], [12, 13, 14, 15]
    def frag(dst_re, dst_im, neg=False, mask=None, dst2=None):
        r = []
        for k in range(4):
            c, s = C4[k], S4[k]
            if neg: r += L(f"v_cvt_pk_bf16_f32 v{A4[0]}, -v{c}, -v{s}\n v_cvt_pk_bf16_f32 v{A4[1]}, v{s}, -v{c}")
            else: r += L(f"v_cvt_pk_bf16_f32 v{A4[0]}, v{c}, v{s}\n v_cvt_pk_bf16_f32 v{A4[1]}, -v{s}, v{c}")
            r += L(f"v_accvgpr_write_b32 a{dst_re+k}, v{A4[0]}\n v_accvgpr_write_b32 a{dst_im+k}, v{A4[1]}")
            if mask is not None:
                r += L(f"v_xor_b32 v{A4[0]}, v{mask}, v{A4[0]}\n v_xor_b32 v{A4[1]}, v{mask}, v{A4[1]}\n v_accvgpr_write_b32 a{dst2+k}, v{A4[0]}\n v_accvgpr_write_b32 a{dst2+4+k}, v{A4[1]}")
        return r
    sp_, bs_ = 251, 248
    k0 = L(f"v_cvt_f32_u32 v{fn}, v{vN}\n v_cvt_f32_u32 v{fq4}, v{vQ}\n v_mul_f32 v{sp_}, {fbits(1/16)}, v{fn}\n v_mul_f32 v{fq4}, 4.0, v{fq4}\n v_mul_f32 v{bs_}, v{fq4}, v{sp_}")
    k0 += angles(sp_, bs_, [0, 1, 2, 3], A4, C4, S4) + frag(aF1, aF1 + 4)
    k0 += angles(sp_, bs_, [0.5, 1.5, 2.5, 3.5], A4, C4, S4) + frag(aF2, aF2 + 4)
    k0 += L(f"v_mul_f32 v{sp_}, {fbits(1/16)}, v{sp_}\n v_mul_f32 v{bs_}, {fbits(1/16)}, v{bs_}")
    for tau in range(2):
        k0 += angles(sp_, bs_, [i + 0.5*tau for i in range(4)], A4, [TWR + tau*4 + i for i in range(4)], [TWR + 8 + tau*4 + i for i in range(4)])
    k0 += srd(WS, 60, WS_SIZE)
    k0 += L(f"""
    v_lshrrev_b32 v15, 1, v{vN}
    v_xor_b32 v15, v15, v{vQ}
    v_lshlrev_b32 v15, 4, v15
    v_lshl_add_u32 v{vRA}, v{vN}, 7, v15
    v_xor_b32 v{vRA+1}, 64, v{vRA}
    s_lshl_b32 s{f0}, s{sW}, 11
    s_add_u32 s{f0}, s{f0}, 16384
    v_add_u32 v{vRB}, s{f0}, v{vRA}
    v_add_u32 v{vRB+1}, s{f0}, v{vRA+1}
    v_add_u32 v{vRH}, 0x10000, v{vRA}
    v_add_u32 v{vRH+1}, 0x10000, v{vRA+1}
    v_add_u32 v{vRH+2}, 0x10000, v{vRB}
    v_add_u32 v{vRH+3}, 0x10000, v{vRB+1}
    s_and_b32 s{f0}, s{sW}, 2
    s_lshl1_add_u32 s{f0}, s{f0}, s{sAH}
    s_mul_i32 s{f0}, s{f0}, 2080
    s_add_u32 s{f0}, s{f0}, {SCR}
    v_lshl_add_u32 v15, v{vQ}, 6, v{vN}
    v_lshl_add_u32 v252, v15, 3, s{f0}
    v_sub_u32 v15, {208 + 2*2080//8}, v15
    v_lshl_add_u32 v253, v15, 3, s{f0}
    v_lshrrev_b32 v7, 2, v{vL}
    v_add_u32 v7, s{sW16}, v7
    v_and_b32 v15, 3, v{vL}
    v_lshlrev_b32 v12, 4, v15
    v_mul_u32_u24 v229, 4160, v15
    v_lshl_add_u32 v229, v7, 3, v229
    v_add_u32 v229, {SCR}, v229
    v_lshrrev_b32 v14, 2, v{vL}
    v_lshl_add_u32 v230, v14, 8, v12
    v_and_b32 v14, 3, v14
    v_lshl_add_u32 v231, v14, 10, v12
    v_lshl_add_u32 v231, v{vQ}, 19, v231
    v_and_b32 v15, 1, v15
    v_lshlrev_b32 v15, 11, v15
    v_cmp_eq_u32 vcc, 0, v7
    v_add_u32 v254, {GD}, v29
    v_cndmask_b32 v15, 0, v15, vcc
    v_add_u32 v228, v229, v15
    """)
    G = []
    for k in range(4): G += L(f"v_accvgpr_write_b32 a{aTW+k}, v{TWR+k}\n v_accvgpr_write_b32 a{aTW+8+k}, v{TWR+8+k}")
    for k, r in enumerate((252, 253, 228, 229)): G += L(f"v_accvgpr_write_b32 a{aAD+k}, v{r}")
    G += L(f"v_fma_f32 v{sp_}, v{fn}, 2.0, 1.0\n v_mul_f32 v{sp_}, {fbits(1/32)}, v{sp_}\n v_mul_f32 v{bs_}, v{fq4}, v{sp_}")
    G += angles(sp_, bs_, [0, 1, 2, 3], A4, C4, S4) + frag(aFA, aFA + 4) + frag(aNA, aNA + 4, neg=True)
    G += L(f"v_mul_f32 v{sp_}, {fbits(1/16)}, v{sp_}\n v_mul_f32 v{bs_}, {fbits(1/16)}, v{bs_}")
    G += angles(sp_, bs_, [0, 1, 2, 3], A4, C4, S4)
    for k in range(4): G += L(f"v_accvgpr_write_b32 a{aTW+4+k}, v{C4[k]}\n v_accvgpr_write_b32 a{aTW+12+k}, v{S4[k]}")
    gc = lambda sg, part: aGC + (sg * 2 + part) * 4
    G += L(f"""
    v_add_u32 v{sp_}, s{sW16}, v{vN}
    v_cvt_f32_u32 v{sp_}, v{sp_}
    v_and_b32 v147, 1, v{vN}
    v_mul_f32 v{sp_}, {fbits(1/64)}, v{sp_}
    v_mul_u32_u24 v147, 0x8000, v147
    v_mul_f32 v{bs_}, v{fq4}, v{sp_}
    v_lshl_or_b32 v147, v147, 16, v147
    """)
    for sg in range(2):
        G += angles(sp_, bs_, [16*sg + r for r in range(4)], A4, C4, S4) + frag(gc(sg, 0), gc(sg, 1), mask=147, dst2=gc(sg + 2, 0))
    k0 += take(G, P["ng0"])
    o += xld[:2] + spread(pr2, (xld[2:], 0, 40)) + [W("lg", "ka")] + st("start")
    if P["d0first"]:
        o += [I(f"s_cmp_lt_u32 s{sW}, 2\n    s_cselect_b64 s[{BS}:{BS+1}], s[56:57], s[58:59]")]
        d0a = take(D0, P["nd0"])
        o += spread(k0, (d0a, 0, P["d0e"]), (pre, P["d0e"] + 1, P["d0e"] + 40))
        if D0: D0 = L(f"s_add_u32 m0, s{sM0}, 16384") + D0
    else:
        o += spread(k0, (pre + take(D0, P["nd0"]), 0, P["d0e"]))
    WRAW, WA = 208, 200
    wad = srd(WR, 44, 2048 * 1026) + srd(WI, 46, 2048 * 1026)
    wad += L(f"""
    s_lshr_b32 s{t0}, s2, 6
    s_and_b32 s{t1}, s2, 3
    s_lshl2_add_u32 s{t0}, s{t0}, s{t1}
    s_bfe_u32 s{t1}, s2, 0x10005
    s_bfe_u32 s{t2}, s2, 0x20002
    s_lshl2_add_u32 s{t1}, s{t1}, s{t2}
    s_bfe_u32 s{t2}, s2, 0x10004
    s_lshl1_add_u32 s{t1}, s{t1}, s{t2}
    s_lshl_b32 s{t1}, s{t1}, 7
    s_lshl2_add_u32 s{t0}, s{t0}, s{t1}
    v_add_u32 v184, s{t0}, v{vQ}
    v_add_u32 v185, s{sW16}, v{vN}
    s_movk_i32 s{t2}, 1026
    v_mul_u32_u24 v186, s{t2}, v184
    v_lshl_add_u32 v{WA}, v185, 3, v186
    v_sub_u32 v187, 2048, v184
    v_and_b32 v188, 2047, v187
    v_subrev_u32 v187, 64, v187
    v_lshlrev_b32 v189, 3, v185
    v_sub_u32 v189, 1018, v189
    v_mad_u32_u24 v{WA+1}, v188, s{t2}, v189
    v_mad_u32_u24 v{WA+2}, v187, s{t2}, v189
    s_mov_b32 s{u2}, {64*1026}
    v_cmp_eq_u32 vcc, 0, v185
    v_add_u32 v186, 512, v186
    v_lshlrev_b32 v187, 4, v{vQ}
    v_cndmask_b32 v{WA+3}, 2.0, v186, vcc
    v_cndmask_b32 v{WA+4}, 2.0, v187, vcc
    v_lshrrev_b32 v185, 2, v{vL}
    v_and_b32 v189, 3, v{vL}
    v_lshl_add_u32 v184, v189, 2, v185
    v_and_b32 v184, 15, v184
    v_lshl_add_u32 v184, v189, 4, v184
    s_add_u32 s{t2}, s{sM0}, {SCR}
    v_lshl_add_u32 v{WA+6}, v184, 4, s{t2}
    v_lshl_add_u32 v184, v{vQ}, 2, v{vN}
    v_and_b32 v184, 15, v184
    v_lshl_add_u32 v184, v{vQ}, 4, v184
    v_lshl_add_u32 v{WA+5}, v184, 4, s{t2}
    """)
    o += wad + L(f"s_mov_b64 s[{OUT_}:{OUT_+1}], s[90:91]\n s_mov_b32 s{OUT_+2}, 0x800000")
    wl = []
    for ii in range(2):
        so = "0" if ii == 0 else f"s{u2}"
        wl += L(f"""
        buffer_load_dwordx2 {vr(WRAW + ii*8 + 0, 2)}, v{WA}, s[{WR}:{WR+3}], {so} offen
        buffer_load_dwordx2 {vr(WRAW + ii*8 + 2, 2)}, v{WA}, s[{WI}:{WI+3}], {so} offen
        buffer_load_dwordx2 {vr(WRAW + ii*8 + 4, 2)}, v{WA+1+ii}, s[{WR}:{WR+3}], 0 offen
        buffer_load_dwordx2 {vr(WRAW + ii*8 + 6, 2)}, v{WA+1+ii}, s[{WI}:{WI+3}], 0 offen
        buffer_load_ushort v{WRAW + 16 + 2*ii}, v{WA+3}, s[{WR}:{WR+3}], {so} offen
        buffer_load_ushort v{WRAW + 17 + 2*ii}, v{WA+3}, s[{WI}:{WI+3}], {so} offen
        """, tag="w")
    o += st("consts")
    D1, TP, D2, OUT, T0 = ACC, 152, ACC + 32, 168, 184
    d1 = lambda e, tau, part: D1 + ((e*2 + tau)*2 + part)*4
    d2 = lambda e, tau, part: D2 + ((e*2 + tau)*2 + part)*4
    R = []
    for e in range(2):
        b = XL + e*8
        R += [W("vm", f"x{e}")] + L(f"v_swap_b32 v{b+1}, v{b+2}\n v_swap_b32 v{b+5}, v{b+6}\n v_swap_b32 v{b+2}, v{b+4}\n v_swap_b32 v{b+3}, v{b+5}")
    R += st("xwait")
    sal = L(f"""
    s_and_b32 s{t0}, s{sJ}, 3
    s_lshr_b32 s{t1}, s{sC}, 2
    s_lshl2_add_u32 s{t0}, s{t0}, s{t1}
    s_and_b32 s{t1}, s{sC}, 3
    s_lshl2_add_u32 s{t0}, s{t0}, s{t1}
    s_lshl_b32 s{t1}, s{sW}, 7
    s_add_u32 s{t0}, s{t0}, s{t1}
    s_lshl_b32 s{t0}, s{t0}, 6
    s_lshr_b32 s{t1}, s{sJ}, 2
    s_add_u32 s{t0}, s{t0}, s{t1}
    s_lshl_b32 s{u0}, s{t0}, 6
    s_lshr_b32 s{t1}, s{sW}, 1
    s_lshl1_add_u32 s{t0}, s{sJ}, s{t1}
    s_lshr_b32 s{t1}, s{t0}, 4
    s_lshl1_add_u32 s{t1}, s{t1}, s{sAH}
    s_lshl2_add_u32 s{t3}, s{sC}, s{t1}
    s_and_b32 s{t2}, s{t0}, 15
    s_lshl4_add_u32 s{t3}, s{t3}, s{t2}
    s_lshl3_add_u32 s{u1}, s{t3}, {WS_OMG}
    s_lshl_b32 s{t3}, s{sC}, 6
    s_add_u32 s{t1}, s{t1}, s{t3}
    s_and_b32 s{t2}, s{t0}, 3
    s_lshl2_add_u32 s{t1}, s{t1}, s{t2}
    s_bfe_u32 s{t2}, s{t0}, 0x20002
    s_lshl2_add_u32 s{t1}, s{t1}, s{t2}
    s_lshl_b32 s{t1}, s{t1}, 8
    s_add_u32 s{sCOMB}, s{t1}, {WS_COMB}
    s_getreg_b32 s{sXC}, hwreg(HW_REG_XCC_ID, 0, 4)
    s_and_b32 s{t0}, s2, 31
    s_lshl_b32 s{t0}, s{t0}, 7
    s_add_u32 s{sFL2}, s{t0}, {WS_FL2}
    s_lshr_b32 s{t0}, s2, 5
    s_lshl2_add_u32 s{f1}, s{t0}, s{sFL2}
    """)
    m = []
    for e in range(2):
        for tau in range(2):
            for part in range(2):
                m += L(f"{MF} {vr(d1(e,tau,part),4)}, {vr(xr(e,tau),4)}, {ar(aF1+4*part,4)}, 0")
    R += spread(m, D0, take(sal, 14)) + take(sal, 3)
    for e in range(2):
        for tau in range(2):
            for h in range(2):
                R += twid(d1(e,tau,0) + 2*h, d1(e,tau,1) + 2*h, TWR + tau*4 + 2*h, TWR + 8 + tau*4 + 2*h, T0 + 4*h, T0 + 4*h + 2)
            for i in range(4):
                R += L(f"v_cvt_pk_bf16_f32 v{TP+(e*2+tau)*4+i}, v{T0+4*(i>>1)+(i&1)}, v{T0+4*(i>>1)+2+(i&1)}")
    m = []
    for e in range(2):
        for tau in range(2):
            for part in range(2):
                m += L(f"{MF} {vr(d2(e,tau,part),4)}, {ar((aF2 if tau else aF1)+4*part,4)}, {vr(TP+(e*2+tau)*4,4)}, 0")
    R += spread(m, sal)
    for e in range(2):
        for part in range(2):
            for h in range(2):
                E, O = d2(e,0,part) + 2*h, d2(e,1,part) + 2*h
                R += [pk("add", d1(e,0,part) + 2*h, E, O), pk("add", d1(e,1,part) + 2*h, E, O, neg=[0,1])]
    for mu in range(2):
        for i in range(4):
            for e in range(2):
                R += L(f"v_cvt_pk_bf16_f32 v{OUT+(mu*4+i)*2+e}, v{d1(e,mu,0)+i}, {'-' if mu else ''}v{d1(e,mu,1)+i}")
            R += L(f"ds_write_b64 v{252+mu}, {vr(OUT+(mu*4+i)*2,2)} offset:{128*(i if mu == 0 else 3-i)}", tag="rfw")
    XU, DU = 64, 32
    xu = lambda e, tp, part: XU + ((e*2 + tp)*2 + part)*4
    du = lambda tp, part: DU + (tp*2 + part)*4
    for e in range(2):
        for tp in range(2):
            for i in range(4):
                R += L(f"v_lshlrev_b32 v{xu(e,tp,0)+i}, 16, v{xr(e,tp)+i}\n v_and_b32 v{xu(e,tp,1)+i}, 0xffff0000, v{xr(e,tp)+i}")
    R += [W("lg", "*"), W("vm", "gd")] + L("s_barrier")
    for i in range(4): R += L(f"ds_read_b64 {vr(GW+2*i,2)}, v254 offset:{128*i}", tag="gw")
    for i in range(4): R += L(f"ds_read_b64 {vr(DK+2*i,2)}, v254 offset:{2048+128*i}", tag="dk")
    ZO = 232
    for rho in range(4):
        for h in range(2):
            R += L(f"ds_read_b64 {vr(ZO+rho*4+2*h,2)}, v{228 if rho == 0 else 229} offset:{h*2080 + rho*512}", tag=f"rfr{rho}")
    R += L(f"""
    s_mul_i32 s{sT}, s{sN}, {HASH_A}
    s_add_u32 s{sT}, s{sT}, {HASH_B}
    s_cmp_eq_u32 s{sW}, 0
    s_cselect_b32 s{sE}, s{sT}, 0
    s_cselect_b32 s{sO}, 0, 2.0
    """)
    nrf = len(R)
    zst = []
    for rho in range(4):
        zst += L(f"buffer_store_dwordx4 {vr(ZO+rho*4,4)}, v230, {osr}, s{u0} offen sc1", tag="st1")
        if rho < 3: zst += L(f"s_add_u32 s{u0}, s{u0}, {4 << 19}")
    xst = L(f"v_mov_b32 v28, s{sXC}") + L(f"buffer_store_dword v28, v{vONE}, {wsr}, s{f1} offen sc1", tag="st1")
    if P["prew"]:
        zst += L(f"""
        s_lshl_b32 s{u1}, s{sPI}, 6
        s_add_u32 s{u1}, s{u1}, {WS_FL4}
        s_not_b32 s{u3}, s{sT}
        v_mov_b32 v28, s{u3}
        """) + L(f"buffer_store_dword v28, v{vONE}, {wsr}, s{u1} offen sc1", tag="st1") + L(f"s_add_u32 s{u1}, s{u1}, 16384") + L(f"buffer_store_dword v28, v{vONE}, {wsr}, s{u1} offen sc1", tag="st1")
        zst += L(f"s_lshl4_add_u32 s{u1}, s2, {WS_FL3}") + L(f"buffer_store_dword v28, v{vONE}, {wsr}, s{u1} offen sc1", tag="st1")
    g0, g1_, g2_, g3_ = 184, 185, 186, 187
    gt = [W("lg", "gw")]
    for k in range(8):
        for e in range(2):
            gt += L(f"v_dot2_f32_bf16 v{g0+e}, v{xr(e,k&1)+(k>>1)}, v{GW+k}, {'0' if k == 0 else 'v%d' % (g0+e)}")
    unp = [W("lg", "dk")]
    for i in range(4):
        for tp in range(2):
            unp += L(f"v_lshlrev_b32 v{du(tp,0)+i}, 16, v{DK+2*i+tp}\n v_and_b32 v{du(tp,1)+i}, 0xffff0000, v{DK+2*i+tp}")
    for e in range(2):
        for tp in range(2):
            for part in range(2):
                for h in range(2):
                    unp.append(pk("mul", xu(e,tp,part)+2*h, xu(e,tp,part)+2*h, du(tp,part)+2*h))
    red = []
    for sh in ("row_ror:8", "row_ror:4", "row_ror:2", "row_ror:1"):
        for e in range(2):
            red += L(f"v_add_f32_dpp v{g0+e}, v{g0+e}, v{g0+e} {sh} row_mask:0xf bank_mask:0xf")
    red += L(f"""
    v_permlane32_swap_b32 v{g0}, v{g1_}
    v_add_f32 v{g0}, v{g0}, v{g1_}
    v_mov_b32 v{g1_}, v{g0}
    v_permlane16_swap_b32 v{g0}, v{g1_}
    v_add_f32 v{g0}, v{g0}, v{g1_}
    v_cvt_pk_bf16_f32 v{g0}, v{g0}, v{g0}
    v_lshlrev_b32 v{g0}, 16, v{g0}
    v_mul_f32 v{g0}, {fbits(-LOG2E)}, v{g0}
    v_exp_f32 v{g0}, v{g0}
    v_add_f32 v{g0}, 1.0, v{g0}
    v_rcp_f32 v{g0}, v{g0}
    v_cvt_pk_bf16_f32 v{g0}, v{g0}, v{g0}
    v_lshlrev_b32 v{g0}, 16, v{g0}
    v_sub_f32 v{g2_}, 1.0, v{g0}
    v_cvt_pk_bf16_f32 v{g2_}, v{g2_}, v{g2_}
    v_lshlrev_b32 v{g2_}, 16, v{g2_}
    v_mov_b32 v{g1_}, v{g0}
    v_mov_b32 v{g3_}, v{g2_}
    v_permlane32_swap_b32 v{g0}, v{g1_}
    v_permlane32_swap_b32 v{g2_}, v{g3_}
    v_cmp_eq_u32 vcc, 0, v{vL}
    v_accvgpr_write_b32 a{aS+16}, v{g0}
    v_accvgpr_write_b32 a{aS+17}, v{g1_}
    v_cndmask_b32 v188, 2.0, v{vL}, vcc
    """)
    gt += spread(unp, (red, 2, len(unp) - 1))
    gt += L(f"buffer_store_dwordx2 {vr(g2_,2)}, v188, {wsr}, s{u1} offen sc1", tag="omst")
    for e in range(2):
        for tp in range(2):
            for part in range(2):
                for h in range(2):
                    gt.append(pk("mul", xu(e,tp,part)+2*h, xu(e,tp,part)+2*h, g2_, sel="p" + "lh"[e]))
            for i in range(4):
                gt += L(f"v_cvt_pk_bf16_f32 v{190+(i&1)}, v{xu(e,tp,0)+i}, v{xu(e,tp,1)+i}\n v_accvgpr_write_b32 a{aS+(e*2+tp)*4+i}, v{190+(i&1)}")
    R2 = gt + G
    n2 = len(R2)
    o += spread(R, (wl, 40, nrf - 40))
    o += st("rf")
    o += spread(R2, (xst, 0, 1), (dma(1), int(n2*P["pd1"]), int(n2*P["pd1e"])))
    o += [W("lg", "*")]
    o += st("gate")
    WO = WU
    wt = [W("vm", "w")]
    wt += L(f"s_mov_b32 s{f0}, 0x05040100\n s_mov_b32 s{f1}, 0x07060302\n s_lshl_b32 s{t2}, s2, 6")
    wt += L(f"v_lshl_or_b32 v{WRAW+16}, v{WRAW+17}, 16, v{WRAW+16}\n v_lshl_or_b32 v{WRAW+18}, v{WRAW+19}, 16, v{WRAW+18}")
    wt += L(f"buffer_store_dwordx4 {vr(WRAW+16,4)}, v{WA+4}, {wsr}, s{t2} offen sc1", tag="st1")
    for m_ in range(4):
        for ii in range(2):
            b = WRAW + ii*8; mm = 3 - m_
            wt += L(f"v_perm_b32 v{WO+m_*4+ii*2}, v{b+2+(m_>>1)}, v{b+(m_>>1)}, s{f0+(m_&1)}")
            wt += L(f"v_perm_b32 v{WO+m_*4+ii*2+1}, v{b+6+(mm>>1)}, v{b+4+(mm>>1)}, s{f0+(mm&1)}")
        wt += L(f"ds_write_b128 v{WA+5}, {vr(WO+m_*4,4)} offset:{1024*m_}", tag="wtw")
    wt2 = [W("lg", "wtw")]
    for m_ in range(4): wt2 += L(f"ds_read_b128 {vr(WO+16+m_*4,4)}, v{WA+6} offset:{1024*m_}", tag=f"wtr")
    wt2 += L(f"s_lshr_b32 s{t2}, s2, 2\n s_lshl_b32 s{t3}, s{sW}, 9\n s_add_u32 s{t2}, s{t2}, s{t3}\n s_add_u32 s{t2}, s{t2}, 64\n s_lshl_b32 s{t2}, s{t2}, 6\n s_and_b32 s{t3}, s2, 3\n s_add_u32 s{t2}, s{t2}, s{t3}\n s_lshl_b32 s{f0}, s{t2}, 6")
    wt3 = []
    for m_ in range(4):
        wt3 += [W("lg", "wtr")] + L(f"buffer_store_dwordx4 {vr(WO+16+m_*4,4)}, v231, {osr}, s{f0} offen offset:{256*m_} sc1", tag="st1")
    F = [W("vm", "par")]
    F += L(f"""
    v_lshlrev_b32 v{PAR+2}, 16, v{PAR+2}
    v_lshlrev_b32 v{PAR}, 16, v{PAR}
    v_mul_f32 v{PAR+2}, {fbits(LOG2E)}, v{PAR+2}
    v_exp_f32 v{PAR+2}, v{PAR+2}
    v_lshlrev_b32 v{PAR+1}, 16, v{PAR+1}
    v_cvt_pk_bf16_f32 v{PAR+2}, v{PAR+2}, v{PAR+2}
    v_lshlrev_b32 v{PAR+2}, 16, v{PAR+2}
    v_mul_f32 v14, v{PAR+2}, v{PAR}
    v_mul_f32 v4, v{PAR+2}, v{PAR+1}
    v_mul_f32 v14, {fbits(LOG2E)}, v14
    v_mul_f32 v4, {fbits(0.15915494309189535)}, v4
    v_exp_f32 v14, v14
    v_fract_f32 v4, v4
    v_cos_f32 v5, v4
    v_sin_f32 v6, v4
    v_mul_f32 v{LAM}, v14, v5
    v_mul_f32 v{LAM+1}, v14, v6
    v_mul_f32 v14, v{PAR}, v{PAR}
    v_fma_f32 v14, v{PAR+1}, v{PAR+1}, v14
    v_rcp_f32 v14, v14
    v_add_f32 v4, -1.0, v{LAM}
    v_add_f32 v14, v14, v14
    v_mul_f32 v5, v4, v{PAR}
    v_fma_f32 v5, v{LAM+1}, v{PAR+1}, v5
    v_mul_f32 v6, v{LAM+1}, v{PAR}
    v_fma_f32 v6, -v4, v{PAR+1}, v6
    v_mul_f32 v{COEF}, v5, v14
    v_mul_f32 v{COEF+1}, v6, v14
    """)
    def csq(d, s):
        return L(f"v_mul_f32 v{d}, v{s}, v{s}\n v_mul_f32_e64 v{d+1}, v{s}, v{s+1} mul:2\n v_fma_f32 v{d}, -v{s+1}, v{s+1}, v{d}") if P.get("omod") else \
               L(f"v_mul_f32 v{d}, v{s}, v{s}\n v_mul_f32 v{d+1}, v{s}, v{s+1}\n v_fma_f32 v{d}, -v{s+1}, v{s+1}, v{d}\n v_add_f32 v{d+1}, v{d+1}, v{d+1}")
    F += csq(4, LAM) + csq(6, 4) + csq(4, 6) + csq(L16, 4) + csq(L32, L16) + csq(8, L32) + csq(L128, 8) + csq(4, L128) + csq(10, 4) + csq(12, 10)
    F += L(f"""
    v_and_b32 v14, 1, v{vQ}
    v_cmp_eq_u32 s[78:79], 1, v14
    v_cndmask_b32 v4, 1.0, v{L32}, s[78:79]
    v_cndmask_b32 v5, 0, v{L32+1}, s[78:79]
    v_cndmask_b32 v10, 1.0, v10, s[78:79]
    v_cndmask_b32 v11, 0, v11, s[78:79]
    v_cmp_lt_u32 s[78:79], 1, v{vQ}
    v_cndmask_b32 v8, 1.0, v8, s[78:79]
    v_cndmask_b32 v9, 0, v9, s[78:79]
    v_cndmask_b32 v12, 1.0, v12, s[78:79]
    v_cndmask_b32 v13, 0, v13, s[78:79]
    """)
    F += cmul1(L32Q, L32Q+1, 4, 5, 8, 9) + cmul1(L512Q, L512Q+1, 10, 11, 12, 13)
    F += L(f"v_add_u32 v{sp_}, s{sW16}, v{vN}\n v_cvt_f32_u32 v{sp_}, v{sp_}\n v_mul_f32 v{sp_}, {fbits(1/1024)}, v{sp_}\n v_mul_f32 v{bs_}, v{fq4}, v{sp_}")
    for hh in range(2):
        ix = list(range(4*hh, 4*hh + 4))
        F += angles(sp_, bs_, [0.5*k for k in ix], A4, [TWF + 2*k for k in ix], [TWF + 2*k + 1 for k in ix])
    F += L(f"""
    v_cvt_f32_u32 v9, s{sPI}
    v_mul_f32 v9, {fbits(1/1024)}, v9
    v_sin_f32 v11, v9
    v_cos_f32 v10, v9
    v_add_f32 v11, 1.0, v11
    v_rcp_f32 v9, v11
    v_mul_f32 v15, {fbits(2.0**-21)}, v11
    v_mul_f32_e64 v10, -v10, v9
    v_cvt_f32_u32 v14, s{sW16}
    v_readfirstlane_b32 s{sCT}, v10
    v_add_f32 v14, v14, v{fq4}
    """)
    for tp in range(2):
        F += L(f"v_fma_f32 v{sp_}, v{fn}, 2.0, {'1.0' if tp else '0'}\n v_mul_f32 v{sp_}, {fbits(1/2048)}, v{sp_}\n v_mul_f32 v{bs_}, v14, v{sp_}")
        F += angles(sp_, bs_, [0, 1, 2, 3], A4, [TWI + tp*8 + i for i in range(4)], [TWI + tp*8 + 4 + i for i in range(4)])
        for i in range(8): F += L(f"v_mul_f32 v{TWI+tp*8+i}, v15, v{TWI+tp*8+i}")
    F += L(f"s_and_b32 s{t0}, s{sC}, 3")
    for ci in range(4):
        tab = sum((0 if k == 0 else 1 + (k - 1 + 2*ci) % 7) << (4*k) for k in range(8))
        F += L(f"s_mov_b32 s{sPT}, {tab}") if ci == 0 else [I(f"s_cmp_eq_u32 s{t0}, {ci}\n    s_cselect_b32 s{sPT}, {tab}, s{sPT}")]
    F += L(f"""
    s_lshr_b32 s{t0}, s2, 5
    s_mul_i32 s{t0}, s{t0}, 0x11111111
    s_add_u32 s{sPT}, s{sPT}, s{t0}
    s_and_b32 s{sPT}, s{sPT}, 0x77777777
    s_lshl_b32 s{t0}, s{sJ}, 6
    s_add_u32 s{t0}, s{t0}, s{sW}
    s_lshl_b32 s{t0}, s{t0}, 8
    s_add_u32 s{sLBA}, s{t0}, {WS_AGG}
    s_lshl_b32 s{t0}, s{sC}, 11
    s_add_u32 s{t0}, s{t0}, s{sJ}
    s_lshl_b32 s{sSL}, s{t0}, 8
    s_lshl_b32 s{t0}, s{sHT}, 16
    s_andn2_b32 s{sHB}, s{sSL}, 0x700
    s_add_u32 s{sHB}, s{sHB}, s{t0}
    """)
    F += [I(f"s_cmp_lt_u32 s{sW}, 2\n    s_cselect_b64 s[{CS}:{CS+1}], s[80:81], s[82:83]")] + L(f"s_mov_b32 s{CS+2}, 0x200000")
    ZL, WL, PL = WK, WK + 16, WK + 32
    fra = lambda ks, tau: aFR + ks * 40 + tau * 4
    frb = lambda ks, part: aFR + ks * 40 + 32 + part * 4
    def reads(s, ks):
        slot = s % 4; base = (slot & 1) * 32768; r = []
        ra, rb = (vRA + ks, vRB + ks) if slot < 2 else (vRH + ks, vRH + 2 + ks)
        for part in range(2): r += L(f"ds_read_b128 {ar(frb(ks,part),4)}, v{rb} offset:{base + part*8192}", tag="fr")
        for tau in range(8): r += L(f"ds_read_b128 {ar(fra(ks,tau),4)}, v{ra} offset:{base + tau*2048}", tag="fr")
        return r
    def mfmas(ks, first=False):
        r = []
        for tau in range(8):
            for part in range(2):
                a_ = vr(acc(tau, part), 4)
                r += L(f"{MF} {a_}, {ar(fra(ks,tau),4)}, {ar(frb(ks,part),4)}, {'0' if first else a_}")
        return r
    ZIT, WTI = P["zit"], P["wtit"]
    assert ZIT >= 12
    pl1 = f"buffer_load_dword v{PL}, v{vL16}, {wsr}, s{u0} offen sc1"
    vDC, vR2 = 16, 20
    g2a = L(f"""
    v_and_b32 v6, 7, v{vL}
    v_xor_b32 v6, v6, v{vQ}
    s_and_b32 s{t0}, s{sJ}, 8
    s_lshl_b32 s{t0}, s{t0}, 7
    v_lshl_add_u32 v6, v6, 4, s{t0}
    v_lshrrev_b32 v8, 3, v{vL}
    s_xor_b32 s{t0}, s{sJ}, 8
    s_lshl_b32 s{t0}, s{t0}, 5
    s_add_u32 s{t0}, s{t0}, s{sAH}
    s_lshl_b32 s{t0}, s{t0}, 1
    v_lshl_add_u32 v8, v8, 2, s{t0}
    v_lshl_add_u32 v{vDC}, v8, 11, v6
    v_xor_b32 v8, 64, v{vDC}
    v_add_u32 v{vDC+1}, {32*2048 - 1024}, v8
    v_mov_b32 v{vDC+2}, v{vDC}
    v_add_u32 v{vDC+3}, {33*2048 - 3072}, v8
    """)
    def cdma(k, tag, fl=""):
        r = L(f"s_bfe_u32 s{sCK}, s{sPT}, {0x40000 | (4*k)}\n s_add_u32 m0, s{sM0}, {k*16384}\n s_lshl_b32 s{sCK}, s{sCK}, 7")
        for jj in range(4):
            r += L(f"buffer_load_dwordx4 v{vDC+jj}, s[{CS}:{CS+3}], s{sCK} offen offset:{1024*jj} {fl} lds", tag=tag)
        return r
    CSEND = [cdma(k, f"cs{k}") for k in range(8)]
    sTC = 92
    g2a += L(f"""
    s_lshl1_add_u32 s{t2}, s{sJ}, s{sAH}
    s_lshl_b32 s{t2}, s{t2}, 6
    s_lshr_b32 s{t3}, s{sJ}, 3
    s_add_u32 s{t2}, s{t2}, s{t3}
    s_and_b32 s{t3}, s{sC}, 3
    s_lshl2_add_u32 s{t2}, s{t2}, s{t3}
    s_lshl_b32 s{sTC}, s{t2}, 8
    v_lshrrev_b32 v29, 1, v{vL}
    v_lshlrev_b32 v29, 4, v29
    v_and_or_b32 v29, v{vL}, 1, v29
    v_lshlrev_b32 v29, 7, v29
    """)
    touchS = L(f"s_xor_b32 s{t2}, s{sTC}, 0x100000") + L(f"buffer_load_dword a223, v29, s[{CS}:{CS+3}], s{t2} offen", tag="tch")
    touchK = L(f"buffer_load_dword a223, v29, s[{CS}:{CS+3}], s{sTC} offen", tag="tch")
    tch = lambda where: (touchS if P["touchs"] == where else []) + (touchK if P["touchk"] == where else [])
    wu = lambda which, part, mu, i: WU + (which * 2 + part) * 8 + mu * 4 + i
    unp = [W("vm", "wl")]
    for io in range(4):
        for ii in range(2):
            for wh in range(2):
                raw = WL + io*4 + ii*2 + wh; mu, i = io >> 1, 2*(io & 1) + ii
                unp += L(f"v_lshlrev_b32 v{wu(wh,0,mu,i)}, 16, v{raw}\n v_and_b32 v{wu(wh,1,mu,i)}, 0xffff0000, v{raw}")
    unp += L(f"v_accvgpr_read_b32 v28, a222\n v_cmp_ne_u32 s[78:79], s{sXC}, v28") + [I(f"s_cmp_eq_u64 s[78:79], {0 if P['local'] else 77}\n    s_cselect_b32 s{sLOC}, 0, 2.0\n    s_cselect_b32 s{sNLOC}, 2.0, 0")]
    def code_pf(lab, sink):
        return [I(f"s_getpc_b64 s[{WI}:{WI+1}]\n{lab}:\n    s_mov_b32 s{WI+2}, K_CODE_END-{lab}")] + L(f"""
        s_bfe_u32 s3, s2, 0x20003
        s_lshl2_add_u32 s3, s3, s{sW}
        s_lshl_b32 s3, s3, 11
        v_lshl_add_u32 v28, v{vL}, 5, s3
        """) + L(f"buffer_load_dword {sink}, v28, s[{WI}:{WI+3}], 0 offen", tag="pf")
    lfl = P["lfl"]
    zl = L(f"v_lshlrev_b32 v28, 12, v{vQ}\n v_lshl_add_u32 v28, v{vN}, 4, v28\n s_lshl4_add_u32 s{u0}, s{sM0}, s{sSL}")
    for f in range(4):
        zl += L(f"s_add_u32 m0, s{sM0}, {SCR + 1024*f}\n s_add_u32 s{u1}, s{u0}, {16384*f}") + L(f"buffer_load_dwordx4 v28, {osr}, s{u1} offen {lfl} lds", tag="zl")
    wll = []
    for f in range(4):
        wll += L(f"s_add_u32 s{u1}, s{u0}, {(64 << 12) + 16384*f}") + L(f"buffer_load_dwordx4 {vr(WL+4*f,4)}, v28, {osr}, s{u1} offen {lfl}", tag="wl")
    wll += [I("s_cmp_eq_u32 s2, 0\n    s_cbranch_scc1 K_W256\nK_W256_RET:")]
    wll += L(f"v_and_b32 v28, 7, v{vL}\n v_lshlrev_b32 v28, 2, v28") + L(f"buffer_load_dword a222, v28, {wsr}, s{sFL2} offen sc1", tag="wl")
    tail += L(f"K_W256:")
    for f in range(4): tail += L(f"buffer_load_dwordx4 {ar(aW2+4*f,4)}, v{vL16}, {wsr}, s{sM0} offen offset:{1024*f} sc1")
    tail += L("s_branch K_W256_RET")
    assert WS_W256 == 0
    nF = -(-len(F) // (2 * (12 - WTI - 1)))
    sts = zst + wt3
    ST0, STN = P["st0"], P["stn"]
    nst = -(-len(sts) // STN)
    CSI = {13: [], 14: [], 15: []}
    cs_order = [1, 2, 0, 3, 4, 5, 6, 7] if P["touchs"] == "no" else list(range(8))
    assert P["c13"] <= 1 and P["c13"] + P["c14"] <= 4 and P["c13"] + P["c14"] + P["c15"] <= 5
    for it, n in zip((13, 14, 15), (P["c13"], P["c14"], P["c15"])):
        for _ in range(n): CSI[it] += CSEND[cs_order.pop(0)]
    for s in range(16):
        o += [W("lg", "fr")] + st(f"@g{s}b") + [W("vm", f"d{s}")] + st(f"@g{s}v")
        if s == ZIT: o += [W("vm", "poll")] + poll_check("K_POLL1", PL, sT, pl1)
        if s == P["sig1"]:
            assert not sts
            o += [W("vm", "st1")]
        o += L("s_barrier")
        if s in (0, 4, 8, 12): o += st(f"g1_{s}")
        o += st(f"@g{s}a")
        dm = dma(s + 3) if s + 3 < 16 else []
        if s == 0: dm = dma(2) + dm
        ex = []
        if s == P["sig1"]: dm = L(f"s_lshl4_add_u32 s{u1}, s2, {WS_FL1}") + signal(u1) + dm
        if s == P["poll1"]: dm = L(f"s_lshl_b32 s{u0}, s{sW}, 10\n s_add_u32 s{u0}, s{u0}, {WS_FL1}") + L(pl1, tag="poll") + dm
        if s == P["cpf"]: ex += code_pf("K_PC2", "a221")
        if s == ZIT: ex += tch("z") + zl + wll
        if s >= 13: ex += CSI[s] + tch(f"i{s}")
        allx = dm + ex
        n0 = (len(allx) + 1) // 2
        fa_, fb_ = [], []
        if s == WTI: fa_, fb_ = wt, wt2
        elif WTI < s < 12: fa_, fb_ = take(F, nF), take(F, nF)
        if s == 12: n0 = max(n0, len(dm) - 5); fb_ = g2a + tch("i12")
        sa_ = take(sts, nst) if 2*s >= ST0 else []
        sb_ = take(sts, nst) if 2*s + 1 >= ST0 else []
        if s == 0: o += reads(0, 0) + allx[:n0]
        else: o += spread(mfmas(1), (reads(s, 0), 0, 10), allx[:n0], fa_, (sa_, 6, 9))
        o += [W("lg", "fr")]
        o += spread(mfmas(0, s == 0), (reads(s, 1), 0, 10), allx[n0:], fb_, (sb_, 6, 9))
    assert not F
    o += [W("lg", "fr")]
    cf = lambda kap, sg: aFR + (kap * 4 + sg) * 4
    cfr = []
    for kap in range(4):
        for sg in range(4):
            cfr += L(f"ds_read_b128 {ar(cf(kap,sg),4)}, v28 offset:{(kap*4+sg)*1024}", tag=f"cf{kap}")
    ex = L(f"""
    v_add_u32 v28, {SCR}, v{vL16}
    v_and_b32 v8, 1, v{vQ}
    v_lshrrev_b32 v9, 1, v{vN}
    v_xor_b32 v8, v8, v9
    v_lshlrev_b32 v8, 4, v8
    v_lshl_add_u32 v8, v{vN}, 7, v8
    v_lshrrev_b32 v9, 1, v{vQ}
    v_lshl_add_u32 v{vR2}, v9, 13, v8
    v_lshlrev_b32 v9, 12, v{vQ}
    v_lshl_add_u32 v{vF}, v{vN}, 4, v9
    """)
    for kap in range(1, 4): ex += L(f"v_xor_b32 v{vR2+kap}, {32*kap}, v{vR2}\n v_add_u32 v{vF+kap}, {16384*kap}, v{vF}")
    o += spread(mfmas(1), ex)
    o += st("g1")
    zget = [W("vm", "zl")] + L("s_barrier") + cfr
    if not P["cmf"]: o += zget + st("zwait")
    step = lambda k, part: acc(k >> 1, part) + 2 * (k & 1)
    G0, G1_ = 4, 8
    src = (step(0, 0), step(0, 1))
    for k in range(1, 16):
        d = (G0, G0 + 2) if k & 1 else (G1_, G1_ + 2)
        o += [pk("fma", d[0], src[0], LAM, step(k, 0), sel="plp"), pk("fma", d[1], src[1], LAM, step(k, 1), sel="plp"),
              pk("fma", d[0], src[1], LAM, d[0], sel="php", neg=[1, 0, 0]), pk("fma", d[1], src[0], LAM, d[1], sel="php")]
        src = d
    o += [pk("mul", SA_R, 4, COEF, sel="pl"), pk("mul", SA_I, 6, COEF, sel="pl"),
          pk("fma", SA_R, 6, COEF, SA_R, sel="php", neg=[1, 0, 0]), pk("fma", SA_I, 4, COEF, SA_I, sel="php")]
    sc = cmul1(4, 8, SA_R, SA_I, L16, L16+1, SA_R+1, SA_I+1)
    sc += L("""
    v_mov_b32 v6, v4
    v_mov_b32 v10, v8
    v_permlane32_swap_b32 v4, v6
    v_permlane32_swap_b32 v8, v10
    v_mov_b32 v5, v4
    v_mov_b32 v7, v6
    v_mov_b32 v9, v8
    v_mov_b32 v11, v10
    v_permlane16_swap_b32 v4, v5
    v_permlane16_swap_b32 v6, v7
    v_permlane16_swap_b32 v8, v9
    v_permlane16_swap_b32 v10, v11
    """)
    AG = WK + 36
    sc += cmul1(12, 13, 4, 8, L32, L32+1, 5, 9) + cmul1(14, 15, 12, 13, L32, L32+1, 6, 10) + cmul1(AG, AG+1, 14, 15, L32, L32+1, 7, 11)
    sc += L(f"""
    v_mov_b32 v{AG+2}, s{sT}
    v_mov_b32 v{AG+3}, s{sT}
    s_lshl_b32 s{t0}, s{sC}, 10
    s_add_u32 s{t0}, s{t0}, s{sLBA}
    v_cmp_gt_u32 vcc, 16, v{vL}
    v_cndmask_b32 v5, 2.0, v{vL16}, vcc
    """)
    sc += L(f"buffer_store_dwordx4 {vr(AG,4)}, v5, {wsr}, s{t0} offen sc1", tag="ag")
    if tch("ag"): sc += L("s_barrier") + tch("ag")
    sc += L(f"""
    v_cndmask_b32 v{PFX}, v4, 0, vcc
    v_cndmask_b32 v{PFX+1}, v8, 0, vcc
    v_cmp_eq_u32 vcc, 2, v{vQ}
    v_cndmask_b32 v{PFX}, v{PFX}, v12, vcc
    v_cndmask_b32 v{PFX+1}, v{PFX+1}, v13, vcc
    v_cmp_eq_u32 vcc, 3, v{vQ}
    v_cndmask_b32 v{PFX}, v{PFX}, v14, vcc
    v_cndmask_b32 v{PFX+1}, v{PFX+1}, v15, vcc
    """)
    LB, LA = TWF, 148
    sc += L(f"v_lshlrev_b32 v12, 2, v{vQ}\n v_sub_u32 v12, s{sC}, v12\n v_lshlrev_b32 v12, 10, v12\n v_lshl_add_u32 v12, v{vN}, 4, v12")
    for e in range(4):
        sc += L(f"v_subrev_u32 v{LA+e}, {1024*(e+1)}, v12\n v_min_u32 v{LA+e}, 2.0, v{LA+e}")
    CD, CT, TT = WK + 40, WK, 4
    cd1 = lambda kap, part: CD + (kap*2 + part)*4
    m1 = []
    for kap in range(4):
        m1.append(W("lg", f"cf{kap}"))
        for sg in range(4):
            for part in range(2):
                d = vr(cd1(kap, part), 4)
                m1 += L(f"{MF} {d}, {ar(cf(kap,sg),4)}, {ar(gc(sg,part),4)}, {'0' if sg == 0 else d}")
    cm = []
    for k in range(16):
        ur, ui = step(k, 0), step(k, 1)
        cm += [pk("mul", 4 + 4*(k&1), ui, COEF, sel="ph"), pk("mul", 6 + 4*(k&1), ur, COEF, sel="ph"),
               pk("fma", ur, ur, COEF, 4 + 4*(k&1), sel="plp", neg=[0,0,1]), pk("fma", ui, ui, COEF, 6 + 4*(k&1), sel="plp")]
    HW, HR = PL, PL + 4
    ha = L(f"""
    v_and_b32 v14, 8, v{vN}
    v_and_b32 v15, 3, v{vN}
    v_lshl_or_b32 v14, v15, 1, v14
    v_bfe_u32 v15, v{vN}, 2, 1
    v_lshlrev_b32 v13, 2, v{vQ}
    v_or_b32 v14, v14, v15
    v_xor_b32 v14, v14, v13
    v_lshl_add_u32 v14, v{vN}, 4, v14
    s_lshl1_add_u32 s{t0}, s{sM0}, {SCR}
    v_lshl_add_u32 v{HW}, v14, 4, s{t0}
    v_xor_b32 v{HW+1}, 16, v{HW}
    v_xor_b32 v{HW+2}, 32, v{HW}
    v_xor_b32 v{HW+3}, 48, v{HW}
    v_and_b32 v14, 1, v{vQ}
    v_lshrrev_b32 v15, 2, v{vN}
    v_lshl_add_u32 v12, v{vQ}, 3, v15
    v_lshlrev_b32 v14, 3, v14
    v_lshl_or_b32 v14, v15, 1, v14
    v_bfe_u32 v15, v{vN}, 1, 1
    v_xor_b32 v14, v14, v15
    v_lshl_add_u32 v12, v12, 4, v14
    v_and_b32 v15, 1, v{vN}
    v_lshl_add_u32 v12, v12, 1, v15
    s_lshl_b32 s{t0}, s{sHT}, 5
    s_add_u32 s{t0}, s{t0}, {SCR}
    v_lshlrev_b32 v12, 3, v12
    v_xor_b32 v{HR}, s{t0}, v12
    v_xor_b32 v{HR+1}, 16, v{HR}
    v_xor_b32 v{HR+2}, 64, v{HR}
    v_xor_b32 v{HR+3}, 80, v{HR}
    """)
    if P["cmf"]:
        nag = max(i for i, x in enumerate(sc) if x.tag in ("ag", "tch")) + 1
        o += sc[:nag + 8] + st("scan1") + cm[:P["cmf"]] + zget + cm[P["cmf"]:] + st("zwait")
        o += spread(m1, sc[nag + 8:] + ha)
        cm, ha = [], []
    else:
        o += spread(m1, sc)
    o += st("scan1+cc1")
    ct = lambda col, b: CT + (col*2 + b)*4
    tw = []
    for kap in range(4):
        for b in range(2):
            t_ = TWF + (kap*2 + b)*2
            tw += twid(cd1(kap, 0) + 2*b, cd1(kap, 1) + 2*b, t_, t_, TT + 4*b, TT + 4*b + 2, sel="l", sel2="h")
        for b in range(2):
            for col in range(2):
                tw += L(f"v_cvt_pk_bf16_f32 v{ct(col, b) + kap}, v{TT+4*b+col}, v{TT+4*b+2+col}")
    nxt = lambda n: sum((CSEND[cs_order.pop(0)] for _ in range(min(n, len(cs_order)))), [])
    o += spread(tw, tch("tw") + nxt(P["ctw"]))
    cd2 = lambda col, mu, part: CD + ((col*2 + mu)*2 + part)*4
    m2 = []
    for col in range(2):
        for b in range(2):
            for part in range(2):
                m2 += L(f"{MF} {vr(cd2(col, b, part), 4)}, {ar((aF2 if b else aF1)+4*part,4)}, {vr(ct(col,b),4)}, 0")
    lbl = "\n".join(f"buffer_load_dwordx4 {vr(LB+4*e,4)}, v{LA+e}, {wsr}, s{sLBA} offen sc1" for e in range(4))
    o += spread(m2, take(unp, 17)) + unp
    def bfly(col):
        r = []
        for part in range(2):
            for h in range(2):
                E, O = cd2(col,0,part) + 2*h, cd2(col,1,part) + 2*h
                r.append(pk("add", E, E, O))
        for part in range(2):
            for h in range(2):
                E, O = cd2(col,0,part) + 2*h, cd2(col,1,part) + 2*h
                r.append(pk("fma", O, O, "-2.0", E, sel="plp"))
        return r
    o += bfly(0) + bfly(1)
    o += st("cc2")
    o += [I("s_cmp_eq_u32 s2, 0\n    s_cbranch_scc1 K_SPECIAL\nK_SPECIAL_RET:")]
    SV, RV = WK, 81920
    PLN = 46
    assert RV + 4*PLN*256 <= SCR
    def revw(col, p0):
        r = []
        for mu in range(2):
            for i in range(4):
                r += L(f"ds_write2st64_b32 v12, v{cd2(col,mu,0)+i}, v{cd2(col,mu,1)+i} offset0:{p0+16*mu+i} offset1:{p0+PLN+16*mu+i}")
        return r + L(f"ds_write2st64_b32 v12, v{cd2(col,0,0)}, v{cd2(col,0,1)} offset0:{p0+32} offset1:{p0+PLN+32}")
    def revr(p0):
        r = L("s_waitcnt lgkmcnt(0)\n s_barrier")
        for mu in range(2):
            for h in range(2):
                k = p0 + 19 - 16*mu - 2*h
                for part in range(2):
                    r += L(f"ds_read2st64_b32 {vr(cd2(1,mu,part)+2*h,2)}, v13 offset0:{PLN*part+k} offset1:{PLN*part+k-1}")
        return r + L("s_waitcnt lgkmcnt(0)")
    sp = L(f"""
    K_SPECIAL:
    v_lshl_add_u32 v12, v{vQ}, 8, v{vN}
    v_add_u32 v12, s{sW16}, v12
    v_sub_u32 v13, {832 + RV//4}, v12
    v_add_u32 v12, {RV//4}, v12
    v_lshlrev_b32 v13, 2, v13
    v_lshlrev_b32 v12, 2, v12
    """)
    for mu in range(2):
        for part in range(2):
            for h in range(2):
                sp.append(pk("mul", cd2(0,mu,part)+2*h, cd2(0,mu,part)+2*h, "0.5", sel="pl"))
    sp += revw(0, 0)
    for mu in range(2):
        for h in range(2):
            a_ = aW2 + (mu*2 + h)*4
            sp += L(f"v_accvgpr_read_b32 v8, a{a_}\n v_accvgpr_read_b32 v9, a{a_+2}\n v_lshlrev_b32 v4, 16, v8\n v_lshlrev_b32 v5, 16, v9\n v_and_b32 v6, 0xffff0000, v8\n v_and_b32 v7, 0xffff0000, v9")
            qr, qi, sr_, si = cd2(1,mu,0)+2*h, cd2(1,mu,1)+2*h, SV + mu*8 + 2*h, SV + mu*8 + 4 + 2*h
            sp += [pk("mul", sr_, qr, 4), pk("mul", si, qi, 4), pk("fma", sr_, qi, 6, sr_, neg=[1,0,0]), pk("fma", si, qr, 6, si)]
    sp += L(f"s_add_u32 s{t1}, s{sN}, 1\n v_mov_b32 v6, s{t1}\n s_mov_b32 s{t1}, {WS_NONCE}\n buffer_store_dword v6, v{vONE}, {wsr}, s{t1} offen sc1")
    sp += revr(0)
    for mu in range(2):
        for h in range(2): sp.append(pk("mul", cd2(1,mu,1)+2*h, cd2(1,mu,1)+2*h, "-1.0", sel="pl"))
    sp += L("s_branch K_SPECIAL_RET\n K_SPECIAL2:") + revw(1, 2*PLN) + revr(2*PLN)
    for mu in range(2):
        for part in range(2):
            for h in range(2):
                sp += [pk("add", cd2(0,mu,part)+2*h, cd2(0,mu,part)+2*h, cd2(1,mu,part)+2*h, neg=[0, part]),
                       pk("add", cd2(1,mu,part)+2*h, SV + mu*8 + part*4 + 2*h, SV + mu*8 + part*4 + 2*h)]
    sp += L("s_barrier\n s_branch K_SPECIAL2_RET")
    tail += sp
    cw = f"s[{sCT}:{sCT+1}]"
    md = []
    for mu in range(2):
        for h in range(2):
            Pr, Pi, Qr, Qi = (cd2(0,mu,0)+2*h, cd2(0,mu,1)+2*h, cd2(1,mu,0)+2*h, cd2(1,mu,1)+2*h)
            W1r, W1i, W2r, W2i = (wu(0,0,mu,2*h), wu(0,1,mu,2*h), wu(1,0,mu,2*h), wu(1,1,mu,2*h))
            A, B, C_, D_ = 4, 6, 8, 10
            md += [pk("fma", A, Pr, cw, Qi, sel="plp"), pk("fma", B, Pi, cw, Qr, sel="plp", neg=[0,0,1]),
                   pk("fma", C_, Qr, cw, Pi, sel="plp"), pk("fma", D_, Qi, cw, Pr, sel="plp", neg=[0,0,1]),
                   pk("mul", Pr, A, W1r), pk("mul", Pi, B, W1r), pk("mul", Qr, C_, W2r), pk("mul", Qi, D_, W2r),
                   pk("fma", W1r, B, W1i, Pr, neg=[1,0,0]), pk("fma", W1i, A, W1i, Pi),
                   pk("fma", W2r, D_, W2i, Qr), pk("fma", W2i, C_, W2i, Qi, neg=[1,0,0]),
                   pk("fma", Pr, W1r, cw, W2i, sel="plp", neg=[0,0,1]), pk("fma", Pi, W1i, cw, W2r, sel="plp"),
                   pk("fma", Qr, W2r, cw, W1i, sel="plp", neg=[0,0,1]), pk("fma", Qi, W2i, cw, W1r, sel="plp")]
    md2 = []
    for col in range(2):
        md2 += bfly(col)
        for tp in range(2):
            for i in range(4):
                md2 += L(f"v_cvt_pk_bf16_f32 v{ct(col,tp)+i}, v{cd2(col,tp,0)+i}, -v{cd2(col,tp,1)+i}")
    o += spread(md, (L(lbl, tag="lb") + (L("s_barrier") + tch("lb") if tch("lb") else []), P["lb0"], P["lb0"] + 30))
    assert all(k in cs_order for k in (5, 6, 7))
    o += [I("s_cmp_eq_u32 s2, 0\n    s_cbranch_scc1 K_SPECIAL2\nK_SPECIAL2_RET:")]
    o += spread(md2, nxt(P["cmd"]))
    o += st("mid")
    if cm: o += spread(cm, tch("cm") + nxt(P["ccm"])) + ha
    o += [W("vm", "lb")]
    o += st("lbwait")
    chk = ""
    for e in range(4):
        chk += f"v_cmp_ne_u32 vcc, 2.0, v{LA+e}\n v_xor_b32 v{4+e}, s{sT}, v{LB+4*e+2}\n v_cndmask_b32 v{4+e}, 0, v{4+e}, vcc\n"
    chk += "v_or3_b32 v4, v4, v5, v6\n v_or_b32 v4, v4, v7\n v_cmp_ne_u32 vcc, 0, v4\n"
    o += L(chk + "s_cbranch_vccnz K_POLL2\n K_POLL2_OK:")
    tail += L(f"K_POLL2:\n s_mov_b32 s{u3}, 0\n K_POLL2_L:\n {lbl}\n s_add_u32 s{u3}, s{u3}, 1\n s_waitcnt vmcnt(0)\n {chk} s_cbranch_vccz K_POLL2_OK\n s_cmp_lt_u32 s{u3}, {SPIN}\n s_cbranch_scc1 K_POLL2_L\n s_branch K_POLL2_OK")
    o += st("lbok")
    fx = cmul1(4, 5, LB+12, LB+13, L128, L128+1, LB+8, LB+9) + cmul1(6, 7, 4, 5, L128, L128+1, LB+4, LB+5)
    fx += cmul1(4, 5, 6, 7, L128, L128+1, LB, LB+1) + cmul1(6, 8, 4, 5, L512Q, L512Q+1)
    fx += L("""
    v_permlane32_swap_b32 v6, v8
    v_add_f32 v6, v6, v8
    v_mov_b32 v8, v6
    v_permlane16_swap_b32 v6, v8
    v_add_f32 v6, v6, v8
    v_mov_b32 v8, v6
    v_permlane32_swap_b32 v6, v8
    """)
    fx += cmul1(10, 12, 6, 8, L32Q, L32Q+1, PFX, PFX+1) + cmul1(11, 13, 10, 12, L16, L16+1, SA_R, SA_I)
    HP = CD
    src = (10, 12)
    for k in range(16):
        d = (step(k, 0), step(k, 1))
        fx += [pk("fma", d[0], src[0], LAM, d[0], sel="plp"), pk("fma", d[1], src[1], LAM, d[1], sel="plp"),
               pk("fma", d[0], src[1], LAM, d[0], sel="php", neg=[1, 0, 0]), pk("fma", d[1], src[0], LAM, d[1], sel="php")]
        src = d
        if k & 1:
            tau = k >> 1
            for part in range(2):
                for i0 in range(2):
                    sg = "-" if part else ""
                    fx += L(f"v_cvt_pk_bf16_f32 v{HP+(part*2+i0)*8+tau}, {sg}v{acc(tau,part)+i0}, {sg}v{acc(tau,part)+2+i0}")
        if k in (7, 15):
            hf = k >> 3
            if k == 7: fx += L("s_barrier")
            for part in range(2):
                for i0 in range(2):
                    fx += L(f"ds_write_b128 v{HW+2*i0+hf}, {vr(HP+(part*2+i0)*8+4*hf,4)} offset:{part*4096}", tag="hw")
    o += tch("fx0") + spread(fx, (nxt(P["cfx"]), 0, 125))
    C3 = ACC
    cd3 = lambda col, tp, part: C3 + ((col*2 + tp)*2 + part)*4
    mA = []
    for col in range(2):
        for tp in range(2):
            for part in range(2):
                mA += L(f"{MF} {vr(cd3(col,tp,part),4)}, {vr(ct(col,tp),4)}, {ar((aFA if tp else aF1)+4*part,4)}, 0")
    ex = L(f"""
    v_and_b32 v12, 3, v{vN}
    v_mul_u32_u24 v12, 4112, v12
    v_and_b32 v13, 60, v{vL}
    v_lshl_add_u32 v12, v13, 4, v12
    s_lshl_b32 s{t0}, s{sW}, 10
    s_add_u32 s{t0}, s{t0}, {SCR}
    v_add_u32 v12, s{t0}, v12
    v_add_u32 v13, {SCR}, v{vL16}
    s_lshl_b32 s{u0}, s{sHT}, 16
    s_add_u32 s{u0}, s{u0}, s{sSL}
    s_add_u32 s{u1}, s{u0}, 0x20000
    """)
    o += spread(mA, ex)
    o += [W("lg", "hw")] + L("s_barrier")
    o += st("fix")
    A0 = 64
    for tau in range(2):
        for kap in range(4):
            r = A0 + (tau*4 + kap)*4
            o += L(f"ds_read_b64_tr_b16 {vr(r,2)}, v{HR+2*tau} offset:{kap*8192}\n ds_read_b64_tr_b16 {vr(r+2,2)}, v{HR+2*tau+1} offset:{kap*8192+1024}", tag="hr")
    def hstores(fl, tag="hst"):
        r = []
        for tau in range(2):
            for kap in range(4):
                r += L(f"buffer_store_dwordx4 {vr(A0+(tau*4+kap)*4,4)}, v{vF+kap}, {osr}, s{u0+tau} offen {fl}", tag=tag)
        return r
    def invtw(cols):
        r = []
        for col, tp in cols:
            for h in range(2):
                r += twid(cd3(col,tp,0) + 2*h, cd3(col,tp,1) + 2*h, TWI + tp*8 + 2*h, TWI + tp*8 + 4 + 2*h, TT + 4*h, TT + 4*h + 2)
            for i in range(4):
                r += L(f"v_cvt_pk_bf16_f32 v{ct(col,tp)+i}, v{TT+4*(i>>1)+(i&1)}, v{TT+4*(i>>1)+2+(i&1)}")
        return r
    o += invtw([(0, 0)])
    o += [W("lg", "hr")] + L("s_barrier")
    xw = lambda col, tp: L(f"ds_write_b128 v12, {vr(ct(col,tp),4)} offset:{tp*32 + col*16}", tag="xw")
    rest = xw(0, 0) + invtw([(0, 1)]) + xw(0, 1) + invtw([(1, 0)]) + xw(1, 0) + invtw([(1, 1)]) + xw(1, 1)
    o += [I(f"s_cmp_lg_u32 s{sLOC}, 0\n    s_cbranch_scc1 K_HFAR")]
    o += spread(rest, hstores(""))
    o += L("K_HFAR_RET:")
    far = L("K_HFAR:") + spread([I(x.t) for x in rest], hstores("sc1")) + L("s_branch K_HFAR_RET")
    tail += far
    o += nxt(P["ch"])
    o += [W("lg", "xw")] + L("s_barrier")
    for kap in range(4):
        for sg in range(4):
            o += L(f"ds_read_b128 {ar(cf(kap,sg),4)}, v13 offset:{kap*4112 + sg*1024}", tag=f"cg{kap}")
    TW, SK, GG, AD = 96, 112, 128, 130
    o += L(f"""
    v_lshlrev_b32 v12, 4, v{vQ}
    v_and_b32 v14, 12, v{vN}
    v_add_u32 v12, v12, v14
    v_and_b32 v14, 3, v{vN}
    v_lshlrev_b32 v14, 4, v14
    v_lshl_add_u32 v12, v12, 14, v14
    v_lshlrev_b32 v14, 31, v{vN}
    s_lshl_b32 s{t0}, s{sW}, 14
    s_add_u32 s{t0}, s{t0}, s{sPI}
    s_lshl_b32 s{t0}, s{t0}, 6
    s_add_u32 s{t0}, s{t0}, {WS_Y}
    s_lshr_b32 s{u2}, s2, 5
    s_lshl2_add_u32 s{u2}, s{u2}, s{sFL2}
    v_and_b32 v5, 7, v{vL}
    v_lshl_add_u32 v5, v5, 2, s{sO}
    v_add_u32 v6, s{sLOC}, v{vONE}
    v_add_u32 v7, s{sNLOC}, v{vONE}
    v_mov_b32 v28, s{sT}
    """)
    up = []
    for k in range(16): up += L(f"v_accvgpr_read_b32 v{TW+k}, a{aTW+k}")
    for k in range(18): up += L(f"v_accvgpr_read_b32 v{SK+k}, a{aS+k}")
    for k in range(4): up += L(f"v_accvgpr_read_b32 v{AD+k}, a{aAD+k}")
    pend = []; YST = []
    for kap in range(4):
        mB = [W("lg", f"cg{kap}")]
        for sg in range(4):
            for part in range(2):
                d = vr(cd1(kap, part), 4)
                mB += L(f"{MF} {d}, {ar(gc(sg,part),4)}, {ar(cf(kap,sg),4)}, {'0' if sg == 0 else d}")
        o += spread(mB, (take(up, 16 if kap == 0 else 6), 1, 8 if kap == 0 else 3), (pend, 4, 8), nxt(P["cmb"]))
        pend = []
        for i in range(4): pend += L(f"v_cvt_pk_bf16_f32 v{CT+kap*4+i}, v{cd1(kap,0)+i}, v{cd1(kap,1)+i}")
        for i in range(4): pend += L(f"v_xor_b32 v{CT+kap*4+i}, v14, v{CT+kap*4+i}")
        ys = L(f"buffer_store_dwordx4 {vr(CT+kap*4,4)}, v12, {wsr}, s{t0} offen sc1", tag="yst")
        if kap < 3: ys += L(f"s_add_u32 s{t0}, s{t0}, {YS}")
        if P["ydef"]: YST += ys
        else: pend += ys
    o += up
    o += st("cci")
    assert 0 not in cs_order
    o += [W("vm", "hst"), W("vm", "cs0")] + L("s_barrier")
    o += L(f"buffer_store_dword v28, v6, {wsr}, s{u2} offen offset:32\n buffer_store_dword v28, v7, {wsr}, s{u2} offen offset:32 sc1", tag="fl")
    o += pend
    o += st("hack")
    AC2, BF = 32, 152
    ac2 = lambda tau, jt: AC2 + (tau*4 + jt)*4
    af = lambda k, tau, kap: (vr(A0 + (tau*4 + kap)*4, 4) if k == 0 else ar((k-1)*32 + (tau*4 + kap)*4, 4))
    def reads2(k, kap):
        base = (k & 3) * 16384; r = []
        for jt in range(4): r += L(f"ds_read_b128 {vr(BF+(kap&1)*16+jt*4,4)}, v{vR2+kap} offset:{base + jt*2048}", tag="fr")
        if k & 3 == 3: r += L(f"v_xor_b32 v{vR2+kap}, 0x10000, v{vR2+kap}")
        return r
    def mfmas2(k, kap):
        r = []
        for jt in range(4):
            for tau in range(2):
                a_ = vr(ac2(tau, jt), 4)
                r += L(f"{MF} {a_}, {af(k,tau,kap)}, {vr(BF+(kap&1)*16+jt*4,4)}, {'0' if (k == 0 and kap == 0) else a_}")
        return r
    def aload(k):
        r = L(f"s_bfe_u32 s{sA}, s{sPT}, {0x40000 | (4*k)}\n s_lshl_b32 s{sA}, s{sA}, 8\n s_add_u32 s{sA}, s{sA}, s{sHB}\n s_add_u32 s{sA2}, s{sA}, 0x20000")
        for kap in range(4):
            r += L(f"buffer_load_dwordx4 {af(k,0,kap)}, v{vF+kap}, {osr}, s{sA} offen {lfl}\n buffer_load_dwordx4 {af(k,1,kap)}, v{vF+kap}, {osr}, s{sA2} offen {lfl}", tag=f"a{k}{kap}")
        return r
    def gpass(hook, pre):
        r = []
        for k in range(8):
            for kap in range(4):
                r += [W("lg", "fr")] + pre(k, kap)
                if k == 0 and kap == 0: r += reads2(0, 0) + hook(0, 0)
                else: r += spread(mfmas2(k, kap - 1) if kap else mfmas2(k - 1, 3), (reads2(k, kap), 0, 3), hook(k, kap))
        return r
    def quarter(lst, kap): return lst[kap*len(lst)//4:(kap+1)*len(lst)//4]
    pl2 = f"buffer_load_dword v4, v5, {wsr}, s{sFL2} offen offset:32 sc1"
    YL, PL3 = 184, 8
    pl3 = f"buffer_load_dword v{PL3}, v{vL16}, {wsr}, s{u2} offen sc1"
    keepx = [I(f"v_xor_b32 v{vDC+jj}, 0x100000, v{vDC+jj}") for jj in range(4)]
    CKEEP = [cdma(e, f"ck{e}", P["ckfl"]) for e in range(8)]
    yl = L(f"s_lshl4_add_u32 s{u2}, s{sC}, s{sJ}\n s_lshl4_add_u32 s{u2}, s{u2}, s{sW}\n s_lshl_b32 s{u2}, s{u2}, 10\n s_add_u32 s{u2}, s{u2}, {WS_Y}")
    for rho in range(4):
        yl += L(f"buffer_load_dwordx4 {vr(YL+4*rho,4)}, v{vL16}, {wsr}, s{u2} offen {P['once']}", tag="y")
        if rho < 3: yl += L(f"s_add_u32 s{u2}, s{u2}, 4096")
    H0 = {k: [] for k in range(8)}
    for k in range(1, 6): H0[k] = aload(k + 2)
    SIG3, POLL3, CHK3 = P["sig3"], P["poll3"], P["chk3"]
    late = list(cs_order)
    assert not late or min(late) >= 4
    H0[1] = nxt(8) + H0[1]
    H0[SIG3] = L(f"s_lshl4_add_u32 s{u2}, s2, {WS_FL3}") + signal(u2) + H0[SIG3]
    if P["cpf2"] >= 0: H0[P["cpf2"]] = H0[P["cpf2"]] + code_pf("K_PC3", "v29")
    H0[POLL3] = L(f"s_lshl_b32 s{u2}, s{sW}, 10\n s_add_u32 s{u2}, s{u2}, {WS_FL3}") + L(pl3, tag="poll") + H0[POLL3]
    H0[CHK3] = H0[CHK3] + yl + keepx + CKEEP[0]
    H0[7] = H0[7] + CKEEP[1] + (CKEEP[2] if CHK3 < 7 else [])
    a1, a2 = aload(1), aload(2)
    def hook0(k, kap):
        if k == 0: return {1: L(pl2, tag="poll"), 2: YST if P["ydef"] == 1 else [], 3: a1}.get(kap, [])
        if k == 1 and kap == 0: return a2 + (YST if P["ydef"] == 2 else [])
        if k == 1: return H0[1][(kap-1)*len(H0[1])//3:kap*len(H0[1])//3]
        return quarter(H0[k], kap)
    def pre0(k, kap):
        r = []
        if (k, kap) == (0, 3): r = [W("vm", "poll")] + poll_check("K_POLL3", 4, sE, pl2) + L("s_barrier") + st("hflag")
        if (k, kap) == (SIG3, 0): r = [W("vm", "yst")] + L("s_barrier")
        if late and (k, kap) == (min(late), 0): r = [W("vm", "cs7")] + (r or L("s_barrier"))
        if (k, kap) == (CHK3, 0): r = r + [W("vm", "poll")] + poll_check("K_POLL4", PL3, sT, pl3) + L("s_barrier") + st("yflag")
        kk, kp = (k, kap - 1) if kap else (k - 1, 3)
        if kk >= 1: r += [W("vm", f"a{kk}{kp}")]
        if kap == 1 and k in (1, 2, 4, 6): r += st(f"a{k}")
        return r
    o += gpass(hook0, pre0)
    o += [W("lg", "fr"), W("vm", "a73")]
    ex = L(f"s_lshl_b32 s{t0}, s2, 14\n s_add_u32 s{t0}, s{t0}, s{sM0}\n s_add_u32 s{t0}, s{t0}, {WS_PART}\n v_lshlrev_b32 v4, 16, v{vQ}\n v_lshl_add_u32 v4, v{vN}, 4, v4")
    XU = 216
    xu = lambda e, tp, part: XU + ((e*2 + tp)*2 + part)*4
    unp = []
    for e in range(2):
        for tp in range(2):
            for i in range(4):
                unp += L(f"v_lshlrev_b32 v{xu(e,tp,0)+i}, 16, v{SK+(e*2+tp)*4+i}\n v_and_b32 v{xu(e,tp,1)+i}, 0xffff0000, v{SK+(e*2+tp)*4+i}")
    o += spread(mfmas2(7, 3), ex + take(unp, 10)) + take(unp, 6)
    o += st("p0")
    PO = 200
    for i in range(4):
        for tau in range(2):
            for h in range(2):
                o += L(f"v_cvt_pk_bf16_f32 v{PO+i*4+tau*2+h}, v{ac2(tau,2*h)+i}, v{ac2(tau,2*h+1)+i}")
        o += L(f"buffer_store_dwordx4 {vr(PO+i*4,4)}, v{vL16}, {wsr}, s{t0} offen offset:{1024*i} sc1", tag="st5")
    o += [W("vm", "y")]
    o += st("ywait")
    for rho in range(4):
        for h in range(2):
            o += L(f"ds_write_b64 v{AD+2 if rho == 0 else AD+3}, {vr(YL+4*rho+2*h,2)} offset:{h*2080 + rho*512}", tag="yw")
    o += unp
    o += [W("lg", "yw")] + L("s_barrier")
    AO = YL
    for e in range(2):
        for mu in range(2):
            for h in range(2):
                o0, o1 = (64*h + e, 64*h + 32 + e) if mu == 0 else (96 - 64*h + e, 64 - 64*h + e)
                o += L(f"ds_read2_b32 {vr(AO+(e*2+mu)*4+2*h,2)}, v{AD+mu} offset0:{o0} offset1:{o1}", tag=f"yr{e}")
    DA = AC2
    da = lambda e, tp, part: DA + ((e*2 + tp)*2 + part)*4
    mA = []
    for e in range(2):
        mA.append(W("lg", f"yr{e}"))
        for mu in range(2):
            for tp in range(2):
                for part in range(2):
                    d = vr(da(e, tp, part), 4)
                    cst = aF1 if tp == 0 else (aNA if mu else aFA)
                    mA += L(f"{MF} {d}, {vr(AO+(e*2+mu)*4,4)}, {ar(cst+4*part,4)}, {'0' if mu == 0 else d}")
    o += spread(mA, CKEEP[2] if CHK3 == 7 else CKEEP[3])
    TP, T0 = BF, BF + 16
    ri = []
    for e in range(2):
        for tp in range(2):
            for h in range(2):
                ri += twid(da(e,tp,0) + 2*h, da(e,tp,1) + 2*h, TW + tp*4 + 2*h, TW + 8 + tp*4 + 2*h, T0 + 4*h, T0 + 4*h + 2)
            for i in range(4):
                ri += L(f"v_cvt_pk_bf16_f32 v{TP+(e*2+tp)*4+i}, v{T0+4*(i>>1)+(i&1)}, v{T0+4*(i>>1)+2+(i&1)}")
    o += ri
    for e in range(2):
        for tp in range(2):
            for part in range(2):
                o += L(f"{MF} {vr(da(e,tp,part),4)}, {ar(aF1+4*part,4)}, {vr(TP+(e*2+tp)*4,4)}, 0")
    CO = YL
    for h in range(2):
        for e in range(2):
            for tp in range(2):
                for part in range(2):
                    o.append(pk("fma", xu(e,tp,part)+2*h, da(e,tp,part)+2*h, GG, xu(e,tp,part)+2*h, sel="p" + "lh"[e] + "p", neg=[part, 0, 0]))
        for i in (2*h, 2*h + 1):
            for e in range(2):
                for tp in range(2):
                    o += L(f"v_cvt_pk_bf16_f32 v{CO+i*4+e*2+tp}, v{xu(e,tp,0)+i}, v{xu(e,tp,1)+i}")
            o += L(f"buffer_store_dwordx4 {vr(CO+i*4,4)}, v4, {wsr}, s{sCOMB} offen sc1", tag="st4")
            if i < 3: o += L(f"s_add_u32 s{sCOMB}, s{sCOMB}, 16384")
    o += st("ri")
    CB, PB, OM, CU = 96, 112, 128, 184
    pl4 = f"buffer_load_dword v4, v5, {wsr}, s{u2} offen sc1"
    pl5 = f"buffer_load_dword v6, v9, {wsr}, s{u2} offen sc1"
    SIG4, POLL4, CHK4, POLL5, CHK5 = P["sig4"], P["poll4"], P["chk4"], P["poll5"], P["chk5"]
    H1 = {k: [] for k in range(8)}
    ck = [e for e in range(3 if CHK3 == 7 else 4, 8)]
    H1[0] = L(f"s_lshl_b32 s{u1}, s{sPI}, 6\n s_add_u32 s{u0}, s{u1}, {WS_FL5}") + signal(u0)
    H1[0] += L(f"s_add_u32 s{u1}, s{u1}, {WS_FL4}\n s_lshl_b32 s{u2}, s{sC}, 10\n s_add_u32 s{u2}, s{u2}, {WS_FL4}")
    H1[0] += L(f"v_lshl_add_u32 v5, v{vN}, 6, s{sO}\n s_xor_b32 s{t0}, s{sJ}, {8 + 256}\n s_lshl_b32 s{t0}, s{t0}, 6\n s_add_u32 s{t0}, s{t0}, s{sO}\n v_mov_b32 v9, s{t0}")
    for k in range(3):
        for e in take(ck, 2): H1[k] += CKEEP[e]
    H1[SIG4] = signal(u1) + H1[SIG4]
    if P["rfr"] >= 0:
        H1[P["rfr"]] = L(f"v_lshrrev_b32 v10, 1, v{vL}\n v_lshlrev_b32 v10, 5, v10\n v_and_or_b32 v10, v{vL}, 1, v10\n v_lshlrev_b32 v10, 7, v10\n s_lshl_b32 s{sA}, s{sW}, 17\n s_add_u32 s{sA}, s{sA}, s{sSL}") + L(f"buffer_load_dword v10, v10, {osr}, s{sA} offen sc1", tag="rfr") + H1[P["rfr"]]
    fin = L(f"""
    s_lshl4_add_u32 s{t0}, s{sC}, s{sJ}
    s_lshl_b32 s{t0}, s{t0}, 14
    s_add_u32 s{t0}, s{t0}, s{sM0}
    s_add_u32 s{t0}, s{t0}, {WS_COMB}
    s_xor_b32 s{t1}, s2, 4
    s_lshl_b32 s{t1}, s{t1}, 14
    s_add_u32 s{t1}, s{t1}, s{sM0}
    s_add_u32 s{t1}, s{t1}, {WS_PART}
    s_lshl2_add_u32 s{t2}, s{sC}, s{sW}
    s_lshl_b32 s{t2}, s{t2}, 7
    s_add_u32 s{t2}, s{t2}, {WS_OMG}
    v_lshlrev_b32 v7, 5, v{vQ}
    s_lshl3_add_u32 s{t3}, s{sC}, s{sHT}
    s_lshl_b32 s{t3}, s{t3}, 8
    s_add_u32 s{t3}, s{t3}, s{sJ}
    s_lshl_b32 s{t3}, s{t3}, 8
    v_lshlrev_b32 v8, 14, v{vQ}
    v_lshl_add_u32 v8, v{vN}, 4, v8
    """)
    H1[2] = H1[2] + fin
    flp, flc = [], []
    for i in range(4): flp += L(f"buffer_load_dwordx4 {vr(PB+4*i,4)}, v{vL16}, {wsr}, s{t1} offen offset:{1024*i} {P['once']}", tag=f"pb")
    for h in range(2): flc += L(f"buffer_load_dwordx4 {vr(OM+4*h,4)}, v7, {wsr}, s{t2} offen offset:{16*h} sc1", tag="om")
    for i in range(4): flc += L(f"buffer_load_dwordx4 {vr(CB+4*i,4)}, v{vL16}, {wsr}, s{t0} offen offset:{1024*i} {P['once']}", tag=f"cb{i}")
    PU = 216
    pun = [W("vm", "pb")]
    for k in range(16): pun += L(f"v_lshlrev_b32 v{PU+2*k}, 16, v{PB+k}\n v_and_b32 v{PU+2*k+1}, 0xffff0000, v{PB+k}")
    def hook1(k, kap):
        r = quarter(H1[k], kap)
        if 4*k + kap == POLL5: r = r + L(pl5, tag="poll5")
        if 4*k + kap == POLL4: r = r + L(pl4, tag="poll")
        if 4*k + kap == CHK5: r = flp + r
        if 4*k + kap == CHK4: r = flc + r
        if k == 7 and kap: r = r + pun[(kap-1)*11:kap*11]
        return r
    def pre1(k, kap):
        r = []
        if 4*k + kap == CHK5: r += [W("vm", "poll5")] + poll_check("K_POLL6", 6, sE, pl5)
        if 4*k + kap == CHK4: r += [W("vm", "poll")] + poll_check("K_POLL5", 4, sE, pl4)
        if kap == 0:
            if k == 0: r += [W("vm", "ck1"), W("vm", "st5")]
            if k == 2: r += [W("vm", "ck3")]
            if k == 4: r += [W("vm", "ck7")]
            if k == SIG4: r += [W("vm", "st4")]
        if r: r += L("s_barrier")
        if kap == 0 and k in (0, 3, 5, 7): r += st(f"k{k}")
        return r
    o += gpass(hook1, pre1)
    o += [W("lg", "fr")]
    o += mfmas2(7, 3)
    o += st("p1")
    for i in range(4):
        o += [W("vm", f"cb{i}")]
        if i == 0: o += st("cbwait")
        for tau in range(2):
            d = CU + (i*2 + tau)*4
            for h in range(2):
                pu = PU + (i*4 + tau*2 + h)*2
                o += L(f"""
                v_add_f32 v{pu}, v{pu}, v{ac2(tau,2*h)+i}
                v_add_f32 v{pu+1}, v{pu+1}, v{ac2(tau,2*h+1)+i}
                v_lshlrev_b32 v{d+2*h}, 16, v{CB+4*i+2*tau+h}
                v_and_b32 v{d+2*h+1}, 0xffff0000, v{CB+4*i+2*tau+h}
                """) + [pk("fma", d+2*h, pu, OM+2*i, d+2*h, sel="p" + "lh"[tau] + "p")]
            o += L(f"s_add_u32 s{t1}, s{t3}, {(32*tau + i)*4096}") if (tau or i) else L(f"s_mov_b32 s{t1}, s{t3}")
            o += L(f"buffer_store_dwordx4 {vr(d,4)}, v8, s[{OUT_}:{OUT_+3}], s{t1} offen {P['outfl']}", tag="ost")
    o += st("ost")
    if diag:
        o += L("s_waitcnt vmcnt(0)") + st("drain") + st.real("rt1")
        o += L(f"s_lshl2_add_u32 s3, s2, s{sW}\n s_lshl_b32 s3, s3, 8\n s_add_u32 s3, s3, {WS_STAMP}\n v_lshlrev_b32 v4, 2, v{vL}\n buffer_store_dword v{vST}, v4, {wsr}, s3 offen")
    o += L("K_END:\n s_endpgm")
    drop = set(str(P.get("drop", "")).split("+")) - {""}
    if drop: o = [x for x in o if not (x.tag and any(x.tag.startswith(d) for d in drop) and x.t.startswith(("buffer_", "global_")) and "v30," not in x.t)]
    return dict(name=KNAME, body=finish(o, tail) + "K_CODE_END:\n", grid=256, block=256, lds=163840, vgpr=256, agpr=256, sgpr=102), st.names

def build(diag=False, hdbg=False, P=None, single=True):
    k, names = kernel(diag, hdbg, P)
    txt = build_file([k], extra_comments=([("rtstamps: " if diag == 2 else "stamps: ") + " ".join(names)] if diag else []) + (["hdbg"] if hdbg else []))
    if single: txt = txt.replace(f"@launch kernel={KNAME} ", "@launch ")
    return txt

if __name__ == "__main__":
    P = {}
    for a in sys.argv[1:]:
        if a.startswith("-P"):
            k, v = a[2:].split("=")
            try: P[k] = int(v)
            except ValueError:
                try: P[k] = float(v)
                except ValueError: P[k] = v
    out = [a for a in sys.argv[1:] if not a.startswith("-")]
    open(out[0] if out else "k.s", "w").write(build(2 if "--rt" in sys.argv else ("--diag" in sys.argv), "--hdbg" in sys.argv, P, "--list" not in sys.argv))
```

```python
import sys, os
sys.path.insert(0, os.path.dirname(os.path.abspath(__file__)))
from kb import *
from asmlib import build_file

KNAME = "gated_mix__spectral_gfnet__ssm_conv_s5__prompt_kernel"
MF = "v_mfma_f32_16x16x32_bf16"
HASH_A, HASH_B = 0x9E3779B1, 0x7F4A7C15
SPIN = 200000
ZS = 32768
YS = 16384
WS_Z = 0
WS_W256 = 0
WS_Y = 9 << 20
WS_COMB = 13 << 20
WS_PART = 17 << 20
WS_AGG = 21 << 20
WS_OMG = WS_AGG + (256 << 10)
WS_FL1 = WS_OMG + (16 << 10)
WS_FL2 = WS_FL1 + 4096
WS_FL3 = WS_FL2 + 4096
WS_FL4 = WS_FL3 + 4096
WS_FL5 = WS_FL4 + 16384
WS_NONCE = WS_FL5 + 16384
WS_STAMP = 22 << 20
WS_HDBG = 24 << 20
WS_SIZE = 32 << 20
LOG2E = 1.4426950408889634

def srd(d, lo, size):
    return L(f"s_mov_b64 s[{d}:{d+1}], s[{lo}:{lo+1}]\n s_mov_b32 s{d+2}, {size}\n s_mov_b32 s{d+3}, 0x00020000")

def pk(op, d, a, b, c=None, sel=None, neg=None):
    srcs = [a, b] + ([c] if c is not None else [])
    txt = [x if isinstance(x, str) else vr(x, 2) for x in srcs]
    n = len(srcs); sel = sel or "p" * n; neg = neg or [0] * n
    lo = [1 if k == "h" else 0 for k in sel]; hi = [0 if k == "l" else 1 for k in sel]
    f = lambda v: "[" + ",".join(map(str, v)) + "]"
    t = f"v_pk_{op}_f32 {vr(d,2)}, " + ", ".join(txt)
    if any(lo): t += f" op_sel:{f(lo)}"
    if not all(hi): t += f" op_sel_hi:{f(hi)}"
    if any(neg): t += f" neg_lo:{f(neg)} neg_hi:{f(neg)}"
    return I(t)

def cmul1(dr, di, ar_, ai, br, bi, cr=None, ci=None):
    if cr is None:
        return L(f"v_mul_f32 v{dr}, v{ar_}, v{br}\n v_mul_f32 v{di}, v{ar_}, v{bi}\n v_fma_f32 v{dr}, -v{ai}, v{bi}, v{dr}\n v_fma_f32 v{di}, v{ai}, v{br}, v{di}")
    return L(f"v_fma_f32 v{dr}, v{ar_}, v{br}, v{cr}\n v_fma_f32 v{di}, v{ar_}, v{bi}, v{ci}\n v_fma_f32 v{dr}, -v{ai}, v{bi}, v{dr}\n v_fma_f32 v{di}, v{ai}, v{br}, v{di}")

def twid(re, im, cs, sn, tr, ti, sel="p", sel2=None):
    s2 = sel2 or sel
    return [pk("mul", tr, re, cs, sel="p" + sel), pk("mul", ti, im, cs, sel="p" + sel),
            pk("fma", tr, im, sn, tr, sel="p" + s2 + "p"), pk("fma", ti, re, sn, ti, sel="p" + s2 + "p", neg=[1, 0, 0])]

def angles(step, base, ks, an, cs, sn):
    r = []
    for k, a in zip(ks, an): r += L(f"v_fmamk_f32 v{a}, v{step}, {fbits(k)}, v{base}")
    for a, c in zip(an, cs): r += L(f"v_cos_f32 v{c}, v{a}")
    for a, s in zip(an, sn): r += L(f"v_sin_f32 v{s}, v{a}")
    return r

class Stamps:
    def __init__(self, on, reg, only=None): self.on = on; self.reg = reg; self.names = []; self.only = only
    def _s(self, name, op):
        if not self.on: return []
        if self.only and not (name.startswith(self.only) or name in ("rt0", "rt1")): return []
        if not self.only and name.startswith("@"): return []
        n = len(self.names); self.names.append(name); assert n < 64
        return L(f"{op} s[64:65]", tag="stamp") + [W("lg", "*")] + L(f"v_writelane_b32 v{self.reg}, s64, {n}")
    def __call__(self, name): return self._s(name, "s_memrealtime" if self.on == 2 else "s_memtime")
    def real(self, name): return self._s(name, "s_memrealtime")

def scout(ng, lead):
    T = []; nb = 16 // ng
    for g in range(ng):
        o = [g]
        for b in range(nb):
            hits = [ng * b + (g + k) % ng for k in range(1, ng)]
            if b + 1 < nb: hits.insert(min(len(hits), lead(g)), ng * (b + 1) + g)
            o += hits
        T.append(o)
    return T

def spread(main, *streams):
    n = len(main); out = []; st = []
    for s in streams:
        if isinstance(s, tuple): st.append([s[0], min(s[1], n - 1), min(s[2], n - 1), 0])
        else: st.append([s, 0, n - 1, 0])
    for g, x in enumerate(main):
        out.append(x)
        for s in st:
            lst, a, b, j = s
            if g < a: continue
            tgt = len(lst) if g >= b else -(-(g - a + 1) * len(lst) // (b - a + 1))
            out += lst[j:tgt]; s[3] = max(j, tgt)
    return out

def take(lst, n):
    r = lst[:n]; del lst[:n]; return r

DEFAULTS = dict(xx=1, lead=0, zit=13, sig1=7, poll1=12, st0=3, stn=8, local=1, slp=2, wtit=1, nd0=10, ng0=150, pd1=0.0, pd1e=1.0,
                touchs="no", touchk="fx0", cmf=0, c13=0, c14=1, c15=1, ctw=1, cmd=1, ccm=2, cfx=0, ch=1, cmb=1, lb0=30, prew=0, ckfl="nt", tlb=0, cpf=10, cpf2=4, d0first=0, d0e=110, rfr=-1, lfl="sc1", once="sc1_nt",
                outfl="", ydef=0, sig3=2, poll3=6, chk3=7, sig4=3, poll4=23, chk4=28, poll5=15, chk5=20)

def kernel(diag=False, hdbg=False, P=None):
    P = dict(DEFAULTS, **(P or {}))
    for k in ("once", "outfl", "lfl"): P[k] = P[k].replace("_", " ")
    o = []
    vST = 31
    st = Stamps(diag, vST, P.get("only"))
    X, BS, WR, WI, WS, TMPS = 8, 12, 16, 20, 24, 28
    CS, OUT_ = 16, 28
    osr = f"s[{OUT_}:{OUT_+3}]"
    sPI, sSL = 4, 5
    vF = 24
    sC, sJ, sW, sT, sK, sM0 = 32, 33, 34, 35, 36, 37
    t0, t1, t2, t3 = 38, 39, 40, 41
    sCT = 42
    sN, sKT = 62, 66
    u0, u1, u2, u3 = 68, 69, 70, 71
    sCK, sA, sA2, sCOMB = 72, 73, 74, 75
    f0, f1 = 76, 77
    sNT, sLBA, sHT, sHB, sXC, sPT, sE, sO = 92, 93, 94, 95, 96, 97, 98, 99
    sLOC, sFL2, sW16, sAH = 50, 51, 63, 6
    sNLOC = 7
    SCR = 131072
    HB = WS_HDBG if hdbg else WS_Z
    vL, vN, vQ, vL16 = 0, 1, 2, 3
    vDA, vDB, vRA, vRB, vRH = 16, 20, 24, 26, 148
    ACC = 32
    TWF, TWI = 96, 112
    LAM, COEF, L16, L32, L128, L32Q, L512Q = 128, 130, 132, 134, 136, 138, 140
    SA_R, SA_I, PFX = 142, 144, 146
    WU, WK = 152, 184
    aGC, aFR, aSV, aW2, aTW, aS, aAD = 0, 32, 112, 120, 136, 152, 170
    aF1, aFA, aNA, aF2 = 224, 232, 240, 248
    acc = lambda tau, part: ACC + (tau * 2 + part) * 4
    wsr = f"s[{WS}:{WS+3}]"
    vONE = 30

    def signal(addr_sreg, flags="sc1", val=None):
        return L(f"v_mov_b32 v28, s{val or sT}") + L(f"buffer_store_dword v28, v{vONE}, {wsr}, s{addr_sreg} offen {flags}", tag="fl")

    def poll_check(name, reg, sexp, load):
        r = L(f"v_cmp_ne_u32 vcc, s{sexp}, v{reg}\n s_cbranch_vccnz {name}\n {name}_OK:")
        tail.extend(L(f"""
        {name}:
        s_mov_b32 s{u3}, 0
        {name}_L:
        s_sleep {P['slp']}
        {load}
        s_add_u32 s{u3}, s{u3}, 1
        s_waitcnt vmcnt(0)
        v_cmp_ne_u32 vcc, s{sexp}, v{reg}
        s_cbranch_vccz {name}_OK
        s_cmp_lt_u32 s{u3}, {SPIN}
        s_cbranch_scc1 {name}_L
        s_branch {name}_OK
        """))
        return r
    tail = []

    if diag: o += L("s_memrealtime s[100:101]", tag="stamp")
    o += L(f"s_load_dwordx2 s[{X}:{X+1}], s[0:1], 0\n s_load_dwordx2 s[60:61], s[0:1], 120", tag="ka")
    o += L(f"""
    s_cmp_ge_u32 s2, 256
    s_cbranch_scc1 K_END
    s_getpc_b64 s[{TMPS}:{TMPS+1}]
    K_PC:
    s_mov_b32 s{TMPS+2}, K_CODE_END-K_PC
    s_mov_b32 s{TMPS+3}, 0x00020000
    s_bfe_u32 s{t0}, s2, 0x30003
    s_lshl_b32 s{t0}, s{t0}, 13
    v_lshl_add_u32 v4, v0, 5, s{t0}
    v_lshrrev_b32 v3, 6, v0
    """)
    o += L(f"buffer_load_dword v255, v4, s[{TMPS}:{TMPS+3}], 0 offen", tag="pf")
    o += L("""
    s_load_dwordx8 s[52:59], s[0:1], 32
    s_load_dwordx4 s[44:47], s[0:1], 8
    s_load_dwordx8 s[80:87], s[0:1], 64
    s_load_dwordx4 s[88:91], s[0:1], 96
    """, tag="ka")
    o += L(f"""
    v_readfirstlane_b32 s{sW}, v3
    v_and_b32 v{vN}, 15, v0
    v_bfe_u32 v{vQ}, v0, 4, 2
    s_and_b32 s{t0}, s2, 3
    s_bfe_u32 s{t1}, s2, 0x20003
    s_lshl2_add_u32 s{sC}, s{t0}, s{t1}
    s_bfe_u32 s{t0}, s2, 0x10002
    s_lshr_b32 s{t1}, s2, 5
    s_lshl3_add_u32 s{sJ}, s{t0}, s{t1}
    s_and_b32 s{sAH}, s{sW}, 1
    s_lshr_b32 s{t3}, s{sW}, 1
    s_lshl1_add_u32 s{t0}, s{sC}, s{sAH}
    s_lshl_b32 s{t0}, s{t0}, 5
    s_add_u32 s{t0}, s{t0}, s{sJ}
    s_lshl1_add_u32 s{u0}, s{t0}, s{t3}
    s_lshl_b32 s{u0}, s{u0}, 11
    s_add_u32 s{u1}, s{u0}, 65536
    v_lshlrev_b32 v5, 9, v{vQ}
    v_lshl_add_u32 v29, v{vN}, 3, v5
    s_mov_b32 s{X+2}, 0x400000
    s_mov_b32 s{X+3}, s{TMPS+3}
    """)
    o += [W("lg", "ka")]
    if diag:
        st.names.append("rt0"); o += L(f"v_writelane_b32 v{vST}, s100, 0") + st("ka")
    pr2 = L(f"""
    v_cmp_eq_u32 vcc, 0, v0
    s_lshl4_add_u32 s{sPI}, s{sC}, s{sJ}
    s_lshl_b32 s{sM0}, s{sW}, 12
    v_cndmask_b32 v{vONE}, 2.0, v0, vcc
    v_and_b32 v{vL}, 63, v0
    v_lshlrev_b32 v{vL16}, 4, v{vL}
    s_lshl_b32 s{sW16}, s{sW}, 4
    s_lshl2_add_u32 s{sHT}, s{sAH}, s{t3}
    v_and_b32 v6, 7, v{vL}
    v_xor_b32 v6, v6, v{vQ}
    v_lshlrev_b32 v6, 4, v6
    v_and_b32 v8, 32, v{vL}
    v_bfe_u32 v9, v{vL}, 3, 1
    v_lshl_add_u32 v8, v9, 4, v8
    v_bfe_u32 v9, v{vL}, 4, 1
    s_lshl_b32 s{t0}, s{sC}, 5
    s_add_u32 s{t0}, s{t0}, s{sW}
    s_lshl_b32 s{t0}, s{t0}, 2
    v_add3_u32 v8, v8, v9, s{t0}
    v_lshl_add_u32 v{vDA}, v8, 11, v6
    v_lshrrev_b32 v9, 3, v{vL}
    s_lshl1_add_u32 s{t0}, s{sJ}, s{sAH}
    s_lshl_b32 s{t0}, s{t0}, 5
    v_add_u32 v9, s{t0}, v9
    v_lshl_add_u32 v{vDB}, v9, 11, v6
    v_xor_b32 v8, 64, v{vDA}
    v_xor_b32 v9, 64, v{vDB}
    v_add_u32 v{vDA+1}, {64*2048 - 1024}, v8
    v_add_u32 v{vDA+2}, {2*2048 - 2048}, v{vDA}
    v_add_u32 v{vDA+3}, {66*2048 - 3072}, v8
    v_add_u32 v{vDB+1}, {8*2048 - 1024}, v9
    v_add_u32 v{vDB+2}, {16*2048 - 2048}, v{vDB}
    v_add_u32 v{vDB+3}, {24*2048 - 3072}, v9
    s_add_u32 s{t0}, s{sC}, s{sJ}
    s_and_b32 s{t0}, s{t0}, 3
    """)
    for g, t in enumerate(scout(4, [lambda g: g, lambda g: 3, lambda g: 0, lambda g: 2*(g&1), lambda g: 1 + (g >> 1), lambda g: 2 + (g >> 1)][P['lead']])):
        lo = sum(t[k] << (4 * k) for k in range(8)); hi = sum(t[8 + k] << (4 * k) for k in range(8))
        if g == 0: pr2 += L(f"s_mov_b32 s{sKT}, {lo}\n s_mov_b32 s{sKT+1}, {hi}")
        else: pr2 += L(f"s_cmp_eq_u32 s{t0}, {g}\n s_cselect_b32 s{sKT}, {lo}, s{sKT}\n s_cselect_b32 s{sKT+1}, {hi}, s{sKT+1}")
    if P["xx"]:
        pr2 += L(f"s_and_b32 s{t0}, s2, 3\n s_mul_i32 s{t0}, s{t0}, 0x44444444\n s_xor_b32 s{sKT}, s{sKT}, s{t0}\n s_xor_b32 s{sKT+1}, s{sKT+1}, s{t0}")
    pr2 += L(f"s_mov_b32 s{BS+2}, 0x200000\n s_mov_b32 s{BS+3}, s{TMPS+3}")
    XL, GW, DK, PAR = 96, 112, 120, 142
    xld = []
    for e in range(2):
        for r in range(4):
            xld += L(f"buffer_load_dwordx2 {vr(XL+(e*4+r)*2,2)}, v29, s[{X}:{X+3}], s{u0+e} offen offset:{128*r}", tag=f"x{e}")
    xr = lambda e, tau: XL + e*8 + tau*4
    def dma(stage):
        slot = stage % 4
        r = L(f"s_bfe_u32 s{sK}, s{sKT + (stage >> 3)}, {0x40000 | (4 * (stage & 7))}\n s_add_u32 m0, s{sM0}, {slot*32768}\n s_lshl_b32 s{sK}, s{sK}, 7")
        for jj in range(4):
            r += L(f"buffer_load_dwordx4 v{vDA+jj}, s[{X}:{X+3}], s{sK} offen offset:{1024*jj} lds", tag=f"d{stage}")
        r += L(f"s_add_u32 m0, s{sM0}, {slot*32768 + 16384}")
        for jj in range(4):
            r += L(f"buffer_load_dwordx4 v{vDB+jj}, s[{BS}:{BS+3}], s{sK} offen offset:{1024*jj} lds", tag=f"d{stage}")
        return r
    GD = SCR + 16640
    pre = L(f"s_add_u32 s{t2}, s60, {WS_NONCE}\n s_addc_u32 s{t3}, s61, 0") + L(f"s_load_dword s{sN}, s[{t2}:{t3}], 0", tag="nonce")
    pre += L(f"""
    s_cmp_lt_u32 s{sW}, 2
    s_cselect_b64 s[{BS}:{BS+1}], s[56:57], s[58:59]
    s_cselect_b64 s[{TMPS}:{TMPS+1}], s[88:89], s[86:87]
    s_mov_b32 s{TMPS+2}, 2048
    s_lshl_b32 s{t0}, s{sAH}, 10
    s_lshl_b32 s{t1}, s{sW}, 10
    s_add_u32 m0, s{t1}, {GD}
    s_lshl2_add_u32 s{t1}, s{sJ}, s{sW}
    """) + L(f"buffer_load_dwordx4 v{vL16}, s[{TMPS}:{TMPS+3}], s{t0} offen lds", tag="gd")
    pre += L(f"s_lshl_b32 s{t1}, s{t1}, 4\n v_add_lshl_u32 v28, v{vN}, s{t1}, 1")
    pre += L(f"global_load_ushort v{PAR}, v28, s[52:53]\n global_load_ushort v{PAR+1}, v28, s[54:55]\n global_load_ushort v{PAR+2}, v28, s[84:85]", tag="par")
    D0 = dma(0)
    TWR = 232
    fn, fq4 = 249, 250
    A4, C4, S4 = [4, 5, 6, 7], [8, 9, 10, 11], [12, 13, 14, 15]
    def frag(dst_re, dst_im, neg=False, mask=None, dst2=None):
        r = []
        for k in range(4):
            c, s = C4[k], S4[k]
            if neg: r += L(f"v_cvt_pk_bf16_f32 v{A4[0]}, -v{c}, -v{s}\n v_cvt_pk_bf16_f32 v{A4[1]}, v{s}, -v{c}")
            else: r += L(f"v_cvt_pk_bf16_f32 v{A4[0]}, v{c}, v{s}\n v_cvt_pk_bf16_f32 v{A4[1]}, -v{s}, v{c}")
            r += L(f"v_accvgpr_write_b32 a{dst_re+k}, v{A4[0]}\n v_accvgpr_write_b32 a{dst_im+k}, v{A4[1]}")
            if mask is not None:
                r += L(f"v_xor_b32 v{A4[0]}, v{mask}, v{A4[0]}\n v_xor_b32 v{A4[1]}, v{mask}, v{A4[1]}\n v_accvgpr_write_b32 a{dst2+k}, v{A4[0]}\n v_accvgpr_write_b32 a{dst2+4+k}, v{A4[1]}")
        return r
    sp_, bs_ = 251, 248
    k0 = L(f"v_cvt_f32_u32 v{fn}, v{vN}\n v_cvt_f32_u32 v{fq4}, v{vQ}\n v_mul_f32 v{sp_}, {fbits(1/16)}, v{fn}\n v_mul_f32 v{fq4}, 4.0, v{fq4}\n v_mul_f32 v{bs_}, v{fq4}, v{sp_}")
    k0 += angles(sp_, bs_, [0, 1, 2, 3], A4, C4, S4) + frag(aF1, aF1 + 4)
    k0 += angles(sp_, bs_, [0.5, 1.5, 2.5, 3.5], A4, C4, S4) + frag(aF2, aF2 + 4)
    k0 += L(f"v_mul_f32 v{sp_}, {fbits(1/16)}, v{sp_}\n v_mul_f32 v{bs_}, {fbits(1/16)}, v{bs_}")
    for tau in range(2):
        k0 += angles(sp_, bs_, [i + 0.5*tau for i in range(4)], A4, [TWR + tau*4 + i for i in range(4)], [TWR + 8 + tau*4 + i for i in range(4)])
    k0 += srd(WS, 60, WS_SIZE)
    k0 += L(f"""
    v_lshrrev_b32 v15, 1, v{vN}
    v_xor_b32 v15, v15, v{vQ}
    v_lshlrev_b32 v15, 4, v15
    v_lshl_add_u32 v{vRA}, v{vN}, 7, v15
    v_xor_b32 v{vRA+1}, 64, v{vRA}
    s_lshl_b32 s{f0}, s{sW}, 11
    s_add_u32 s{f0}, s{f0}, 16384
    v_add_u32 v{vRB}, s{f0}, v{vRA}
    v_add_u32 v{vRB+1}, s{f0}, v{vRA+1}
    v_add_u32 v{vRH}, 0x10000, v{vRA}
    v_add_u32 v{vRH+1}, 0x10000, v{vRA+1}
    v_add_u32 v{vRH+2}, 0x10000, v{vRB}
    v_add_u32 v{vRH+3}, 0x10000, v{vRB+1}
    s_and_b32 s{f0}, s{sW}, 2
    s_lshl1_add_u32 s{f0}, s{f0}, s{sAH}
    s_mul_i32 s{f0}, s{f0}, 2080
    s_add_u32 s{f0}, s{f0}, {SCR}
    v_lshl_add_u32 v15, v{vQ}, 6, v{vN}
    v_lshl_add_u32 v252, v15, 3, s{f0}
    v_sub_u32 v15, {208 + 2*2080//8}, v15
    v_lshl_add_u32 v253, v15, 3, s{f0}
    v_lshrrev_b32 v7, 2, v{vL}
    v_add_u32 v7, s{sW16}, v7
    v_and_b32 v15, 3, v{vL}
    v_lshlrev_b32 v12, 4, v15
    v_mul_u32_u24 v229, 4160, v15
    v_lshl_add_u32 v229, v7, 3, v229
    v_add_u32 v229, {SCR}, v229
    v_lshrrev_b32 v14, 2, v{vL}
    v_lshl_add_u32 v230, v14, 8, v12
    v_and_b32 v14, 3, v14
    v_lshl_add_u32 v231, v14, 10, v12
    v_lshl_add_u32 v231, v{vQ}, 19, v231
    v_and_b32 v15, 1, v15
    v_lshlrev_b32 v15, 11, v15
    v_cmp_eq_u32 vcc, 0, v7
    v_add_u32 v254, {GD}, v29
    v_cndmask_b32 v15, 0, v15, vcc
    v_add_u32 v228, v229, v15
    """)
    G = []
    for k in range(4): G += L(f"v_accvgpr_write_b32 a{aTW+k}, v{TWR+k}\n v_accvgpr_write_b32 a{aTW+8+k}, v{TWR+8+k}")
    for k, r in enumerate((252, 253, 228, 229)): G += L(f"v_accvgpr_write_b32 a{aAD+k}, v{r}")
    G += L(f"v_fma_f32 v{sp_}, v{fn}, 2.0, 1.0\n v_mul_f32 v{sp_}, {fbits(1/32)}, v{sp_}\n v_mul_f32 v{bs_}, v{fq4}, v{sp_}")
    G += angles(sp_, bs_, [0, 1, 2, 3], A4, C4, S4) + frag(aFA, aFA + 4) + frag(aNA, aNA + 4, neg=True)
    G += L(f"v_mul_f32 v{sp_}, {fbits(1/16)}, v{sp_}\n v_mul_f32 v{bs_}, {fbits(1/16)}, v{bs_}")
    G += angles(sp_, bs_, [0, 1, 2, 3], A4, C4, S4)
    for k in range(4): G += L(f"v_accvgpr_write_b32 a{aTW+4+k}, v{C4[k]}\n v_accvgpr_write_b32 a{aTW+12+k}, v{S4[k]}")
    gc = lambda sg, part: aGC + (sg * 2 + part) * 4
    G += L(f"""
    v_add_u32 v{sp_}, s{sW16}, v{vN}
    v_cvt_f32_u32 v{sp_}, v{sp_}
    v_and_b32 v147, 1, v{vN}
    v_mul_f32 v{sp_}, {fbits(1/64)}, v{sp_}
    v_mul_u32_u24 v147, 0x8000, v147
    v_mul_f32 v{bs_}, v{fq4}, v{sp_}
    v_lshl_or_b32 v147, v147, 16, v147
    """)
    for sg in range(2):
        G += angles(sp_, bs_, [16*sg + r for r in range(4)], A4, C4, S4) + frag(gc(sg, 0), gc(sg, 1), mask=147, dst2=gc(sg + 2, 0))
    k0 += take(G, P["ng0"])
    tl = []
    if P["tlb"]:
        for b in (56, 58, 44, 46, 88, 86, 52, 54, 84, 80, 82, 90)[:P["tlb"]]: tl += L(f"s_load_dword s48, s[{b}:{b+1}], 0", tag="tlb")
    o += tl[:4] + xld[:2] + spread(pr2, (xld[2:], 0, 40), (tl[4:], 0, 10)) + st("start")
    if P["d0first"]:
        o += [I(f"s_cmp_lt_u32 s{sW}, 2\n    s_cselect_b64 s[{BS}:{BS+1}], s[56:57], s[58:59]")]
        d0a = take(D0, P["nd0"])
        o += spread(k0, (d0a, 0, P["d0e"]), (pre, P["d0e"] + 1, P["d0e"] + 40))
        if D0: D0 = L(f"s_add_u32 m0, s{sM0}, 16384") + D0
    else:
        o += spread(k0, (pre + take(D0, P["nd0"]), 0, P["d0e"]))
    WRAW, WA = 208, 200
    wad = srd(WR, 44, 2048 * 1026) + srd(WI, 46, 2048 * 1026)
    wad += L(f"""
    s_lshr_b32 s{t0}, s2, 6
    s_and_b32 s{t1}, s2, 3
    s_lshl2_add_u32 s{t0}, s{t0}, s{t1}
    s_bfe_u32 s{t1}, s2, 0x10005
    s_bfe_u32 s{t2}, s2, 0x20002
    s_lshl2_add_u32 s{t1}, s{t1}, s{t2}
    s_bfe_u32 s{t2}, s2, 0x10004
    s_lshl1_add_u32 s{t1}, s{t1}, s{t2}
    s_lshl_b32 s{t1}, s{t1}, 7
    s_lshl2_add_u32 s{t0}, s{t0}, s{t1}
    v_add_u32 v184, s{t0}, v{vQ}
    v_add_u32 v185, s{sW16}, v{vN}
    s_movk_i32 s{t2}, 1026
    v_mul_u32_u24 v186, s{t2}, v184
    v_lshl_add_u32 v{WA}, v185, 3, v186
    v_sub_u32 v187, 2048, v184
    v_and_b32 v188, 2047, v187
    v_subrev_u32 v187, 64, v187
    v_lshlrev_b32 v189, 3, v185
    v_sub_u32 v189, 1018, v189
    v_mad_u32_u24 v{WA+1}, v188, s{t2}, v189
    v_mad_u32_u24 v{WA+2}, v187, s{t2}, v189
    s_mov_b32 s{u2}, {64*1026}
    v_cmp_eq_u32 vcc, 0, v185
    v_add_u32 v186, 512, v186
    v_lshlrev_b32 v187, 4, v{vQ}
    v_cndmask_b32 v{WA+3}, 2.0, v186, vcc
    v_cndmask_b32 v{WA+4}, 2.0, v187, vcc
    v_lshrrev_b32 v185, 2, v{vL}
    v_and_b32 v189, 3, v{vL}
    v_lshl_add_u32 v184, v189, 2, v185
    v_and_b32 v184, 15, v184
    v_lshl_add_u32 v184, v189, 4, v184
    s_add_u32 s{t2}, s{sM0}, {SCR}
    v_lshl_add_u32 v{WA+6}, v184, 4, s{t2}
    v_lshl_add_u32 v184, v{vQ}, 2, v{vN}
    v_and_b32 v184, 15, v184
    v_lshl_add_u32 v184, v{vQ}, 4, v184
    v_lshl_add_u32 v{WA+5}, v184, 4, s{t2}
    """)
    o += wad + L(f"s_mov_b64 s[{OUT_}:{OUT_+1}], s[90:91]\n s_mov_b32 s{OUT_+2}, 0x800000")
    wl = []
    for ii in range(2):
        so = "0" if ii == 0 else f"s{u2}"
        wl += L(f"""
        buffer_load_dwordx2 {vr(WRAW + ii*8 + 0, 2)}, v{WA}, s[{WR}:{WR+3}], {so} offen
        buffer_load_dwordx2 {vr(WRAW + ii*8 + 2, 2)}, v{WA}, s[{WI}:{WI+3}], {so} offen
        buffer_load_dwordx2 {vr(WRAW + ii*8 + 4, 2)}, v{WA+1+ii}, s[{WR}:{WR+3}], 0 offen
        buffer_load_dwordx2 {vr(WRAW + ii*8 + 6, 2)}, v{WA+1+ii}, s[{WI}:{WI+3}], 0 offen
        buffer_load_ushort v{WRAW + 16 + 2*ii}, v{WA+3}, s[{WR}:{WR+3}], {so} offen
        buffer_load_ushort v{WRAW + 17 + 2*ii}, v{WA+3}, s[{WI}:{WI+3}], {so} offen
        """, tag="w")
    o += st("consts")
    D1, TP, D2, OUT, T0 = ACC, 152, ACC + 32, 168, 184
    d1 = lambda e, tau, part: D1 + ((e*2 + tau)*2 + part)*4
    d2 = lambda e, tau, part: D2 + ((e*2 + tau)*2 + part)*4
    R = []
    for e in range(2):
        b = XL + e*8
        R += [W("vm", f"x{e}")] + L(f"v_swap_b32 v{b+1}, v{b+2}\n v_swap_b32 v{b+5}, v{b+6}\n v_swap_b32 v{b+2}, v{b+4}\n v_swap_b32 v{b+3}, v{b+5}")
    R += st("xwait")
    sal = L(f"""
    s_and_b32 s{t0}, s{sJ}, 3
    s_lshr_b32 s{t1}, s{sC}, 2
    s_lshl2_add_u32 s{t0}, s{t0}, s{t1}
    s_and_b32 s{t1}, s{sC}, 3
    s_lshl2_add_u32 s{t0}, s{t0}, s{t1}
    s_lshl_b32 s{t1}, s{sW}, 7
    s_add_u32 s{t0}, s{t0}, s{t1}
    s_lshl_b32 s{t0}, s{t0}, 6
    s_lshr_b32 s{t1}, s{sJ}, 2
    s_add_u32 s{t0}, s{t0}, s{t1}
    s_lshl_b32 s{u0}, s{t0}, 6
    s_lshr_b32 s{t1}, s{sW}, 1
    s_lshl1_add_u32 s{t0}, s{sJ}, s{t1}
    s_lshr_b32 s{t1}, s{t0}, 4
    s_lshl1_add_u32 s{t1}, s{t1}, s{sAH}
    s_lshl2_add_u32 s{t3}, s{sC}, s{t1}
    s_and_b32 s{t2}, s{t0}, 15
    s_lshl4_add_u32 s{t3}, s{t3}, s{t2}
    s_lshl3_add_u32 s{u1}, s{t3}, {WS_OMG}
    s_lshl_b32 s{t3}, s{sC}, 6
    s_add_u32 s{t1}, s{t1}, s{t3}
    s_and_b32 s{t2}, s{t0}, 3
    s_lshl2_add_u32 s{t1}, s{t1}, s{t2}
    s_bfe_u32 s{t2}, s{t0}, 0x20002
    s_lshl2_add_u32 s{t1}, s{t1}, s{t2}
    s_lshl_b32 s{t1}, s{t1}, 8
    s_add_u32 s{sCOMB}, s{t1}, {WS_COMB}
    s_getreg_b32 s{sXC}, hwreg(HW_REG_XCC_ID, 0, 4)
    s_and_b32 s{t0}, s2, 31
    s_lshl_b32 s{t0}, s{t0}, 7
    s_add_u32 s{sFL2}, s{t0}, {WS_FL2}
    s_lshr_b32 s{t0}, s2, 5
    s_lshl2_add_u32 s{f1}, s{t0}, s{sFL2}
    """)
    m = []
    for e in range(2):
        for tau in range(2):
            for part in range(2):
                m += L(f"{MF} {vr(d1(e,tau,part),4)}, {vr(xr(e,tau),4)}, {ar(aF1+4*part,4)}, 0")
    R += spread(m, D0, take(sal, 14)) + take(sal, 3)
    for e in range(2):
        for tau in range(2):
            for h in range(2):
                R += twid(d1(e,tau,0) + 2*h, d1(e,tau,1) + 2*h, TWR + tau*4 + 2*h, TWR + 8 + tau*4 + 2*h, T0 + 4*h, T0 + 4*h + 2)
            for i in range(4):
                R += L(f"v_cvt_pk_bf16_f32 v{TP+(e*2+tau)*4+i}, v{T0+4*(i>>1)+(i&1)}, v{T0+4*(i>>1)+2+(i&1)}")
    m = []
    for e in range(2):
        for tau in range(2):
            for part in range(2):
                m += L(f"{MF} {vr(d2(e,tau,part),4)}, {ar((aF2 if tau else aF1)+4*part,4)}, {vr(TP+(e*2+tau)*4,4)}, 0")
    R += spread(m, sal)
    for e in range(2):
        for part in range(2):
            for h in range(2):
                E, O = d2(e,0,part) + 2*h, d2(e,1,part) + 2*h
                R += [pk("add", d1(e,0,part) + 2*h, E, O), pk("add", d1(e,1,part) + 2*h, E, O, neg=[0,1])]
    for mu in range(2):
        for i in range(4):
            for e in range(2):
                R += L(f"v_cvt_pk_bf16_f32 v{OUT+(mu*4+i)*2+e}, v{d1(e,mu,0)+i}, {'-' if mu else ''}v{d1(e,mu,1)+i}")
            R += L(f"ds_write_b64 v{252+mu}, {vr(OUT+(mu*4+i)*2,2)} offset:{128*(i if mu == 0 else 3-i)}", tag="rfw")
    XU, DU = 64, 32
    xu = lambda e, tp, part: XU + ((e*2 + tp)*2 + part)*4
    du = lambda tp, part: DU + (tp*2 + part)*4
    for e in range(2):
        for tp in range(2):
            for i in range(4):
                R += L(f"v_lshlrev_b32 v{xu(e,tp,0)+i}, 16, v{xr(e,tp)+i}\n v_and_b32 v{xu(e,tp,1)+i}, 0xffff0000, v{xr(e,tp)+i}")
    R += [W("lg", "*"), W("vm", "gd")] + L("s_barrier")
    for i in range(4): R += L(f"ds_read_b64 {vr(GW+2*i,2)}, v254 offset:{128*i}", tag="gw")
    for i in range(4): R += L(f"ds_read_b64 {vr(DK+2*i,2)}, v254 offset:{2048+128*i}", tag="dk")
    ZO = 232
    for rho in range(4):
        for h in range(2):
            R += L(f"ds_read_b64 {vr(ZO+rho*4+2*h,2)}, v{228 if rho == 0 else 229} offset:{h*2080 + rho*512}", tag=f"rfr{rho}")
    R += L(f"""
    s_mul_i32 s{sT}, s{sN}, {HASH_A}
    s_add_u32 s{sT}, s{sT}, {HASH_B}
    s_cmp_eq_u32 s{sW}, 0
    s_cselect_b32 s{sE}, s{sT}, 0
    s_cselect_b32 s{sO}, 0, 2.0
    """)
    nrf = len(R)
    zst = []
    for rho in range(4):
        zst += L(f"buffer_store_dwordx4 {vr(ZO+rho*4,4)}, v230, {osr}, s{u0} offen sc1", tag="st1")
        if rho < 3: zst += L(f"s_add_u32 s{u0}, s{u0}, {4 << 19}")
    xst = L(f"v_mov_b32 v28, s{sXC}") + L(f"buffer_store_dword v28, v{vONE}, {wsr}, s{f1} offen sc1", tag="st1")
    if P["prew"]:
        zst += L(f"""
        s_lshl_b32 s{u1}, s{sPI}, 6
        s_add_u32 s{u1}, s{u1}, {WS_FL4}
        s_not_b32 s{u3}, s{sT}
        v_mov_b32 v28, s{u3}
        """) + L(f"buffer_store_dword v28, v{vONE}, {wsr}, s{u1} offen sc1", tag="st1") + L(f"s_add_u32 s{u1}, s{u1}, 16384") + L(f"buffer_store_dword v28, v{vONE}, {wsr}, s{u1} offen sc1", tag="st1")
        zst += L(f"s_lshl4_add_u32 s{u1}, s2, {WS_FL3}") + L(f"buffer_store_dword v28, v{vONE}, {wsr}, s{u1} offen sc1", tag="st1")
    g0, g1_, g2_, g3_ = 184, 185, 186, 187
    gt = [W("lg", "gw")]
    for k in range(8):
        for e in range(2):
            gt += L(f"v_dot2_f32_bf16 v{g0+e}, v{xr(e,k&1)+(k>>1)}, v{GW+k}, {'0' if k == 0 else 'v%d' % (g0+e)}")
    unp = [W("lg", "dk")]
    for i in range(4):
        for tp in range(2):
            unp += L(f"v_lshlrev_b32 v{du(tp,0)+i}, 16, v{DK+2*i+tp}\n v_and_b32 v{du(tp,1)+i}, 0xffff0000, v{DK+2*i+tp}")
    for e in range(2):
        for tp in range(2):
            for part in range(2):
                for h in range(2):
                    unp.append(pk("mul", xu(e,tp,part)+2*h, xu(e,tp,part)+2*h, du(tp,part)+2*h))
    red = []
    for sh in ("row_ror:8", "row_ror:4", "row_ror:2", "row_ror:1"):
        for e in range(2):
            red += L(f"v_add_f32_dpp v{g0+e}, v{g0+e}, v{g0+e} {sh} row_mask:0xf bank_mask:0xf")
    red += L(f"""
    v_permlane32_swap_b32 v{g0}, v{g1_}
    v_add_f32 v{g0}, v{g0}, v{g1_}
    v_mov_b32 v{g1_}, v{g0}
    v_permlane16_swap_b32 v{g0}, v{g1_}
    v_add_f32 v{g0}, v{g0}, v{g1_}
    v_cvt_pk_bf16_f32 v{g0}, v{g0}, v{g0}
    v_lshlrev_b32 v{g0}, 16, v{g0}
    v_mul_f32 v{g0}, {fbits(-LOG2E)}, v{g0}
    v_exp_f32 v{g0}, v{g0}
    v_add_f32 v{g0}, 1.0, v{g0}
    v_rcp_f32 v{g0}, v{g0}
    v_cvt_pk_bf16_f32 v{g0}, v{g0}, v{g0}
    v_lshlrev_b32 v{g0}, 16, v{g0}
    v_sub_f32 v{g2_}, 1.0, v{g0}
    v_cvt_pk_bf16_f32 v{g2_}, v{g2_}, v{g2_}
    v_lshlrev_b32 v{g2_}, 16, v{g2_}
    v_mov_b32 v{g1_}, v{g0}
    v_mov_b32 v{g3_}, v{g2_}
    v_permlane32_swap_b32 v{g0}, v{g1_}
    v_permlane32_swap_b32 v{g2_}, v{g3_}
    v_cmp_eq_u32 vcc, 0, v{vL}
    v_accvgpr_write_b32 a{aS+16}, v{g0}
    v_accvgpr_write_b32 a{aS+17}, v{g1_}
    v_cndmask_b32 v188, 2.0, v{vL}, vcc
    """)
    gt += spread(unp, (red, 2, len(unp) - 1))
    gt += L(f"buffer_store_dwordx2 {vr(g2_,2)}, v188, {wsr}, s{u1} offen sc1", tag="omst")
    for e in range(2):
        for tp in range(2):
            for part in range(2):
                for h in range(2):
                    gt.append(pk("mul", xu(e,tp,part)+2*h, xu(e,tp,part)+2*h, g2_, sel="p" + "lh"[e]))
            for i in range(4):
                gt += L(f"v_cvt_pk_bf16_f32 v{190+(i&1)}, v{xu(e,tp,0)+i}, v{xu(e,tp,1)+i}\n v_accvgpr_write_b32 a{aS+(e*2+tp)*4+i}, v{190+(i&1)}")
    R2 = gt + G
    n2 = len(R2)
    o += spread(R, (wl, 40, nrf - 40))
    o += st("rf")
    o += spread(R2, (xst, 0, 1), (dma(1), int(n2*P["pd1"]), int(n2*P["pd1e"])))
    o += [W("lg", "*")]
    o += st("gate")
    WO = WU
    wt = [W("vm", "w")]
    wt += L(f"s_mov_b32 s{f0}, 0x05040100\n s_mov_b32 s{f1}, 0x07060302\n s_lshl_b32 s{t2}, s2, 6")
    wt += L(f"v_lshl_or_b32 v{WRAW+16}, v{WRAW+17}, 16, v{WRAW+16}\n v_lshl_or_b32 v{WRAW+18}, v{WRAW+19}, 16, v{WRAW+18}")
    wt += L(f"buffer_store_dwordx4 {vr(WRAW+16,4)}, v{WA+4}, {wsr}, s{t2} offen sc1", tag="st1")
    for m_ in range(4):
        for ii in range(2):
            b = WRAW + ii*8; mm = 3 - m_
            wt += L(f"v_perm_b32 v{WO+m_*4+ii*2}, v{b+2+(m_>>1)}, v{b+(m_>>1)}, s{f0+(m_&1)}")
            wt += L(f"v_perm_b32 v{WO+m_*4+ii*2+1}, v{b+6+(mm>>1)}, v{b+4+(mm>>1)}, s{f0+(mm&1)}")
        wt += L(f"ds_write_b128 v{WA+5}, {vr(WO+m_*4,4)} offset:{1024*m_}", tag="wtw")
    wt2 = [W("lg", "wtw")]
    for m_ in range(4): wt2 += L(f"ds_read_b128 {vr(WO+16+m_*4,4)}, v{WA+6} offset:{1024*m_}", tag=f"wtr")
    wt2 += L(f"s_lshr_b32 s{t2}, s2, 2\n s_lshl_b32 s{t3}, s{sW}, 9\n s_add_u32 s{t2}, s{t2}, s{t3}\n s_add_u32 s{t2}, s{t2}, 64\n s_lshl_b32 s{t2}, s{t2}, 6\n s_and_b32 s{t3}, s2, 3\n s_add_u32 s{t2}, s{t2}, s{t3}\n s_lshl_b32 s{f0}, s{t2}, 6")
    wt3 = []
    for m_ in range(4):
        wt3 += [W("lg", "wtr")] + L(f"buffer_store_dwordx4 {vr(WO+16+m_*4,4)}, v231, {osr}, s{f0} offen offset:{256*m_} sc1", tag="st1")
    F = [W("vm", "par")]
    F += L(f"""
    v_lshlrev_b32 v{PAR+2}, 16, v{PAR+2}
    v_lshlrev_b32 v{PAR}, 16, v{PAR}
    v_mul_f32 v{PAR+2}, {fbits(LOG2E)}, v{PAR+2}
    v_exp_f32 v{PAR+2}, v{PAR+2}
    v_lshlrev_b32 v{PAR+1}, 16, v{PAR+1}
    v_cvt_pk_bf16_f32 v{PAR+2}, v{PAR+2}, v{PAR+2}
    v_lshlrev_b32 v{PAR+2}, 16, v{PAR+2}
    v_mul_f32 v14, v{PAR+2}, v{PAR}
    v_mul_f32 v4, v{PAR+2}, v{PAR+1}
    v_mul_f32 v14, {fbits(LOG2E)}, v14
    v_mul_f32 v4, {fbits(0.15915494309189535)}, v4
    v_exp_f32 v14, v14
    v_fract_f32 v4, v4
    v_cos_f32 v5, v4
    v_sin_f32 v6, v4
    v_mul_f32 v{LAM}, v14, v5
    v_mul_f32 v{LAM+1}, v14, v6
    v_mul_f32 v14, v{PAR}, v{PAR}
    v_fma_f32 v14, v{PAR+1}, v{PAR+1}, v14
    v_rcp_f32 v14, v14
    v_add_f32 v4, -1.0, v{LAM}
    v_add_f32 v14, v14, v14
    v_mul_f32 v5, v4, v{PAR}
    v_fma_f32 v5, v{LAM+1}, v{PAR+1}, v5
    v_mul_f32 v6, v{LAM+1}, v{PAR}
    v_fma_f32 v6, -v4, v{PAR+1}, v6
    v_mul_f32 v{COEF}, v5, v14
    v_mul_f32 v{COEF+1}, v6, v14
    """)
    def csq(d, s):
        return L(f"v_mul_f32 v{d}, v{s}, v{s}\n v_mul_f32_e64 v{d+1}, v{s}, v{s+1} mul:2\n v_fma_f32 v{d}, -v{s+1}, v{s+1}, v{d}") if P.get("omod") else \
               L(f"v_mul_f32 v{d}, v{s}, v{s}\n v_mul_f32 v{d+1}, v{s}, v{s+1}\n v_fma_f32 v{d}, -v{s+1}, v{s+1}, v{d}\n v_add_f32 v{d+1}, v{d+1}, v{d+1}")
    F += csq(4, LAM) + csq(6, 4) + csq(4, 6) + csq(L16, 4) + csq(L32, L16) + csq(8, L32) + csq(L128, 8) + csq(4, L128) + csq(10, 4) + csq(12, 10)
    F += L(f"""
    v_and_b32 v14, 1, v{vQ}
    v_cmp_eq_u32 s[78:79], 1, v14
    v_cndmask_b32 v4, 1.0, v{L32}, s[78:79]
    v_cndmask_b32 v5, 0, v{L32+1}, s[78:79]
    v_cndmask_b32 v10, 1.0, v10, s[78:79]
    v_cndmask_b32 v11, 0, v11, s[78:79]
    v_cmp_lt_u32 s[78:79], 1, v{vQ}
    v_cndmask_b32 v8, 1.0, v8, s[78:79]
    v_cndmask_b32 v9, 0, v9, s[78:79]
    v_cndmask_b32 v12, 1.0, v12, s[78:79]
    v_cndmask_b32 v13, 0, v13, s[78:79]
    """)
    F += cmul1(L32Q, L32Q+1, 4, 5, 8, 9) + cmul1(L512Q, L512Q+1, 10, 11, 12, 13)
    F += L(f"v_add_u32 v{sp_}, s{sW16}, v{vN}\n v_cvt_f32_u32 v{sp_}, v{sp_}\n v_mul_f32 v{sp_}, {fbits(1/1024)}, v{sp_}\n v_mul_f32 v{bs_}, v{fq4}, v{sp_}")
    for hh in range(2):
        ix = list(range(4*hh, 4*hh + 4))
        F += angles(sp_, bs_, [0.5*k for k in ix], A4, [TWF + 2*k for k in ix], [TWF + 2*k + 1 for k in ix])
    F += L(f"""
    v_cvt_f32_u32 v9, s{sPI}
    v_mul_f32 v9, {fbits(1/1024)}, v9
    v_sin_f32 v11, v9
    v_cos_f32 v10, v9
    v_add_f32 v11, 1.0, v11
    v_rcp_f32 v9, v11
    v_mul_f32 v15, {fbits(2.0**-21)}, v11
    v_mul_f32_e64 v10, -v10, v9
    v_cvt_f32_u32 v14, s{sW16}
    v_readfirstlane_b32 s{sCT}, v10
    v_add_f32 v14, v14, v{fq4}
    """)
    for tp in range(2):
        F += L(f"v_fma_f32 v{sp_}, v{fn}, 2.0, {'1.0' if tp else '0'}\n v_mul_f32 v{sp_}, {fbits(1/2048)}, v{sp_}\n v_mul_f32 v{bs_}, v14, v{sp_}")
        F += angles(sp_, bs_, [0, 1, 2, 3], A4, [TWI + tp*8 + i for i in range(4)], [TWI + tp*8 + 4 + i for i in range(4)])
        for i in range(8): F += L(f"v_mul_f32 v{TWI+tp*8+i}, v15, v{TWI+tp*8+i}")
    F += L(f"s_and_b32 s{t0}, s{sC}, 3")
    for ci in range(4):
        tab = sum((0 if k == 0 else 1 + (k - 1 + 2*ci) % 7) << (4*k) for k in range(8))
        F += L(f"s_mov_b32 s{sPT}, {tab}") if ci == 0 else [I(f"s_cmp_eq_u32 s{t0}, {ci}\n    s_cselect_b32 s{sPT}, {tab}, s{sPT}")]
    F += L(f"""
    s_lshr_b32 s{t0}, s2, 5
    s_mul_i32 s{t0}, s{t0}, 0x11111111
    s_add_u32 s{sPT}, s{sPT}, s{t0}
    s_and_b32 s{sPT}, s{sPT}, 0x77777777
    s_lshl_b32 s{t0}, s{sJ}, 6
    s_add_u32 s{t0}, s{t0}, s{sW}
    s_lshl_b32 s{t0}, s{t0}, 8
    s_add_u32 s{sLBA}, s{t0}, {WS_AGG}
    s_lshl_b32 s{t0}, s{sC}, 11
    s_add_u32 s{t0}, s{t0}, s{sJ}
    s_lshl_b32 s{sSL}, s{t0}, 8
    s_lshl_b32 s{t0}, s{sHT}, 16
    s_andn2_b32 s{sHB}, s{sSL}, 0x700
    s_add_u32 s{sHB}, s{sHB}, s{t0}
    """)
    F += [I(f"s_cmp_lt_u32 s{sW}, 2\n    s_cselect_b64 s[{CS}:{CS+1}], s[80:81], s[82:83]")] + L(f"s_mov_b32 s{CS+2}, 0x200000")
    ZL, WL, PL = WK, WK + 16, WK + 32
    fra = lambda ks, tau: aFR + ks * 40 + tau * 4
    frb = lambda ks, part: aFR + ks * 40 + 32 + part * 4
    def reads(s, ks):
        slot = s % 4; base = (slot & 1) * 32768; r = []
        ra, rb = (vRA + ks, vRB + ks) if slot < 2 else (vRH + ks, vRH + 2 + ks)
        for part in range(2): r += L(f"ds_read_b128 {ar(frb(ks,part),4)}, v{rb} offset:{base + part*8192}", tag="fr")
        for tau in range(8): r += L(f"ds_read_b128 {ar(fra(ks,tau),4)}, v{ra} offset:{base + tau*2048}", tag="fr")
        return r
    def mfmas(ks, first=False):
        r = []
        for tau in range(8):
            for part in range(2):
                a_ = vr(acc(tau, part), 4)
                r += L(f"{MF} {a_}, {ar(fra(ks,tau),4)}, {ar(frb(ks,part),4)}, {'0' if first else a_}")
        return r
    ZIT, WTI = P["zit"], P["wtit"]
    assert ZIT >= 12
    pl1 = f"buffer_load_dword v{PL}, v{vL16}, {wsr}, s{u0} offen sc1"
    vDC, vR2 = 16, 20
    g2a = L(f"""
    v_and_b32 v6, 7, v{vL}
    v_xor_b32 v6, v6, v{vQ}
    s_and_b32 s{t0}, s{sJ}, 8
    s_lshl_b32 s{t0}, s{t0}, 7
    v_lshl_add_u32 v6, v6, 4, s{t0}
    v_lshrrev_b32 v8, 3, v{vL}
    s_xor_b32 s{t0}, s{sJ}, 8
    s_lshl_b32 s{t0}, s{t0}, 5
    s_add_u32 s{t0}, s{t0}, s{sAH}
    s_lshl_b32 s{t0}, s{t0}, 1
    v_lshl_add_u32 v8, v8, 2, s{t0}
    v_lshl_add_u32 v{vDC}, v8, 11, v6
    v_xor_b32 v8, 64, v{vDC}
    v_add_u32 v{vDC+1}, {32*2048 - 1024}, v8
    v_mov_b32 v{vDC+2}, v{vDC}
    v_add_u32 v{vDC+3}, {33*2048 - 3072}, v8
    """)
    def cdma(k, tag, fl=""):
        r = L(f"s_bfe_u32 s{sCK}, s{sPT}, {0x40000 | (4*k)}\n s_add_u32 m0, s{sM0}, {k*16384}\n s_lshl_b32 s{sCK}, s{sCK}, 7")
        for jj in range(4):
            r += L(f"buffer_load_dwordx4 v{vDC+jj}, s[{CS}:{CS+3}], s{sCK} offen offset:{1024*jj} {fl} lds", tag=tag)
        return r
    CSEND = [cdma(k, f"cs{k}") for k in range(8)]
    sTC = 92
    g2a += L(f"""
    s_lshl1_add_u32 s{t2}, s{sJ}, s{sAH}
    s_lshl_b32 s{t2}, s{t2}, 6
    s_lshr_b32 s{t3}, s{sJ}, 3
    s_add_u32 s{t2}, s{t2}, s{t3}
    s_and_b32 s{t3}, s{sC}, 3
    s_lshl2_add_u32 s{t2}, s{t2}, s{t3}
    s_lshl_b32 s{sTC}, s{t2}, 8
    v_lshrrev_b32 v29, 1, v{vL}
    v_lshlrev_b32 v29, 4, v29
    v_and_or_b32 v29, v{vL}, 1, v29
    v_lshlrev_b32 v29, 7, v29
    """)
    touchS = L(f"s_xor_b32 s{t2}, s{sTC}, 0x100000") + L(f"buffer_load_dword a223, v29, s[{CS}:{CS+3}], s{t2} offen", tag="tch")
    touchK = L(f"buffer_load_dword a223, v29, s[{CS}:{CS+3}], s{sTC} offen", tag="tch")
    tch = lambda where: (touchS if P["touchs"] == where else []) + (touchK if P["touchk"] == where else [])
    wu = lambda which, part, mu, i: WU + (which * 2 + part) * 8 + mu * 4 + i
    unp = [W("vm", "wl")]
    for io in range(4):
        for ii in range(2):
            for wh in range(2):
                raw = WL + io*4 + ii*2 + wh; mu, i = io >> 1, 2*(io & 1) + ii
                unp += L(f"v_lshlrev_b32 v{wu(wh,0,mu,i)}, 16, v{raw}\n v_and_b32 v{wu(wh,1,mu,i)}, 0xffff0000, v{raw}")
    unp += L(f"v_accvgpr_read_b32 v28, a222\n v_cmp_ne_u32 s[78:79], s{sXC}, v28") + [I(f"s_cmp_eq_u64 s[78:79], {0 if P['local'] else 77}\n    s_cselect_b32 s{sLOC}, 0, 2.0\n    s_cselect_b32 s{sNLOC}, 2.0, 0")]
    def code_pf(lab, sink):
        return [I(f"s_getpc_b64 s[{WI}:{WI+1}]\n{lab}:\n    s_mov_b32 s{WI+2}, K_CODE_END-{lab}")] + L(f"""
        s_bfe_u32 s3, s2, 0x20003
        s_lshl2_add_u32 s3, s3, s{sW}
        s_lshl_b32 s3, s3, 11
        v_lshl_add_u32 v28, v{vL}, 5, s3
        """) + L(f"buffer_load_dword {sink}, v28, s[{WI}:{WI+3}], 0 offen", tag="pf")
    lfl = P["lfl"]
    zl = L(f"v_lshlrev_b32 v28, 12, v{vQ}\n v_lshl_add_u32 v28, v{vN}, 4, v28\n s_lshl4_add_u32 s{u0}, s{sM0}, s{sSL}")
    for f in range(4):
        zl += L(f"s_add_u32 m0, s{sM0}, {SCR + 1024*f}\n s_add_u32 s{u1}, s{u0}, {16384*f}") + L(f"buffer_load_dwordx4 v28, {osr}, s{u1} offen {lfl} lds", tag="zl")
    wll = []
    for f in range(4):
        wll += L(f"s_add_u32 s{u1}, s{u0}, {(64 << 12) + 16384*f}") + L(f"buffer_load_dwordx4 {vr(WL+4*f,4)}, v28, {osr}, s{u1} offen {lfl}", tag="wl")
    wll += [I("s_cmp_eq_u32 s2, 0\n    s_cbranch_scc1 K_W256\nK_W256_RET:")]
    wll += L(f"v_and_b32 v28, 7, v{vL}\n v_lshlrev_b32 v28, 2, v28") + L(f"buffer_load_dword a222, v28, {wsr}, s{sFL2} offen sc1", tag="wl")
    tail += L(f"K_W256:")
    for f in range(4): tail += L(f"buffer_load_dwordx4 {ar(aW2+4*f,4)}, v{vL16}, {wsr}, s{sM0} offen offset:{1024*f} sc1")
    tail += L("s_branch K_W256_RET")
    assert WS_W256 == 0
    nF = -(-len(F) // (2 * (12 - WTI - 1)))
    sts = zst + wt3
    ST0, STN = P["st0"], P["stn"]
    nst = -(-len(sts) // STN)
    CSI = {13: [], 14: [], 15: []}
    cs_order = [1, 2, 0, 3, 4, 5, 6, 7] if P["touchs"] == "no" else list(range(8))
    assert P["c13"] <= 1 and P["c13"] + P["c14"] <= 4 and P["c13"] + P["c14"] + P["c15"] <= 5
    for it, n in zip((13, 14, 15), (P["c13"], P["c14"], P["c15"])):
        for _ in range(n): CSI[it] += CSEND[cs_order.pop(0)]
    for s in range(16):
        o += [W("lg", "fr")] + st(f"@g{s}b") + [W("vm", f"d{s}")] + st(f"@g{s}v")
        if s == ZIT: o += [W("vm", "poll")] + poll_check("K_POLL1", PL, sT, pl1)
        if s == P["sig1"]:
            assert not sts
            o += [W("vm", "st1")]
        o += L("s_barrier")
        if s in (0, 4, 8, 12): o += st(f"g1_{s}")
        o += st(f"@g{s}a")
        dm = dma(s + 3) if s + 3 < 16 else []
        if s == 0: dm = dma(2) + dm
        ex = []
        if s == P["sig1"]: dm = L(f"s_lshl4_add_u32 s{u1}, s2, {WS_FL1}") + signal(u1) + dm
        if s == P["poll1"]: dm = L(f"s_lshl_b32 s{u0}, s{sW}, 10\n s_add_u32 s{u0}, s{u0}, {WS_FL1}") + L(pl1, tag="poll") + dm
        if s == P["cpf"]: ex += code_pf("K_PC2", "a221")
        if s == ZIT: ex += tch("z") + zl + wll
        if s >= 13: ex += CSI[s] + tch(f"i{s}")
        allx = dm + ex
        n0 = (len(allx) + 1) // 2
        fa_, fb_ = [], []
        if s == WTI: fa_, fb_ = wt, wt2
        elif WTI < s < 12: fa_, fb_ = take(F, nF), take(F, nF)
        if s == 12: n0 = max(n0, len(dm) - 5); fb_ = g2a + tch("i12")
        sa_ = take(sts, nst) if 2*s >= ST0 else []
        sb_ = take(sts, nst) if 2*s + 1 >= ST0 else []
        if s == 0: o += reads(0, 0) + allx[:n0]
        else: o += spread(mfmas(1), (reads(s, 0), 0, 10), allx[:n0], fa_, (sa_, 6, 9))
        o += [W("lg", "fr")]
        o += spread(mfmas(0, s == 0), (reads(s, 1), 0, 10), allx[n0:], fb_, (sb_, 6, 9))
    assert not F
    o += [W("lg", "fr")]
    cf = lambda kap, sg: aFR + (kap * 4 + sg) * 4
    cfr = []
    for kap in range(4):
        for sg in range(4):
            cfr += L(f"ds_read_b128 {ar(cf(kap,sg),4)}, v28 offset:{(kap*4+sg)*1024}", tag=f"cf{kap}")
    ex = L(f"""
    v_add_u32 v28, {SCR}, v{vL16}
    v_and_b32 v8, 1, v{vQ}
    v_lshrrev_b32 v9, 1, v{vN}
    v_xor_b32 v8, v8, v9
    v_lshlrev_b32 v8, 4, v8
    v_lshl_add_u32 v8, v{vN}, 7, v8
    v_lshrrev_b32 v9, 1, v{vQ}
    v_lshl_add_u32 v{vR2}, v9, 13, v8
    v_lshlrev_b32 v9, 12, v{vQ}
    v_lshl_add_u32 v{vF}, v{vN}, 4, v9
    """)
    for kap in range(1, 4): ex += L(f"v_xor_b32 v{vR2+kap}, {32*kap}, v{vR2}\n v_add_u32 v{vF+kap}, {16384*kap}, v{vF}")
    o += spread(mfmas(1), ex)
    o += st("g1")
    zget = [W("vm", "zl")] + L("s_barrier") + cfr
    if not P["cmf"]: o += zget + st("zwait")
    step = lambda k, part: acc(k >> 1, part) + 2 * (k & 1)
    G0, G1_ = 4, 8
    src = (step(0, 0), step(0, 1))
    for k in range(1, 16):
        d = (G0, G0 + 2) if k & 1 else (G1_, G1_ + 2)
        o += [pk("fma", d[0], src[0], LAM, step(k, 0), sel="plp"), pk("fma", d[1], src[1], LAM, step(k, 1), sel="plp"),
              pk("fma", d[0], src[1], LAM, d[0], sel="php", neg=[1, 0, 0]), pk("fma", d[1], src[0], LAM, d[1], sel="php")]
        src = d
    o += [pk("mul", SA_R, 4, COEF, sel="pl"), pk("mul", SA_I, 6, COEF, sel="pl"),
          pk("fma", SA_R, 6, COEF, SA_R, sel="php", neg=[1, 0, 0]), pk("fma", SA_I, 4, COEF, SA_I, sel="php")]
    sc = cmul1(4, 8, SA_R, SA_I, L16, L16+1, SA_R+1, SA_I+1)
    sc += L("""
    v_mov_b32 v6, v4
    v_mov_b32 v10, v8
    v_permlane32_swap_b32 v4, v6
    v_permlane32_swap_b32 v8, v10
    v_mov_b32 v5, v4
    v_mov_b32 v7, v6
    v_mov_b32 v9, v8
    v_mov_b32 v11, v10
    v_permlane16_swap_b32 v4, v5
    v_permlane16_swap_b32 v6, v7
    v_permlane16_swap_b32 v8, v9
    v_permlane16_swap_b32 v10, v11
    """)
    AG = WK + 36
    sc += cmul1(12, 13, 4, 8, L32, L32+1, 5, 9) + cmul1(14, 15, 12, 13, L32, L32+1, 6, 10) + cmul1(AG, AG+1, 14, 15, L32, L32+1, 7, 11)
    sc += L(f"""
    v_mov_b32 v{AG+2}, s{sT}
    v_mov_b32 v{AG+3}, s{sT}
    s_lshl_b32 s{t0}, s{sC}, 10
    s_add_u32 s{t0}, s{t0}, s{sLBA}
    v_cmp_gt_u32 vcc, 16, v{vL}
    v_cndmask_b32 v5, 2.0, v{vL16}, vcc
    """)
    sc += L(f"buffer_store_dwordx4 {vr(AG,4)}, v5, {wsr}, s{t0} offen sc1", tag="ag")
    if tch("ag"): sc += L("s_barrier") + tch("ag")
    sc += L(f"""
    v_cndmask_b32 v{PFX}, v4, 0, vcc
    v_cndmask_b32 v{PFX+1}, v8, 0, vcc
    v_cmp_eq_u32 vcc, 2, v{vQ}
    v_cndmask_b32 v{PFX}, v{PFX}, v12, vcc
    v_cndmask_b32 v{PFX+1}, v{PFX+1}, v13, vcc
    v_cmp_eq_u32 vcc, 3, v{vQ}
    v_cndmask_b32 v{PFX}, v{PFX}, v14, vcc
    v_cndmask_b32 v{PFX+1}, v{PFX+1}, v15, vcc
    """)
    LB, LA = TWF, 148
    sc += L(f"v_lshlrev_b32 v12, 2, v{vQ}\n v_sub_u32 v12, s{sC}, v12\n v_lshlrev_b32 v12, 10, v12\n v_lshl_add_u32 v12, v{vN}, 4, v12")
    for e in range(4):
        sc += L(f"v_subrev_u32 v{LA+e}, {1024*(e+1)}, v12\n v_min_u32 v{LA+e}, 2.0, v{LA+e}")
    CD, CT, TT = WK + 40, WK, 4
    cd1 = lambda kap, part: CD + (kap*2 + part)*4
    m1 = []
    for kap in range(4):
        m1.append(W("lg", f"cf{kap}"))
        for sg in range(4):
            for part in range(2):
                d = vr(cd1(kap, part), 4)
                m1 += L(f"{MF} {d}, {ar(cf(kap,sg),4)}, {ar(gc(sg,part),4)}, {'0' if sg == 0 else d}")
    cm = []
    for k in range(16):
        ur, ui = step(k, 0), step(k, 1)
        cm += [pk("mul", 4 + 4*(k&1), ui, COEF, sel="ph"), pk("mul", 6 + 4*(k&1), ur, COEF, sel="ph"),
               pk("fma", ur, ur, COEF, 4 + 4*(k&1), sel="plp", neg=[0,0,1]), pk("fma", ui, ui, COEF, 6 + 4*(k&1), sel="plp")]
    HW, HR = PL, PL + 4
    ha = L(f"""
    v_and_b32 v14, 8, v{vN}
    v_and_b32 v15, 3, v{vN}
    v_lshl_or_b32 v14, v15, 1, v14
    v_bfe_u32 v15, v{vN}, 2, 1
    v_lshlrev_b32 v13, 2, v{vQ}
    v_or_b32 v14, v14, v15
    v_xor_b32 v14, v14, v13
    v_lshl_add_u32 v14, v{vN}, 4, v14
    s_lshl1_add_u32 s{t0}, s{sM0}, {SCR}
    v_lshl_add_u32 v{HW}, v14, 4, s{t0}
    v_xor_b32 v{HW+1}, 16, v{HW}
    v_xor_b32 v{HW+2}, 32, v{HW}
    v_xor_b32 v{HW+3}, 48, v{HW}
    v_and_b32 v14, 1, v{vQ}
    v_lshrrev_b32 v15, 2, v{vN}
    v_lshl_add_u32 v12, v{vQ}, 3, v15
    v_lshlrev_b32 v14, 3, v14
    v_lshl_or_b32 v14, v15, 1, v14
    v_bfe_u32 v15, v{vN}, 1, 1
    v_xor_b32 v14, v14, v15
    v_lshl_add_u32 v12, v12, 4, v14
    v_and_b32 v15, 1, v{vN}
    v_lshl_add_u32 v12, v12, 1, v15
    s_lshl_b32 s{t0}, s{sHT}, 5
    s_add_u32 s{t0}, s{t0}, {SCR}
    v_lshlrev_b32 v12, 3, v12
    v_xor_b32 v{HR}, s{t0}, v12
    v_xor_b32 v{HR+1}, 16, v{HR}
    v_xor_b32 v{HR+2}, 64, v{HR}
    v_xor_b32 v{HR+3}, 80, v{HR}
    """)
    if P["cmf"]:
        nag = max(i for i, x in enumerate(sc) if x.tag in ("ag", "tch")) + 1
        o += sc[:nag + 8] + st("scan1") + cm[:P["cmf"]] + zget + cm[P["cmf"]:] + st("zwait")
        o += spread(m1, sc[nag + 8:] + ha)
        cm, ha = [], []
    else:
        o += spread(m1, sc)
    o += st("scan1+cc1")
    ct = lambda col, b: CT + (col*2 + b)*4
    tw = []
    for kap in range(4):
        for b in range(2):
            t_ = TWF + (kap*2 + b)*2
            tw += twid(cd1(kap, 0) + 2*b, cd1(kap, 1) + 2*b, t_, t_, TT + 4*b, TT + 4*b + 2, sel="l", sel2="h")
        for b in range(2):
            for col in range(2):
                tw += L(f"v_cvt_pk_bf16_f32 v{ct(col, b) + kap}, v{TT+4*b+col}, v{TT+4*b+2+col}")
    nxt = lambda n: sum((CSEND[cs_order.pop(0)] for _ in range(min(n, len(cs_order)))), [])
    o += spread(tw, tch("tw") + nxt(P["ctw"]))
    cd2 = lambda col, mu, part: CD + ((col*2 + mu)*2 + part)*4
    m2 = []
    for col in range(2):
        for b in range(2):
            for part in range(2):
                m2 += L(f"{MF} {vr(cd2(col, b, part), 4)}, {ar((aF2 if b else aF1)+4*part,4)}, {vr(ct(col,b),4)}, 0")
    lbl = "\n".join(f"buffer_load_dwordx4 {vr(LB+4*e,4)}, v{LA+e}, {wsr}, s{sLBA} offen sc1" for e in range(4))
    o += spread(m2, take(unp, 17)) + unp
    def bfly(col):
        r = []
        for part in range(2):
            for h in range(2):
                E, O = cd2(col,0,part) + 2*h, cd2(col,1,part) + 2*h
                r.append(pk("add", E, E, O))
        for part in range(2):
            for h in range(2):
                E, O = cd2(col,0,part) + 2*h, cd2(col,1,part) + 2*h
                r.append(pk("fma", O, O, "-2.0", E, sel="plp"))
        return r
    o += bfly(0) + bfly(1)
    o += st("cc2")
    o += [I("s_cmp_eq_u32 s2, 0\n    s_cbranch_scc1 K_SPECIAL\nK_SPECIAL_RET:")]
    SV, RV = WK, 81920
    PLN = 46
    assert RV + 4*PLN*256 <= SCR
    def revw(col, p0):
        r = []
        for mu in range(2):
            for i in range(4):
                r += L(f"ds_write2st64_b32 v12, v{cd2(col,mu,0)+i}, v{cd2(col,mu,1)+i} offset0:{p0+16*mu+i} offset1:{p0+PLN+16*mu+i}")
        return r + L(f"ds_write2st64_b32 v12, v{cd2(col,0,0)}, v{cd2(col,0,1)} offset0:{p0+32} offset1:{p0+PLN+32}")
    def revr(p0):
        r = L("s_waitcnt lgkmcnt(0)\n s_barrier")
        for mu in range(2):
            for h in range(2):
                k = p0 + 19 - 16*mu - 2*h
                for part in range(2):
                    r += L(f"ds_read2st64_b32 {vr(cd2(1,mu,part)+2*h,2)}, v13 offset0:{PLN*part+k} offset1:{PLN*part+k-1}")
        return r + L("s_waitcnt lgkmcnt(0)")
    sp = L(f"""
    K_SPECIAL:
    v_lshl_add_u32 v12, v{vQ}, 8, v{vN}
    v_add_u32 v12, s{sW16}, v12
    v_sub_u32 v13, {832 + RV//4}, v12
    v_add_u32 v12, {RV//4}, v12
    v_lshlrev_b32 v13, 2, v13
    v_lshlrev_b32 v12, 2, v12
    """)
    for mu in range(2):
        for part in range(2):
            for h in range(2):
                sp.append(pk("mul", cd2(0,mu,part)+2*h, cd2(0,mu,part)+2*h, "0.5", sel="pl"))
    sp += revw(0, 0)
    for mu in range(2):
        for h in range(2):
            a_ = aW2 + (mu*2 + h)*4
            sp += L(f"v_accvgpr_read_b32 v8, a{a_}\n v_accvgpr_read_b32 v9, a{a_+2}\n v_lshlrev_b32 v4, 16, v8\n v_lshlrev_b32 v5, 16, v9\n v_and_b32 v6, 0xffff0000, v8\n v_and_b32 v7, 0xffff0000, v9")
            qr, qi, sr_, si = cd2(1,mu,0)+2*h, cd2(1,mu,1)+2*h, SV + mu*8 + 2*h, SV + mu*8 + 4 + 2*h
            sp += [pk("mul", sr_, qr, 4), pk("mul", si, qi, 4), pk("fma", sr_, qi, 6, sr_, neg=[1,0,0]), pk("fma", si, qr, 6, si)]
    sp += L(f"s_add_u32 s{t1}, s{sN}, 1\n v_mov_b32 v6, s{t1}\n s_mov_b32 s{t1}, {WS_NONCE}\n buffer_store_dword v6, v{vONE}, {wsr}, s{t1} offen sc1")
    sp += revr(0)
    for mu in range(2):
        for h in range(2): sp.append(pk("mul", cd2(1,mu,1)+2*h, cd2(1,mu,1)+2*h, "-1.0", sel="pl"))
    sp += L("s_branch K_SPECIAL_RET\n K_SPECIAL2:") + revw(1, 2*PLN) + revr(2*PLN)
    for mu in range(2):
        for part in range(2):
            for h in range(2):
                sp += [pk("add", cd2(0,mu,part)+2*h, cd2(0,mu,part)+2*h, cd2(1,mu,part)+2*h, neg=[0, part]),
                       pk("add", cd2(1,mu,part)+2*h, SV + mu*8 + part*4 + 2*h, SV + mu*8 + part*4 + 2*h)]
    sp += L("s_barrier\n s_branch K_SPECIAL2_RET")
    tail += sp
    cw = f"s[{sCT}:{sCT+1}]"
    md = []
    for mu in range(2):
        for h in range(2):
            Pr, Pi, Qr, Qi = (cd2(0,mu,0)+2*h, cd2(0,mu,1)+2*h, cd2(1,mu,0)+2*h, cd2(1,mu,1)+2*h)
            W1r, W1i, W2r, W2i = (wu(0,0,mu,2*h), wu(0,1,mu,2*h), wu(1,0,mu,2*h), wu(1,1,mu,2*h))
            A, B, C_, D_ = 4, 6, 8, 10
            md += [pk("fma", A, Pr, cw, Qi, sel="plp"), pk("fma", B, Pi, cw, Qr, sel="plp", neg=[0,0,1]),
                   pk("fma", C_, Qr, cw, Pi, sel="plp"), pk("fma", D_, Qi, cw, Pr, sel="plp", neg=[0,0,1]),
                   pk("mul", Pr, A, W1r), pk("mul", Pi, B, W1r), pk("mul", Qr, C_, W2r), pk("mul", Qi, D_, W2r),
                   pk("fma", W1r, B, W1i, Pr, neg=[1,0,0]), pk("fma", W1i, A, W1i, Pi),
                   pk("fma", W2r, D_, W2i, Qr), pk("fma", W2i, C_, W2i, Qi, neg=[1,0,0]),
                   pk("fma", Pr, W1r, cw, W2i, sel="plp", neg=[0,0,1]), pk("fma", Pi, W1i, cw, W2r, sel="plp"),
                   pk("fma", Qr, W2r, cw, W1i, sel="plp", neg=[0,0,1]), pk("fma", Qi, W2i, cw, W1r, sel="plp")]
    md2 = []
    for col in range(2):
        md2 += bfly(col)
        for tp in range(2):
            for i in range(4):
                md2 += L(f"v_cvt_pk_bf16_f32 v{ct(col,tp)+i}, v{cd2(col,tp,0)+i}, -v{cd2(col,tp,1)+i}")
    o += spread(md, (L(lbl, tag="lb") + (L("s_barrier") + tch("lb") if tch("lb") else []), P["lb0"], P["lb0"] + 30))
    assert all(k in cs_order for k in (5, 6, 7))
    o += [I("s_cmp_eq_u32 s2, 0\n    s_cbranch_scc1 K_SPECIAL2\nK_SPECIAL2_RET:")]
    o += spread(md2, nxt(P["cmd"]))
    o += st("mid")
    if cm: o += spread(cm, tch("cm") + nxt(P["ccm"])) + ha
    o += [W("vm", "lb")]
    o += st("lbwait")
    chk = ""
    for e in range(4):
        chk += f"v_cmp_ne_u32 vcc, 2.0, v{LA+e}\n v_xor_b32 v{4+e}, s{sT}, v{LB+4*e+2}\n v_cndmask_b32 v{4+e}, 0, v{4+e}, vcc\n"
    chk += "v_or3_b32 v4, v4, v5, v6\n v_or_b32 v4, v4, v7\n v_cmp_ne_u32 vcc, 0, v4\n"
    o += L(chk + "s_cbranch_vccnz K_POLL2\n K_POLL2_OK:")
    tail += L(f"K_POLL2:\n s_mov_b32 s{u3}, 0\n K_POLL2_L:\n {lbl}\n s_add_u32 s{u3}, s{u3}, 1\n s_waitcnt vmcnt(0)\n {chk} s_cbranch_vccz K_POLL2_OK\n s_cmp_lt_u32 s{u3}, {SPIN}\n s_cbranch_scc1 K_POLL2_L\n s_branch K_POLL2_OK")
    o += st("lbok")
    fx = cmul1(4, 5, LB+12, LB+13, L128, L128+1, LB+8, LB+9) + cmul1(6, 7, 4, 5, L128, L128+1, LB+4, LB+5)
    fx += cmul1(4, 5, 6, 7, L128, L128+1, LB, LB+1) + cmul1(6, 8, 4, 5, L512Q, L512Q+1)
    fx += L("""
    v_permlane32_swap_b32 v6, v8
    v_add_f32 v6, v6, v8
    v_mov_b32 v8, v6
    v_permlane16_swap_b32 v6, v8
    v_add_f32 v6, v6, v8
    v_mov_b32 v8, v6
    v_permlane32_swap_b32 v6, v8
    """)
    fx += cmul1(10, 12, 6, 8, L32Q, L32Q+1, PFX, PFX+1) + cmul1(11, 13, 10, 12, L16, L16+1, SA_R, SA_I)
    HP = CD
    src = (10, 12)
    for k in range(16):
        d = (step(k, 0), step(k, 1))
        fx += [pk("fma", d[0], src[0], LAM, d[0], sel="plp"), pk("fma", d[1], src[1], LAM, d[1], sel="plp"),
               pk("fma", d[0], src[1], LAM, d[0], sel="php", neg=[1, 0, 0]), pk("fma", d[1], src[0], LAM, d[1], sel="php")]
        src = d
        if k & 1:
            tau = k >> 1
            for part in range(2):
                for i0 in range(2):
                    sg = "-" if part else ""
                    fx += L(f"v_cvt_pk_bf16_f32 v{HP+(part*2+i0)*8+tau}, {sg}v{acc(tau,part)+i0}, {sg}v{acc(tau,part)+2+i0}")
        if k in (7, 15):
            hf = k >> 3
            if k == 7: fx += L("s_barrier")
            for part in range(2):
                for i0 in range(2):
                    fx += L(f"ds_write_b128 v{HW+2*i0+hf}, {vr(HP+(part*2+i0)*8+4*hf,4)} offset:{part*4096}", tag="hw")
    o += tch("fx0") + spread(fx, (nxt(P["cfx"]), 0, 125))
    C3 = ACC
    cd3 = lambda col, tp, part: C3 + ((col*2 + tp)*2 + part)*4
    mA = []
    for col in range(2):
        for tp in range(2):
            for part in range(2):
                mA += L(f"{MF} {vr(cd3(col,tp,part),4)}, {vr(ct(col,tp),4)}, {ar((aFA if tp else aF1)+4*part,4)}, 0")
    ex = L(f"""
    v_and_b32 v12, 3, v{vN}
    v_mul_u32_u24 v12, 4112, v12
    v_and_b32 v13, 60, v{vL}
    v_lshl_add_u32 v12, v13, 4, v12
    s_lshl_b32 s{t0}, s{sW}, 10
    s_add_u32 s{t0}, s{t0}, {SCR}
    v_add_u32 v12, s{t0}, v12
    v_add_u32 v13, {SCR}, v{vL16}
    s_lshl_b32 s{u0}, s{sHT}, 16
    s_add_u32 s{u0}, s{u0}, s{sSL}
    s_add_u32 s{u1}, s{u0}, 0x20000
    """)
    o += spread(mA, ex)
    o += [W("lg", "hw")] + L("s_barrier")
    o += st("fix")
    A0 = 64
    for tau in range(2):
        for kap in range(4):
            r = A0 + (tau*4 + kap)*4
            o += L(f"ds_read_b64_tr_b16 {vr(r,2)}, v{HR+2*tau} offset:{kap*8192}\n ds_read_b64_tr_b16 {vr(r+2,2)}, v{HR+2*tau+1} offset:{kap*8192+1024}", tag="hr")
    def hstores(fl, tag="hst"):
        r = []
        for tau in range(2):
            for kap in range(4):
                r += L(f"buffer_store_dwordx4 {vr(A0+(tau*4+kap)*4,4)}, v{vF+kap}, {osr}, s{u0+tau} offen {fl}", tag=tag)
        return r
    def invtw(cols):
        r = []
        for col, tp in cols:
            for h in range(2):
                r += twid(cd3(col,tp,0) + 2*h, cd3(col,tp,1) + 2*h, TWI + tp*8 + 2*h, TWI + tp*8 + 4 + 2*h, TT + 4*h, TT + 4*h + 2)
            for i in range(4):
                r += L(f"v_cvt_pk_bf16_f32 v{ct(col,tp)+i}, v{TT+4*(i>>1)+(i&1)}, v{TT+4*(i>>1)+2+(i&1)}")
        return r
    o += invtw([(0, 0)])
    o += [W("lg", "hr")] + L("s_barrier")
    xw = lambda col, tp: L(f"ds_write_b128 v12, {vr(ct(col,tp),4)} offset:{tp*32 + col*16}", tag="xw")
    rest = xw(0, 0) + invtw([(0, 1)]) + xw(0, 1) + invtw([(1, 0)]) + xw(1, 0) + invtw([(1, 1)]) + xw(1, 1)
    o += [I(f"s_cmp_lg_u32 s{sLOC}, 0\n    s_cbranch_scc1 K_HFAR")]
    o += spread(rest, hstores(""))
    o += L("K_HFAR_RET:")
    far = L("K_HFAR:") + spread([I(x.t) for x in rest], hstores("sc1")) + L("s_branch K_HFAR_RET")
    tail += far
    o += nxt(P["ch"])
    o += [W("lg", "xw")] + L("s_barrier")
    for kap in range(4):
        for sg in range(4):
            o += L(f"ds_read_b128 {ar(cf(kap,sg),4)}, v13 offset:{kap*4112 + sg*1024}", tag=f"cg{kap}")
    TW, SK, GG, AD = 96, 112, 128, 130
    o += L(f"""
    v_lshlrev_b32 v12, 4, v{vQ}
    v_and_b32 v14, 12, v{vN}
    v_add_u32 v12, v12, v14
    v_and_b32 v14, 3, v{vN}
    v_lshlrev_b32 v14, 4, v14
    v_lshl_add_u32 v12, v12, 14, v14
    v_lshlrev_b32 v14, 31, v{vN}
    s_lshl_b32 s{t0}, s{sW}, 14
    s_add_u32 s{t0}, s{t0}, s{sPI}
    s_lshl_b32 s{t0}, s{t0}, 6
    s_add_u32 s{t0}, s{t0}, {WS_Y}
    s_lshr_b32 s{u2}, s2, 5
    s_lshl2_add_u32 s{u2}, s{u2}, s{sFL2}
    v_and_b32 v5, 7, v{vL}
    v_lshl_add_u32 v5, v5, 2, s{sO}
    v_add_u32 v6, s{sLOC}, v{vONE}
    v_add_u32 v7, s{sNLOC}, v{vONE}
    v_mov_b32 v28, s{sT}
    """)
    up = []
    for k in range(16): up += L(f"v_accvgpr_read_b32 v{TW+k}, a{aTW+k}")
    for k in range(18): up += L(f"v_accvgpr_read_b32 v{SK+k}, a{aS+k}")
    for k in range(4): up += L(f"v_accvgpr_read_b32 v{AD+k}, a{aAD+k}")
    pend = []; YST = []
    for kap in range(4):
        mB = [W("lg", f"cg{kap}")]
        for sg in range(4):
            for part in range(2):
                d = vr(cd1(kap, part), 4)
                mB += L(f"{MF} {d}, {ar(gc(sg,part),4)}, {ar(cf(kap,sg),4)}, {'0' if sg == 0 else d}")
        o += spread(mB, (take(up, 16 if kap == 0 else 6), 1, 8 if kap == 0 else 3), (pend, 4, 8), nxt(P["cmb"]))
        pend = []
        for i in range(4): pend += L(f"v_cvt_pk_bf16_f32 v{CT+kap*4+i}, v{cd1(kap,0)+i}, v{cd1(kap,1)+i}")
        for i in range(4): pend += L(f"v_xor_b32 v{CT+kap*4+i}, v14, v{CT+kap*4+i}")
        ys = L(f"buffer_store_dwordx4 {vr(CT+kap*4,4)}, v12, {wsr}, s{t0} offen sc1", tag="yst")
        if kap < 3: ys += L(f"s_add_u32 s{t0}, s{t0}, {YS}")
        if P["ydef"]: YST += ys
        else: pend += ys
    o += up
    o += st("cci")
    assert 0 not in cs_order
    o += [W("vm", "hst"), W("vm", "cs0")] + L("s_barrier")
    o += L(f"buffer_store_dword v28, v6, {wsr}, s{u2} offen offset:32\n buffer_store_dword v28, v7, {wsr}, s{u2} offen offset:32 sc1", tag="fl")
    o += pend
    o += st("hack")
    AC2, BF = 32, 152
    ac2 = lambda tau, jt: AC2 + (tau*4 + jt)*4
    af = lambda k, tau, kap: (vr(A0 + (tau*4 + kap)*4, 4) if k == 0 else ar((k-1)*32 + (tau*4 + kap)*4, 4))
    def reads2(k, kap):
        base = (k & 3) * 16384; r = []
        for jt in range(4): r += L(f"ds_read_b128 {vr(BF+(kap&1)*16+jt*4,4)}, v{vR2+kap} offset:{base + jt*2048}", tag="fr")
        if k & 3 == 3: r += L(f"v_xor_b32 v{vR2+kap}, 0x10000, v{vR2+kap}")
        return r
    def mfmas2(k, kap):
        r = []
        for jt in range(4):
            for tau in range(2):
                a_ = vr(ac2(tau, jt), 4)
                r += L(f"{MF} {a_}, {af(k,tau,kap)}, {vr(BF+(kap&1)*16+jt*4,4)}, {'0' if (k == 0 and kap == 0) else a_}")
        return r
    def aload(k):
        r = L(f"s_bfe_u32 s{sA}, s{sPT}, {0x40000 | (4*k)}\n s_lshl_b32 s{sA}, s{sA}, 8\n s_add_u32 s{sA}, s{sA}, s{sHB}\n s_add_u32 s{sA2}, s{sA}, 0x20000")
        for kap in range(4):
            r += L(f"buffer_load_dwordx4 {af(k,0,kap)}, v{vF+kap}, {osr}, s{sA} offen {lfl}\n buffer_load_dwordx4 {af(k,1,kap)}, v{vF+kap}, {osr}, s{sA2} offen {lfl}", tag=f"a{k}{kap}")
        return r
    def gpass(hook, pre):
        r = []
        for k in range(8):
            for kap in range(4):
                r += [W("lg", "fr")] + pre(k, kap)
                if k == 0 and kap == 0: r += reads2(0, 0) + hook(0, 0)
                else: r += spread(mfmas2(k, kap - 1) if kap else mfmas2(k - 1, 3), (reads2(k, kap), 0, 3), hook(k, kap))
        return r
    def quarter(lst, kap): return lst[kap*len(lst)//4:(kap+1)*len(lst)//4]
    pl2 = f"buffer_load_dword v4, v5, {wsr}, s{sFL2} offen offset:32 sc1"
    YL, PL3 = 184, 8
    pl3 = f"buffer_load_dword v{PL3}, v{vL16}, {wsr}, s{u2} offen sc1"
    keepx = [I(f"v_xor_b32 v{vDC+jj}, 0x100000, v{vDC+jj}") for jj in range(4)]
    CKEEP = [cdma(e, f"ck{e}", P["ckfl"]) for e in range(8)]
    yl = L(f"s_lshl4_add_u32 s{u2}, s{sC}, s{sJ}\n s_lshl4_add_u32 s{u2}, s{u2}, s{sW}\n s_lshl_b32 s{u2}, s{u2}, 10\n s_add_u32 s{u2}, s{u2}, {WS_Y}")
    for rho in range(4):
        yl += L(f"buffer_load_dwordx4 {vr(YL+4*rho,4)}, v{vL16}, {wsr}, s{u2} offen {P['once']}", tag="y")
        if rho < 3: yl += L(f"s_add_u32 s{u2}, s{u2}, 4096")
    H0 = {k: [] for k in range(8)}
    for k in range(1, 6): H0[k] = aload(k + 2)
    SIG3, POLL3, CHK3 = P["sig3"], P["poll3"], P["chk3"]
    late = list(cs_order)
    assert not late or min(late) >= 4
    H0[1] = nxt(8) + H0[1]
    H0[SIG3] = L(f"s_lshl4_add_u32 s{u2}, s2, {WS_FL3}") + signal(u2) + H0[SIG3]
    if P["cpf2"] >= 0: H0[P["cpf2"]] = H0[P["cpf2"]] + code_pf("K_PC3", "v29")
    H0[POLL3] = L(f"s_lshl_b32 s{u2}, s{sW}, 10\n s_add_u32 s{u2}, s{u2}, {WS_FL3}") + L(pl3, tag="poll") + H0[POLL3]
    H0[CHK3] = H0[CHK3] + yl + keepx + CKEEP[0]
    H0[7] = H0[7] + CKEEP[1] + (CKEEP[2] if CHK3 < 7 else [])
    a1, a2 = aload(1), aload(2)
    def hook0(k, kap):
        if k == 0: return {1: L(pl2, tag="poll"), 2: YST if P["ydef"] == 1 else [], 3: a1}.get(kap, [])
        if k == 1 and kap == 0: return a2 + (YST if P["ydef"] == 2 else [])
        if k == 1: return H0[1][(kap-1)*len(H0[1])//3:kap*len(H0[1])//3]
        return quarter(H0[k], kap)
    def pre0(k, kap):
        r = []
        if (k, kap) == (0, 3): r = [W("vm", "poll")] + poll_check("K_POLL3", 4, sE, pl2) + L("s_barrier") + st("hflag")
        if (k, kap) == (SIG3, 0): r = [W("vm", "yst")] + L("s_barrier")
        if late and (k, kap) == (min(late), 0): r = [W("vm", "cs7")] + (r or L("s_barrier"))
        if (k, kap) == (CHK3, 0): r = r + [W("vm", "poll")] + poll_check("K_POLL4", PL3, sT, pl3) + L("s_barrier") + st("yflag")
        kk, kp = (k, kap - 1) if kap else (k - 1, 3)
        if kk >= 1: r += [W("vm", f"a{kk}{kp}")]
        if kap == 1 and k in (1, 2, 4, 6): r += st(f"a{k}")
        return r
    o += gpass(hook0, pre0)
    o += [W("lg", "fr"), W("vm", "a73")]
    ex = L(f"s_lshl_b32 s{t0}, s2, 14\n s_add_u32 s{t0}, s{t0}, s{sM0}\n s_add_u32 s{t0}, s{t0}, {WS_PART}\n v_lshlrev_b32 v4, 16, v{vQ}\n v_lshl_add_u32 v4, v{vN}, 4, v4")
    XU = 216
    xu = lambda e, tp, part: XU + ((e*2 + tp)*2 + part)*4
    unp = []
    for e in range(2):
        for tp in range(2):
            for i in range(4):
                unp += L(f"v_lshlrev_b32 v{xu(e,tp,0)+i}, 16, v{SK+(e*2+tp)*4+i}\n v_and_b32 v{xu(e,tp,1)+i}, 0xffff0000, v{SK+(e*2+tp)*4+i}")
    o += spread(mfmas2(7, 3), ex + take(unp, 10)) + take(unp, 6)
    o += st("p0")
    PO = 200
    for i in range(4):
        for tau in range(2):
            for h in range(2):
                o += L(f"v_cvt_pk_bf16_f32 v{PO+i*4+tau*2+h}, v{ac2(tau,2*h)+i}, v{ac2(tau,2*h+1)+i}")
        o += L(f"buffer_store_dwordx4 {vr(PO+i*4,4)}, v{vL16}, {wsr}, s{t0} offen offset:{1024*i} sc1", tag="st5")
    o += [W("vm", "y")]
    o += st("ywait")
    for rho in range(4):
        for h in range(2):
            o += L(f"ds_write_b64 v{AD+2 if rho == 0 else AD+3}, {vr(YL+4*rho+2*h,2)} offset:{h*2080 + rho*512}", tag="yw")
    o += unp
    o += [W("lg", "yw")] + L("s_barrier")
    AO = YL
    for e in range(2):
        for mu in range(2):
            for h in range(2):
                o0, o1 = (64*h + e, 64*h + 32 + e) if mu == 0 else (96 - 64*h + e, 64 - 64*h + e)
                o += L(f"ds_read2_b32 {vr(AO+(e*2+mu)*4+2*h,2)}, v{AD+mu} offset0:{o0} offset1:{o1}", tag=f"yr{e}")
    DA = AC2
    da = lambda e, tp, part: DA + ((e*2 + tp)*2 + part)*4
    mA = []
    for e in range(2):
        mA.append(W("lg", f"yr{e}"))
        for mu in range(2):
            for tp in range(2):
                for part in range(2):
                    d = vr(da(e, tp, part), 4)
                    cst = aF1 if tp == 0 else (aNA if mu else aFA)
                    mA += L(f"{MF} {d}, {vr(AO+(e*2+mu)*4,4)}, {ar(cst+4*part,4)}, {'0' if mu == 0 else d}")
    o += spread(mA, CKEEP[2] if CHK3 == 7 else CKEEP[3])
    TP, T0 = BF, BF + 16
    ri = []
    for e in range(2):
        for tp in range(2):
            for h in range(2):
                ri += twid(da(e,tp,0) + 2*h, da(e,tp,1) + 2*h, TW + tp*4 + 2*h, TW + 8 + tp*4 + 2*h, T0 + 4*h, T0 + 4*h + 2)
            for i in range(4):
                ri += L(f"v_cvt_pk_bf16_f32 v{TP+(e*2+tp)*4+i}, v{T0+4*(i>>1)+(i&1)}, v{T0+4*(i>>1)+2+(i&1)}")
    o += ri
    for e in range(2):
        for tp in range(2):
            for part in range(2):
                o += L(f"{MF} {vr(da(e,tp,part),4)}, {ar(aF1+4*part,4)}, {vr(TP+(e*2+tp)*4,4)}, 0")
    CO = YL
    for h in range(2):
        for e in range(2):
            for tp in range(2):
                for part in range(2):
                    o.append(pk("fma", xu(e,tp,part)+2*h, da(e,tp,part)+2*h, GG, xu(e,tp,part)+2*h, sel="p" + "lh"[e] + "p", neg=[part, 0, 0]))
        for i in (2*h, 2*h + 1):
            for e in range(2):
                for tp in range(2):
                    o += L(f"v_cvt_pk_bf16_f32 v{CO+i*4+e*2+tp}, v{xu(e,tp,0)+i}, v{xu(e,tp,1)+i}")
            o += L(f"buffer_store_dwordx4 {vr(CO+i*4,4)}, v4, {wsr}, s{sCOMB} offen sc1", tag="st4")
            if i < 3: o += L(f"s_add_u32 s{sCOMB}, s{sCOMB}, 16384")
    o += st("ri")
    CB, PB, OM, CU = 96, 112, 128, 184
    pl4 = f"buffer_load_dword v4, v5, {wsr}, s{u2} offen sc1"
    pl5 = f"buffer_load_dword v6, v9, {wsr}, s{u2} offen sc1"
    SIG4, POLL4, CHK4, POLL5, CHK5 = P["sig4"], P["poll4"], P["chk4"], P["poll5"], P["chk5"]
    H1 = {k: [] for k in range(8)}
    ck = [e for e in range(3 if CHK3 == 7 else 4, 8)]
    H1[0] = L(f"s_lshl_b32 s{u1}, s{sPI}, 6\n s_add_u32 s{u0}, s{u1}, {WS_FL5}") + signal(u0)
    H1[0] += L(f"s_add_u32 s{u1}, s{u1}, {WS_FL4}\n s_lshl_b32 s{u2}, s{sC}, 10\n s_add_u32 s{u2}, s{u2}, {WS_FL4}")
    H1[0] += L(f"v_lshl_add_u32 v5, v{vN}, 6, s{sO}\n s_xor_b32 s{t0}, s{sJ}, {8 + 256}\n s_lshl_b32 s{t0}, s{t0}, 6\n s_add_u32 s{t0}, s{t0}, s{sO}\n v_mov_b32 v9, s{t0}")
    for k in range(3):
        for e in take(ck, 2): H1[k] += CKEEP[e]
    H1[SIG4] = signal(u1) + H1[SIG4]
    if P["rfr"] >= 0:
        H1[P["rfr"]] = L(f"v_lshrrev_b32 v10, 1, v{vL}\n v_lshlrev_b32 v10, 5, v10\n v_and_or_b32 v10, v{vL}, 1, v10\n v_lshlrev_b32 v10, 7, v10\n s_lshl_b32 s{sA}, s{sW}, 17\n s_add_u32 s{sA}, s{sA}, s{sSL}") + L(f"buffer_load_dword v10, v10, {osr}, s{sA} offen sc1", tag="rfr") + H1[P["rfr"]]
    fin = L(f"""
    s_lshl4_add_u32 s{t0}, s{sC}, s{sJ}
    s_lshl_b32 s{t0}, s{t0}, 14
    s_add_u32 s{t0}, s{t0}, s{sM0}
    s_add_u32 s{t0}, s{t0}, {WS_COMB}
    s_xor_b32 s{t1}, s2, 4
    s_lshl_b32 s{t1}, s{t1}, 14
    s_add_u32 s{t1}, s{t1}, s{sM0}
    s_add_u32 s{t1}, s{t1}, {WS_PART}
    s_lshl2_add_u32 s{t2}, s{sC}, s{sW}
    s_lshl_b32 s{t2}, s{t2}, 7
    s_add_u32 s{t2}, s{t2}, {WS_OMG}
    v_lshlrev_b32 v7, 5, v{vQ}
    s_lshl3_add_u32 s{t3}, s{sC}, s{sHT}
    s_lshl_b32 s{t3}, s{t3}, 8
    s_add_u32 s{t3}, s{t3}, s{sJ}
    s_lshl_b32 s{t3}, s{t3}, 8
    v_lshlrev_b32 v8, 14, v{vQ}
    v_lshl_add_u32 v8, v{vN}, 4, v8
    """)
    H1[2] = H1[2] + fin
    flp, flc = [], []
    for i in range(4): flp += L(f"buffer_load_dwordx4 {vr(PB+4*i,4)}, v{vL16}, {wsr}, s{t1} offen offset:{1024*i} {P['once']}", tag=f"pb")
    for h in range(2): flc += L(f"buffer_load_dwordx4 {vr(OM+4*h,4)}, v7, {wsr}, s{t2} offen offset:{16*h} sc1", tag="om")
    for i in range(4): flc += L(f"buffer_load_dwordx4 {vr(CB+4*i,4)}, v{vL16}, {wsr}, s{t0} offen offset:{1024*i} {P['once']}", tag=f"cb{i}")
    PU = 216
    pun = [W("vm", "pb")]
    for k in range(16): pun += L(f"v_lshlrev_b32 v{PU+2*k}, 16, v{PB+k}\n v_and_b32 v{PU+2*k+1}, 0xffff0000, v{PB+k}")
    def hook1(k, kap):
        r = quarter(H1[k], kap)
        if 4*k + kap == POLL5: r = r + L(pl5, tag="poll5")
        if 4*k + kap == POLL4: r = r + L(pl4, tag="poll")
        if 4*k + kap == CHK5: r = flp + r
        if 4*k + kap == CHK4: r = flc + r
        if k == 7 and kap: r = r + pun[(kap-1)*11:kap*11]
        return r
    def pre1(k, kap):
        r = []
        if 4*k + kap == CHK5: r += [W("vm", "poll5")] + poll_check("K_POLL6", 6, sE, pl5)
        if 4*k + kap == CHK4: r += [W("vm", "poll")] + poll_check("K_POLL5", 4, sE, pl4)
        if kap == 0:
            if k == 0: r += [W("vm", "ck1"), W("vm", "st5")]
            if k == 2: r += [W("vm", "ck3")]
            if k == 4: r += [W("vm", "ck7")]
            if k == SIG4: r += [W("vm", "st4")]
        if r: r += L("s_barrier")
        if kap == 0 and k in (0, 3, 5, 7): r += st(f"k{k}")
        return r
    o += gpass(hook1, pre1)
    o += [W("lg", "fr")]
    o += mfmas2(7, 3)
    o += st("p1")
    for i in range(4):
        o += [W("vm", f"cb{i}")]
        if i == 0: o += st("cbwait")
        for tau in range(2):
            d = CU + (i*2 + tau)*4
            for h in range(2):
                pu = PU + (i*4 + tau*2 + h)*2
                o += L(f"""
                v_add_f32 v{pu}, v{pu}, v{ac2(tau,2*h)+i}
                v_add_f32 v{pu+1}, v{pu+1}, v{ac2(tau,2*h+1)+i}
                v_lshlrev_b32 v{d+2*h}, 16, v{CB+4*i+2*tau+h}
                v_and_b32 v{d+2*h+1}, 0xffff0000, v{CB+4*i+2*tau+h}
                """) + [pk("fma", d+2*h, pu, OM+2*i, d+2*h, sel="p" + "lh"[tau] + "p")]
            o += L(f"s_add_u32 s{t1}, s{t3}, {(32*tau + i)*4096}") if (tau or i) else L(f"s_mov_b32 s{t1}, s{t3}")
            o += L(f"buffer_store_dwordx4 {vr(d,4)}, v8, s[{OUT_}:{OUT_+3}], s{t1} offen {P['outfl']}", tag="ost")
    o += st("ost")
    if diag:
        o += L("s_waitcnt vmcnt(0)") + st("drain") + st.real("rt1")
        o += L(f"s_lshl2_add_u32 s3, s2, s{sW}\n s_lshl_b32 s3, s3, 8\n s_add_u32 s3, s3, {WS_STAMP}\n v_lshlrev_b32 v4, 2, v{vL}\n buffer_store_dword v{vST}, v4, {wsr}, s3 offen")
    o += L("K_END:\n s_endpgm")
    drop = set(str(P.get("drop", "")).split("+")) - {""}
    if drop: o = [x for x in o if not (x.tag and any(x.tag.startswith(d) for d in drop) and x.t.startswith(("buffer_", "global_")) and "v30," not in x.t)]
    return dict(name=KNAME, body=finish(o, tail) + "K_CODE_END:\n", grid=256, block=256, lds=163840, vgpr=256, agpr=256, sgpr=102), st.names

def build(diag=False, hdbg=False, P=None, single=True):
    k, names = kernel(diag, hdbg, P)
    txt = build_file([k], extra_comments=([("rtstamps: " if diag == 2 else "stamps: ") + " ".join(names)] if diag else []) + (["hdbg"] if hdbg else []))
    if single: txt = txt.replace(f"@launch kernel={KNAME} ", "@launch ")
    return txt

if __name__ == "__main__":
    P = {}
    for a in sys.argv[1:]:
        if a.startswith("-P"):
            k, v = a[2:].split("=")
            try: P[k] = int(v)
            except ValueError:
                try: P[k] = float(v)
                except ValueError: P[k] = v
    out = [a for a in sys.argv[1:] if not a.startswith("-")]
    open(out[0] if out else "k.s", "w").write(build(2 if "--rt" in sys.argv else ("--diag" in sys.argv), "--hdbg" in sys.argv, P, "--list" not in sys.argv))
```

```python
import re, subprocess, struct

def vr(a, n=1): return f"v{a}" if n == 1 else f"v[{a}:{a+n-1}]"
def ar(a, n=1): return f"a{a}" if n == 1 else f"a[{a}:{a+n-1}]"
def sr(a, n=1): return f"s{a}" if n == 1 else f"s[{a}:{a+n-1}]"
def fbits(x): return "0x%08x" % struct.unpack("<I", struct.pack("<f", x))[0]

class I:
    __slots__ = ("t", "tag", "maybe", "gid")
    def __init__(self, t, tag=None, maybe=False, gid=0):
        self.t = t; self.tag = tag; self.maybe = maybe; self.gid = gid
    def __repr__(self): return self.t

def W(kind, tag):
    return I(f"@wait {kind} {tag}")

_gid = [0]
def L(text, tag=None, maybe=False, glue=True):
    out = []
    _gid[0] += 1
    for line in text.split("\n"):
        line = line.split(";")[0].strip()
        if not line: continue
        if glue and out and line.startswith(("s_cselect", "s_addc", "s_cbranch_scc")) and out[-1].t.startswith(("s_cmp", "s_add_u32", "s_bitcmp")):
            out[-1].t += "\n" + line
        else: out.append(I(line, tag, maybe, _gid[0]))
    return out

_REG = re.compile(r"^(-|\|)?(?:abs\()?([vas])(?:(\d+)|\[(\d+):(\d+)\])\)?\|?$")
def regs(op):
    op = op.strip()
    if op in ("vcc",): return {("s", 106), ("s", 107)}
    if op == "vcc_lo": return {("s", 106)}
    if op == "vcc_hi": return {("s", 107)}
    if op == "m0": return {("s", 124)}
    if op == "exec": return {("s", 126), ("s", 127)}
    m = _REG.match(op)
    if not m: return set()
    k = m.group(2)
    if m.group(3) is not None: return {(k, int(m.group(3)))}
    return {(k, i) for i in range(int(m.group(4)), int(m.group(5)) + 1)}

TRANS = ("v_exp_f32", "v_log_f32", "v_rcp_f32", "v_rsq_f32", "v_sqrt_f32", "v_sin_f32", "v_cos_f32")
class P:
    def __init__(self, t):
        self.t = t
        sp = t.split(None, 1)
        mn = self.mn = sp[0]
        rest = sp[1] if len(sp) > 1 else ""
        ops = [o.strip() for o in rest.split(",")] if rest else []
        fixed = []; depth = 0
        for o in ops:
            if depth > 0: fixed[-1] += "," + o
            else: fixed.append(o)
            depth += o.count("[") - o.count("]")
        self.mods = ""
        if fixed:
            last = fixed[-1].split(None, 1)
            fixed[-1] = last[0]; self.mods = last[1] if len(last) > 1 else ""
        self.ops = fixed
        R = [regs(o) for o in fixed]
        U = lambda xs: set().union(*xs) if xs else set()
        self.d = set(); self.s = set(); self.ab = set(); self.c = set(); self.cls = "other"; self.passes = 0
        if mn.startswith("v_mfma"):
            self.cls = "mfma"; self.d = R[0]; self.ab = R[1] | R[2]; self.c = R[3]; self.s = self.ab | self.c
            self.passes = 8 if "32x32" in mn else 4
        elif mn.startswith("v_"):
            self.cls = "valu"
            if "swap" in mn: self.d = U(R); self.s = U(R)
            elif mn == "v_nop": pass
            else:
                self.d = R[0]; self.s = U(R[1:])
                if mn.startswith(("v_fmac", "v_pk_fmac", "v_dot2c", "v_writelane")) or ("dpp" in mn) : self.s |= R[0]
        elif mn.startswith(("buffer_", "global_")):
            self.cls = "vmem"
            lds = " lds" in (" " + self.mods) or "_lds_" in mn
            if "load" in mn and not lds: self.d = R[0]; self.s = U(R[1:])
            else: self.s = U(R)
            if lds: self.s |= {("s", 124)}
            self.lds = lds
            self.wide_store = ("store" in mn) and ("x3" in mn or "x4" in mn)
            if self.wide_store: self.sdata = R[0] if mn.startswith("buffer_") else R[1]
        elif mn.startswith("ds_"):
            self.cls = "ds"
            if mn.startswith(("ds_read", "ds_bpermute", "ds_permute", "ds_swizzle")): self.d = R[0]; self.s = U(R[1:])
            else: self.s = U(R)
        elif mn.startswith("s_"):
            self.cls = "salu"
            if mn.startswith(("s_load", "s_memtime", "s_memrealtime")): self.cls = "smem"
            if mn.startswith(("s_cmp", "s_waitcnt", "s_barrier", "s_nop", "s_cbranch", "s_branch", "s_endpgm", "s_sleep", "s_setprio", "s_bitcmp")):
                self.s = U(R)
            else:
                self.d = R[0] if R else set(); self.s = U(R[1:])
                if "saveexec" in mn: self.d |= regs("exec")
        self.trans = mn.replace("_e32", "").replace("_e64", "") in TRANS
        self.dpp = any(k in self.mods for k in ("quad_perm", "row_", "wave_", "dpp"))
        self.dot = mn.startswith("v_dot")
        self.states = int(fixed[0], 0) + 1 if mn == "s_nop" else 1

def need(p, c):
    n = 0
    V = lambda s: {r for r in s if r[0] in "va"}
    S = lambda s: {r for r in s if r[0] == "s"}
    if p.cls == "valu":
        vd = V(p.d); sd = S(p.d)
        if c.cls == "mfma" and vd & c.s: n = max(n, 2)
        if c.cls == "valu":
            if p.trans and vd & c.s: n = max(n, 1)
            if c.mn.startswith(("v_readlane", "v_readfirstlane")) and vd & c.s: n = max(n, 1)
            if (c.dpp or c.mn.startswith("v_permlane")) and vd & c.s: n = max(n, 2)
            if sd & c.s: n = max(n, 4 if c.mn.startswith(("v_readlane", "v_writelane")) else 2)
            if p.dot and vd & (c.s | c.d):
                if not (c.mn == p.mn and not (vd & (regs(c.ops[1]) | regs(c.ops[2])))): n = max(n, 3)
        if p.trans and c.cls in ("vmem", "ds") and vd & c.s: n = max(n, 1)
        if p.dot and c.cls in ("vmem", "ds", "mfma") and vd & c.s: n = max(n, 3)
        if c.cls == "vmem" and sd & c.s: n = max(n, 5)
        if c.cls in ("salu", "smem") and sd & c.s: n = max(n, 1)
        if c.mn.startswith("s_cbranch_vcc") and sd & regs("vcc"): n = max(n, 1)
    if p.cls == "mfma":
        k = {4: (6, 8, 3), 8: (10, 12, 7)}[p.passes]
        if c.cls == "mfma":
            if p.d & c.ab: n = max(n, k[1])
            if p.d & c.c and not (p.d == c.c and p.passes == c.passes): n = max(n, k[0])
            if p.d & c.d and not (p.d == c.c): n = max(n, k[0])
        elif c.cls in ("valu", "vmem", "ds"):
            if p.d & (c.s | c.d): n = max(n, k[1])
            if c.cls == "valu" and p.c & c.d: n = max(n, k[2])
    if p.cls == "salu" and ("s", 124) in p.d and c.cls == "vmem" and getattr(c, "lds", False): n = max(n, 1)
    if p.cls == "vmem" and getattr(p, "wide_store", False) and p.sdata & c.d: n = max(n, 2)
    return n

def resolve_waits(ins):
    out = []; vm = []; lg = []; issued = set()
    alltags = {x.tag for x in ins if x.tag and not x.t.startswith("@")}
    def emit(kind, n):
        name = "vmcnt" if kind == "vm" else "lgkmcnt"
        if out and out[-1].t.startswith("s_waitcnt") and name not in out[-1].t:
            out[-1] = I(out[-1].t + f" {name}({n})")
        elif out and out[-1].t.startswith("s_waitcnt") and name in out[-1].t:
            old = int(re.search(name + r"\((\d+)\)", out[-1].t).group(1))
            out[-1] = I(re.sub(name + r"\(\d+\)", f"{name}({min(old, n)})", out[-1].t))
        else: out.append(I(f"s_waitcnt {name}({n})"))
    for x in ins:
        t = x.t
        if t.startswith("@wait"):
            _, kind, tag = t.split()
            q = vm if kind == "vm" else lg
            assert tag in ("*", "fr") or tag in issued or tag not in alltags, f"wait for {tag} in front of its first issue"
            idx = [i for i, e in enumerate(q) if e[0] == tag or tag == "*"]
            if not idx: continue
            last = idx[-1]
            n = sum(1 for e in q[last + 1:] if not e[1])
            if kind == "lg" and any(e[2] for e in q): n = 0
            cap = 63 if kind == "vm" else 15
            n = min(n, cap)
            emit(kind, n)
            if n == 0: del q[:]
            else: del q[:last + 1]
            continue
        mn = t.split()[0]
        issued.add(x.tag)
        if mn.startswith(("buffer_", "global_")): vm.append((x.tag, x.maybe, False))
        elif mn.startswith("ds_"): lg.append((x.tag, x.maybe, False))
        elif mn.startswith(("s_load", "s_memtime", "s_memrealtime")): lg.append((x.tag, x.maybe, True))
        elif mn == "s_waitcnt" and not x.maybe:
            if "vmcnt(0)" in t: del vm[:]
            if "lgkmcnt(0)" in t: del lg[:]
        out.append(x)
    return out

def pad_hazards(ins):
    out = []; hist = []
    nn = 0
    for x in ins:
        t = x.t
        if t.endswith(":") or t.startswith("."):
            out.append(x); continue
        c = P(t)
        dist = 0; req = 0
        for p in reversed(hist):
            if dist >= 13: break
            r = need(p, c) - dist
            if r > req: req = r
            dist += p.states
        if req > 0:
            nop = I(f"s_nop {req-1}"); out.append(nop); hist.append(P(nop.t)); nn += 1
        out.append(x); hist.append(c)
        if len(hist) > 40: del hist[:20]
    return out

def sizes(ins):
    src = "\n".join(x.t for x in ins) + "\n"
    if "K_CODE_END" in src and "K_CODE_END:" not in src: src += "K_CODE_END:\n"
    r = subprocess.run(["llvm-mc", "-triple=amdgcn-amd-amdhsa", "-mcpu=gfx950", "-show-encoding"], input=src, capture_output=True, text=True)
    if r.returncode:
        lines = src.split("\n")
        msg = r.stderr[:3000]
        raise SystemExit("assembly error:\n" + msg)
    enc = [l for l in r.stdout.split("\n") if "encoding:" in l]
    sz = [len(re.search(r"encoding: \[(.*?)\]", l).group(1).split(",")) for l in enc]
    names = [l.split()[0] for l in enc]
    return sz, names

def align8(ins, minrun=7):
    real = [i for i, x in enumerate(ins) if not (x.t.endswith(":") or x.t.startswith("."))]
    sz, names = sizes(ins)
    assert len(sz) == len(real), (len(sz), len(real))
    out = list(ins); inserts = []
    off = 0; k = 0; n = len(real)
    last4 = None
    while k < n:
        if sz[k] % 8 == 4:
            off ^= 4
            ok = sz[k] == 4 and names[k].endswith("_e32") and not names[k].startswith(("v_readfirstlane", "v_accvgpr", "v_permlane", "v_swap", "v_fmac", "v_nop"))
            last4 = k if ok else None
            k += 1; continue
        run = 0
        while k + run < n and sz[k + run] % 8 == 0: run += 1
        if off:
            if last4 is not None and last4 == k - 1:
                t = out[real[last4]].t.split(None, 1)
                mn = t[0].replace("_e32", "") + "_e64"
                o = out[real[last4]]
                out[real[last4]] = I(mn + " " + t[1], o.tag, o.maybe); off = 0
            elif max(len(g) for g in "".join("m" if names[k+i].startswith("v_mfma") else "x" for i in range(run)).split("m")) >= minrun:
                inserts.append(real[k]); off = 0
        k += run; last4 = None
    for i in reversed(inserts): out.insert(i, I("s_nop 0"))
    return out

NO_SCC = ("s_mov", "s_movk", "s_cselect", "s_mul_i32", "s_mul_hi", "s_waitcnt", "s_barrier", "s_nop", "s_cbranch", "s_branch", "s_load", "s_memtime",
          "s_memrealtime", "s_getpc", "s_sleep", "s_setprio", "s_endpgm", "s_getreg")
def check_flags(ins, verbose=False):
    scc = vcc = None
    for x in ins:
        t = x.t
        if t.startswith("@") or t.endswith(":") or t.startswith("."): continue
        mn = t.split()[0]
        if mn.startswith(("s_cselect", "s_cbranch_scc", "s_addc")):
            ok = scc is not None and scc.gid == x.gid and scc.t.startswith("s_add_u32" if mn.startswith("s_addc") else ("s_cmp", "s_bitcmp"))
            assert ok, f"SCC: {t} sees {scc}"
        if (mn.startswith("v_cndmask") and t.rstrip().endswith("vcc")) or mn.startswith("s_cbranch_vcc"):
            if vcc.gid != x.gid:
                assert 0 < x.gid - vcc.gid <= 12, f"VCC: {t} sees {vcc}"
                if verbose: print("vcc across blocks:", vcc, "->", t)
        if mn.startswith("s_") and not mn.startswith(NO_SCC): scc = x
        if mn.startswith("v_cmp") and " vcc," in t: vcc = x

def expand(ins):
    out = []
    for x in ins:
        if "\n" in x.t:
            e = L(x.t, x.tag, x.maybe, glue=False)
            if x.gid:
                for y in e: y.gid = x.gid
            out += e
        else: out.append(x)
    return out

def finish(ins, tail=(), align=True):
    ins = expand(ins); tail = expand(tail)
    check_flags(ins + tail, bool(__import__("os").environ.get("KBV")))
    assert not any(x.t.startswith("@") for x in tail)
    ins = resolve_waits(ins) + list(tail)
    ins = pad_hazards(ins)
    if align: ins = align8(ins)
    return "\n".join((x.t if x.t.endswith(":") else "    " + x.t) for x in ins) + "\n"

def weave(main, fill, per=None, start=0):
    out = []; n = len(main); m = len(fill); j = 0
    for i, x in enumerate(main):
        out.append(x)
        if per is None: tgt = (i + 1) * m // n
        else: tgt = m if i == n - 1 else min(m, max(0, (i + 1 - start)) * per)
        while j < tgt:
            out.append(fill[j]); j += 1
    return out

def zip2(a, b):
    out = []
    for i in range(max(len(a), len(b))):
        if i < len(a): out.append(a[i])
        if i < len(b): out.append(b[i])
    return out

def est(x, state):
    for l in x.t.split("\n"):
        l = l.strip()
        if not l or l.endswith(":") or l.startswith(("@mark", ".")): continue
        m = l.split()[0]
        t, mf, vd = state
        if m.startswith("v_mfma"): t = max(t, mf); mf = t + 16; t += 8
        elif m.startswith("v_pk_"): t = max(t, mf + 8) + 4; vd = t + 8
        elif m.replace("_e64", "").replace("_e32", "") in TRANS or "swap" in m: t += 8; vd = t + 8
        elif m.startswith("v_"): t += 4; vd = t + 8
        elif m == "s_nop": t += 4 * (int(l.split()[1]) + 1)
        elif m == "s_barrier": t += 20
        elif m.startswith(("ds_", "buffer_", "global_")):
            t = max(t, vd) + (20 if m == "ds_write_b128" else 12 if m.startswith("ds_write") else 12 if "store_dwordx4" in m else 4)
        else: t += 4
        state[0], state[1], state[2] = t, mf, vd

def mark(name): return I(f"@mark {name}")

def pace(main, queue, gap):
    out = []; st = [0, 0, 0]; free = 0; seen = set(); q = list(queue)
    isv = lambda x: x.t.startswith(("buffer_", "global_"))
    for x in main:
        if x.t.startswith("@mark"): seen.add(x.t); continue
        out.append(x); est(x, st)
        if isv(x): free = max(free, st[0]) + gap
        while q:
            if isinstance(q[0], tuple): gap = q.pop(0)[1]; continue
            if isinstance(q[0], I):
                if q[0].t in seen: q.pop(0); continue
                break
            if st[0] < free: break
            g = q.pop(0); free = st[0] + gap * sum(map(isv, g))
            for y in g: out.append(y); est(y, st)
            break
    for y in q:
        if isinstance(y, list): out += y
        elif isinstance(y, I): assert y.t in seen, y.t
    return out
```

```python
import sys, os
sys.path.insert(0, os.path.dirname(os.path.abspath(__file__)))
from kb import *
from asmlib import build_file

KNAME = "gated_mix__spectral_gfnet__ssm_conv_s5__prompt_kernel"
MF = "v_mfma_f32_16x16x32_bf16"
HASH_A, HASH_B = 0x9E3779B1, 0x7F4A7C15
SPIN = 200000
ZS = 32768
YS = 16384
WS_Z = 0
WS_W256 = 0
WS_Y = 9 << 20
WS_COMB = 13 << 20
WS_PART = 17 << 20
WS_AGG = 21 << 20
WS_OMG = WS_AGG + (256 << 10)
WS_FL1 = WS_OMG + (64 << 10)
WS_FL2 = WS_FL1 + 16384
WS_FL3 = WS_FL2 + 32768
WS_FL4 = WS_FL3 + 16384
WS_FL5 = WS_FL4 + 16384
WS_NONCE = WS_FL5 + 16384
WS_STAMP = 22 << 20
WS_HDBG = 24 << 20
WS_SIZE = 32 << 20
LOG2E = 1.4426950408889634

def srd(d, lo, size):
    return L(f"s_mov_b64 s[{d}:{d+1}], s[{lo}:{lo+1}]\n s_mov_b32 s{d+2}, {size}\n s_mov_b32 s{d+3}, 0x00020000")

def pk(op, d, a, b, c=None, sel=None, neg=None):
    srcs = [a, b] + ([c] if c is not None else [])
    txt = [x if isinstance(x, str) else vr(x, 2) for x in srcs]
    n = len(srcs); sel = sel or "p" * n; neg = neg or [0] * n
    lo = [1 if k == "h" else 0 for k in sel]; hi = [0 if k == "l" else 1 for k in sel]
    f = lambda v: "[" + ",".join(map(str, v)) + "]"
    t = f"v_pk_{op}_f32 {vr(d,2)}, " + ", ".join(txt)
    if any(lo): t += f" op_sel:{f(lo)}"
    if not all(hi): t += f" op_sel_hi:{f(hi)}"
    if any(neg): t += f" neg_lo:{f(neg)} neg_hi:{f(neg)}"
    return I(t)

def cmul1(dr, di, ar_, ai, br, bi, cr=None, ci=None):
    if cr is None:
        return L(f"v_mul_f32 v{dr}, v{ar_}, v{br}\n v_mul_f32 v{di}, v{ar_}, v{bi}\n v_fma_f32 v{dr}, -v{ai}, v{bi}, v{dr}\n v_fma_f32 v{di}, v{ai}, v{br}, v{di}")
    return L(f"v_fma_f32 v{dr}, v{ar_}, v{br}, v{cr}\n v_fma_f32 v{di}, v{ar_}, v{bi}, v{ci}\n v_fma_f32 v{dr}, -v{ai}, v{bi}, v{dr}\n v_fma_f32 v{di}, v{ai}, v{br}, v{di}")

def twid(re, im, cs, sn, tr, ti, sel="p", sel2=None):
    s2 = sel2 or sel
    return [pk("mul", tr, re, cs, sel="p" + sel), pk("mul", ti, im, cs, sel="p" + sel),
            pk("fma", tr, im, sn, tr, sel="p" + s2 + "p"), pk("fma", ti, re, sn, ti, sel="p" + s2 + "p", neg=[1, 0, 0])]

def angles(step, base, ks, an, cs, sn):
    r = []
    for k, a in zip(ks, an): r += L(f"v_fmamk_f32 v{a}, v{step}, {fbits(k)}, v{base}")
    for a, c in zip(an, cs): r += L(f"v_cos_f32 v{c}, v{a}")
    for a, s in zip(an, sn): r += L(f"v_sin_f32 v{s}, v{a}")
    return r

class Stamps:
    def __init__(self, on, reg, only=None): self.on = on; self.reg = reg; self.names = []; self.only = only
    def _s(self, name, op):
        if not self.on: return []
        if self.only and not (name.startswith(self.only) or name in ("rt0", "rt1")): return []
        if not self.only and name.startswith("@"): return []
        n = len(self.names); self.names.append(name); assert n < 64
        return L(f"{op} s[64:65]", tag="stamp") + [W("lg", "*")] + L(f"v_writelane_b32 v{self.reg}, s64, {n}")
    def __call__(self, name): return self._s(name, "s_memrealtime" if self.on == 2 else "s_memtime")
    def real(self, name): return self._s(name, "s_memrealtime")

def scout(ng, lead):
    T = []; nb = 16 // ng
    for g in range(ng):
        o = [g]
        for b in range(nb):
            hits = [ng * b + (g + k) % ng for k in range(1, ng)]
            if b + 1 < nb: hits.insert(min(len(hits), lead(g)), ng * (b + 1) + g)
            o += hits
        T.append(o)
    return T

def spread(main, *streams):
    n = len(main); out = []; st = []
    for s in streams:
        if isinstance(s, tuple): st.append([s[0], min(s[1], n - 1), min(s[2], n - 1), 0])
        else: st.append([s, 0, n - 1, 0])
    for g, x in enumerate(main):
        out.append(x)
        for s in st:
            lst, a, b, j = s
            if g < a: continue
            tgt = len(lst) if g >= b else -(-(g - a + 1) * len(lst) // (b - a + 1))
            out += lst[j:tgt]; s[3] = max(j, tgt)
    return out

def take(lst, n):
    r = lst[:n]; del lst[:n]; return r

DEFAULTS = dict(xx=1, lead=0, zit=13, fl1=4, fl3=4, sig1=7, poll1=11, st0=1, stper=1, stm=1, stk=1, local=1, slp=2, wtit=1, nd0=10, ng0=150, pd1=0.0, pd1e=1.0,
                cps=1280, q0="gd.b0.w.rf.a0.p.d1", cpf=10, cpf2=16, d0first=0, d0e=110, prew=0, ckfl="nt", lfl="sc1", once="sc1_nt", stfl="sc1", yfl="sc1_nt", hfl="", outfl="",
                touchs="no", touchk="no", touchk2="no", q1="ag.c2.c0.k0.iv.lb.c3", q2="k1", gap=80, c13=0, c14=0, c15=1, ctw=1, cm0=1, cmd=0, ccm=2, cfx=0, ch=2, ch2=2, zpos=32, lbw="iv", lb0=30, slp2=0, pp2=3,
                a0=18, a1=3, a1n=9, poll3=15, chk3=20, ys=20, yw=25, ny=2, nr=28, cki="27_r_r_r_r_45_47_49", ckl=10, sig4=42, poll4=48, chk4=52, cun=61, sig5=46, poll5=52, chk5=56, npun=0)

def kernel(diag=False, hdbg=False, P=None):
    P = dict(DEFAULTS, **(P or {}))
    for k in ("once", "outfl", "lfl", "stfl", "yfl", "hfl"): P[k] = P[k].replace("_", " ")
    o = []
    vST = 31
    st = Stamps(diag, vST, P.get("only"))
    X, BS, WR, WI, WS, TMPS = 8, 12, 16, 20, 24, 28
    CS, OUT_ = 16, 28
    osr = f"s[{OUT_}:{OUT_+3}]"
    sPI, sSL = 4, 5
    vF = 24
    sC, sJ, sW, sT, sK, sM0 = 32, 33, 34, 35, 36, 37
    t0, t1, t2, t3 = 38, 39, 40, 41
    sCT = 42
    sN, sKT = 62, 66
    u0, u1, u2, u3 = 68, 69, 70, 71
    sCK, sA, sA2, sCOMB = 72, 73, 74, 75
    f0, f1 = 76, 77
    sNT, sLBA, sHT, sHB, sXC, sPT, sE, sO = 92, 93, 94, 95, 96, 97, 98, 99
    sLOC, sFL2, sW16, sAH = 50, 51, 63, 6
    sNLOC = 7
    SCR = 131072
    HB = WS_HDBG if hdbg else WS_Z
    vL, vN, vQ, vL16 = 0, 1, 2, 3
    vDA, vDB, vRA, vRB, vRH = 16, 20, 24, 26, 148
    ACC = 32
    TWF, TWI = 96, 112
    LAM, COEF, L16, L32, L128, L32Q, L512Q = 128, 130, 132, 134, 136, 138, 140
    SA_R, SA_I, PFX = 142, 144, 146
    WU, WK = 152, 184
    aGC, aFR, aSV, aW2, aTW, aS, aAD = 0, 32, 112, 120, 136, 152, 170
    aF1, aFA, aNA, aF2 = 224, 232, 240, 248
    acc = lambda tau, part: ACC + (tau * 2 + part) * 4
    wsr = f"s[{WS}:{WS+3}]"
    vONE = 30

    def signal(addr_sreg, lg=6):
        if lg == 6: return L(f"v_mov_b32 v28, s{sT}") + L(f"buffer_store_dword v28, v{vONE}, {wsr}, s{addr_sreg} offen sc1", tag="fl")
        return L(f"v_mov_b32 v28, s{sT}\n v_and_b32 v255, {0x40000000 | ((1 << lg) - 1)}, v{vONE}") + L(f"buffer_store_dword v28, v255, {wsr}, s{addr_sreg} offen sc1", tag="fl")

    def poll_check(name, reg, sexp, load, slp=None):
        r = L(f"v_cmp_ne_u32 vcc, s{sexp}, v{reg}\n s_cbranch_vccnz {name}\n {name}_OK:")
        tail.extend(L(f"""
        {name}:
        s_mov_b32 s{u3}, 0
        {name}_L:
        s_sleep {P['slp'] if slp is None else slp}
        {load}
        s_add_u32 s{u3}, s{u3}, 1
        s_waitcnt vmcnt(0)
        v_cmp_ne_u32 vcc, s{sexp}, v{reg}
        s_cbranch_vccz {name}_OK
        s_cmp_lt_u32 s{u3}, {SPIN}
        s_cbranch_scc1 {name}_L
        s_branch {name}_OK
        """))
        return r
    tail = []

    if diag: o += L("s_memrealtime s[100:101]", tag="stamp")
    o += L(f"s_load_dwordx2 s[{X}:{X+1}], s[0:1], 0\n s_load_dwordx2 s[60:61], s[0:1], 120", tag="ka")
    o += L(f"""
    s_cmp_ge_u32 s2, 256
    s_cbranch_scc1 K_END
    s_getpc_b64 s[{TMPS}:{TMPS+1}]
    K_PC:
    s_mov_b32 s{TMPS+2}, K_CODE_END-K_PC
    s_mov_b32 s{TMPS+3}, 0x00020000
    s_lshr_b32 s{t0}, s2, 3
    s_mul_i32 s{t0}, s{t0}, {P["cps"]}
    v_lshl_add_u32 v4, v0, 3, s{t0}
    v_lshrrev_b32 v3, 6, v0
    """)
    o += L(f"buffer_load_dword v255, v4, s[{TMPS}:{TMPS+3}], 0 offen", tag="pf")
    o += L("""
    s_load_dwordx8 s[52:59], s[0:1], 32
    s_load_dwordx4 s[44:47], s[0:1], 8
    s_load_dwordx8 s[80:87], s[0:1], 64
    s_load_dwordx4 s[88:91], s[0:1], 96
    """, tag="ka")
    o += L(f"""
    v_readfirstlane_b32 s{sW}, v3
    v_and_b32 v{vN}, 15, v0
    v_bfe_u32 v{vQ}, v0, 4, 2
    s_and_b32 s{t0}, s2, 3
    s_bfe_u32 s{t1}, s2, 0x20003
    s_lshl2_add_u32 s{sC}, s{t0}, s{t1}
    s_bfe_u32 s{t0}, s2, 0x10002
    s_lshr_b32 s{t1}, s2, 5
    s_lshl3_add_u32 s{sJ}, s{t0}, s{t1}
    s_and_b32 s{sAH}, s{sW}, 1
    s_lshr_b32 s{t3}, s{sW}, 1
    s_lshl1_add_u32 s{t0}, s{sC}, s{sAH}
    s_lshl_b32 s{t0}, s{t0}, 5
    s_add_u32 s{t0}, s{t0}, s{sJ}
    s_lshl1_add_u32 s{u0}, s{t0}, s{t3}
    s_lshl_b32 s{u0}, s{u0}, 11
    s_add_u32 s{u1}, s{u0}, 65536
    v_lshlrev_b32 v5, 9, v{vQ}
    v_lshl_add_u32 v29, v{vN}, 3, v5
    s_mov_b32 s{X+2}, 0x400000
    s_mov_b32 s{X+3}, s{TMPS+3}
    """)
    o += [W("lg", "ka")]
    if diag:
        st.names.append("rt0"); o += L(f"v_writelane_b32 v{vST}, s100, 0") + st("ka")
    pr2 = L(f"""
    v_cmp_gt_u32 vcc, 16, v0
    v_lshlrev_b32 v{vONE}, 2, v0
    s_lshl4_add_u32 s{sPI}, s{sC}, s{sJ}
    s_lshl_b32 s{sM0}, s{sW}, 12
    v_cndmask_b32 v{vONE}, 2.0, v{vONE}, vcc
    v_and_b32 v{vL}, 63, v0
    v_lshlrev_b32 v{vL16}, 4, v{vL}
    s_lshl_b32 s{sW16}, s{sW}, 4
    s_lshl2_add_u32 s{sHT}, s{sAH}, s{t3}
    v_and_b32 v6, 7, v{vL}
    v_xor_b32 v6, v6, v{vQ}
    v_lshlrev_b32 v6, 4, v6
    v_and_b32 v8, 32, v{vL}
    v_bfe_u32 v9, v{vL}, 3, 1
    v_lshl_add_u32 v8, v9, 4, v8
    v_bfe_u32 v9, v{vL}, 4, 1
    s_lshl_b32 s{t0}, s{sC}, 5
    s_add_u32 s{t0}, s{t0}, s{sW}
    s_lshl_b32 s{t0}, s{t0}, 2
    v_add3_u32 v8, v8, v9, s{t0}
    v_lshl_add_u32 v{vDA}, v8, 11, v6
    v_lshrrev_b32 v9, 3, v{vL}
    s_lshl1_add_u32 s{t0}, s{sJ}, s{sAH}
    s_lshl_b32 s{t0}, s{t0}, 5
    v_add_u32 v9, s{t0}, v9
    v_lshl_add_u32 v{vDB}, v9, 11, v6
    v_xor_b32 v8, 64, v{vDA}
    v_xor_b32 v9, 64, v{vDB}
    v_add_u32 v{vDA+1}, {64*2048 - 1024}, v8
    v_add_u32 v{vDA+2}, {2*2048 - 2048}, v{vDA}
    v_add_u32 v{vDA+3}, {66*2048 - 3072}, v8
    v_add_u32 v{vDB+1}, {8*2048 - 1024}, v9
    v_add_u32 v{vDB+2}, {16*2048 - 2048}, v{vDB}
    v_add_u32 v{vDB+3}, {24*2048 - 3072}, v9
    s_add_u32 s{t0}, s{sC}, s{sJ}
    s_and_b32 s{t0}, s{t0}, 3
    """)
    for g, t in enumerate(scout(4, [lambda g: g, lambda g: 3, lambda g: 0, lambda g: 2*(g&1), lambda g: 1 + (g >> 1), lambda g: 2 + (g >> 1)][P['lead']])):
        lo = sum(t[k] << (4 * k) for k in range(8)); hi = sum(t[8 + k] << (4 * k) for k in range(8))
        if g == 0: pr2 += L(f"s_mov_b32 s{sKT}, {lo}\n s_mov_b32 s{sKT+1}, {hi}")
        else: pr2 += L(f"s_cmp_eq_u32 s{t0}, {g}\n s_cselect_b32 s{sKT}, {lo}, s{sKT}\n s_cselect_b32 s{sKT+1}, {hi}, s{sKT+1}")
    if P["xx"]:
        pr2 += L(f"s_and_b32 s{t0}, s2, 3\n s_mul_i32 s{t0}, s{t0}, 0x44444444\n s_xor_b32 s{sKT}, s{sKT}, s{t0}\n s_xor_b32 s{sKT+1}, s{sKT+1}, s{t0}")
    pr2 += L(f"s_mov_b32 s{BS+2}, 0x200000\n s_mov_b32 s{BS+3}, s{TMPS+3}")
    XL, GW, DK, PAR = 96, 112, 120, 142
    xld = []
    for e in range(2):
        for r in range(4):
            xld += L(f"buffer_load_dwordx2 {vr(XL+(e*4+r)*2,2)}, v29, s[{X}:{X+3}], s{u0+e} offen offset:{128*r}", tag=f"x{e}")
    xr = lambda e, tau: XL + e*8 + tau*4
    def dma(stage):
        slot = stage % 4
        r = L(f"s_bfe_u32 s{sK}, s{sKT + (stage >> 3)}, {0x40000 | (4 * (stage & 7))}\n s_add_u32 m0, s{sM0}, {slot*32768}\n s_lshl_b32 s{sK}, s{sK}, 7")
        for jj in range(4):
            r += L(f"buffer_load_dwordx4 v{vDA+jj}, s[{X}:{X+3}], s{sK} offen offset:{1024*jj} lds", tag=f"d{stage}")
        r += L(f"s_add_u32 m0, s{sM0}, {slot*32768 + 16384}")
        for jj in range(4):
            r += L(f"buffer_load_dwordx4 v{vDB+jj}, s[{BS}:{BS+3}], s{sK} offen offset:{1024*jj} lds", tag=f"d{stage}")
        return r
    GD = SCR + 16640
    pre = L(f"""
    s_cmp_lt_u32 s{sW}, 2
    s_cselect_b64 s[{BS}:{BS+1}], s[56:57], s[58:59]
    s_cselect_b64 s[{TMPS}:{TMPS+1}], s[88:89], s[86:87]
    s_mov_b32 s{TMPS+2}, 2048
    s_lshl_b32 s{t1}, s{sW}, 10
    s_add_u32 m0, s{t1}, {GD}
    s_lshl_b32 s{t0}, s{sAH}, 10
    """) + L(f"buffer_load_dwordx4 v{vL16}, s[{TMPS}:{TMPS+3}], s{t0} offen lds", tag="gd")
    non = L(f"s_add_u32 s{t2}, s60, {WS_NONCE}\n s_addc_u32 s{t3}, s61, 0") + L(f"s_load_dword s{sN}, s[{t2}:{t3}], 0", tag="nonce")
    parl = L(f"s_lshl2_add_u32 s3, s{sJ}, s{sW}\n s_lshl_b32 s3, s3, 4\n v_add_lshl_u32 v145, v{vN}, s3, 1\n s_nop 0")
    parl += L(f"global_load_ushort v{PAR}, v145, s[52:53]\n global_load_ushort v{PAR+1}, v145, s[54:55]\n global_load_ushort v{PAR+2}, v145, s[84:85]", tag="par")
    D0 = dma(0)
    D0B = [D0[0], D0[7], D0[2]] + D0[8:]; D0A = [D0[1], I("s_nop 0")] + D0[3:7]
    TWR = 232
    fn, fq4 = 249, 250
    A4, C4, S4 = [4, 5, 6, 7], [8, 9, 10, 11], [12, 13, 14, 15]
    def frag(dst_re, dst_im, neg=False, mask=None, dst2=None):
        r = []
        for k in range(4):
            c, s = C4[k], S4[k]
            if neg: r += L(f"v_cvt_pk_bf16_f32 v{A4[0]}, -v{c}, -v{s}\n v_cvt_pk_bf16_f32 v{A4[1]}, v{s}, -v{c}")
            else: r += L(f"v_cvt_pk_bf16_f32 v{A4[0]}, v{c}, v{s}\n v_cvt_pk_bf16_f32 v{A4[1]}, -v{s}, v{c}")
            r += L(f"v_accvgpr_write_b32 a{dst_re+k}, v{A4[0]}\n v_accvgpr_write_b32 a{dst_im+k}, v{A4[1]}")
            if mask is not None:
                r += L(f"v_xor_b32 v{A4[0]}, v{mask}, v{A4[0]}\n v_xor_b32 v{A4[1]}, v{mask}, v{A4[1]}\n v_accvgpr_write_b32 a{dst2+k}, v{A4[0]}\n v_accvgpr_write_b32 a{dst2+4+k}, v{A4[1]}")
        return r
    sp_, bs_ = 251, 248
    k0 = L(f"v_cvt_f32_u32 v{fn}, v{vN}\n v_cvt_f32_u32 v{fq4}, v{vQ}\n v_mul_f32 v{sp_}, {fbits(1/16)}, v{fn}\n v_mul_f32 v{fq4}, 4.0, v{fq4}\n v_mul_f32 v{bs_}, v{fq4}, v{sp_}")
    k0 += angles(sp_, bs_, [0, 1, 2, 3], A4, C4, S4) + frag(aF1, aF1 + 4)
    k0 += angles(sp_, bs_, [0.5, 1.5, 2.5, 3.5], A4, C4, S4) + frag(aF2, aF2 + 4)
    k0 += L(f"v_mul_f32 v{sp_}, {fbits(1/16)}, v{sp_}\n v_mul_f32 v{bs_}, {fbits(1/16)}, v{bs_}")
    for tau in range(2):
        k0 += angles(sp_, bs_, [i + 0.5*tau for i in range(4)], A4, [TWR + tau*4 + i for i in range(4)], [TWR + 8 + tau*4 + i for i in range(4)])
    k0 += srd(WS, 60, WS_SIZE)
    k0 += L(f"""
    v_lshrrev_b32 v15, 1, v{vN}
    v_xor_b32 v15, v15, v{vQ}
    v_lshlrev_b32 v15, 4, v15
    v_lshl_add_u32 v{vRA}, v{vN}, 7, v15
    v_xor_b32 v{vRA+1}, 64, v{vRA}
    s_lshl_b32 s{f0}, s{sW}, 11
    s_add_u32 s{f0}, s{f0}, 16384
    v_add_u32 v{vRB}, s{f0}, v{vRA}
    v_add_u32 v{vRB+1}, s{f0}, v{vRA+1}
    v_add_u32 v{vRH}, 0x10000, v{vRA}
    v_add_u32 v{vRH+1}, 0x10000, v{vRA+1}
    v_add_u32 v{vRH+2}, 0x10000, v{vRB}
    v_add_u32 v{vRH+3}, 0x10000, v{vRB+1}
    s_and_b32 s{f0}, s{sW}, 2
    s_lshl1_add_u32 s{f0}, s{f0}, s{sAH}
    s_mul_i32 s{f0}, s{f0}, 2080
    s_add_u32 s{f0}, s{f0}, {SCR}
    v_lshl_add_u32 v15, v{vQ}, 6, v{vN}
    v_lshl_add_u32 v252, v15, 3, s{f0}
    v_sub_u32 v15, {208 + 2*2080//8}, v15
    v_lshl_add_u32 v253, v15, 3, s{f0}
    v_lshrrev_b32 v7, 2, v{vL}
    v_add_u32 v7, s{sW16}, v7
    v_and_b32 v15, 3, v{vL}
    v_lshlrev_b32 v12, 4, v15
    v_mul_u32_u24 v229, 4160, v15
    v_lshl_add_u32 v229, v7, 3, v229
    v_add_u32 v229, {SCR}, v229
    v_lshrrev_b32 v14, 2, v{vL}
    v_lshl_add_u32 v230, v14, 8, v12
    v_and_b32 v14, 3, v14
    v_lshl_add_u32 v231, v14, 10, v12
    v_lshl_add_u32 v231, v{vQ}, 19, v231
    v_and_b32 v15, 1, v15
    v_lshlrev_b32 v15, 11, v15
    v_cmp_eq_u32 vcc, 0, v7
    v_add_u32 v254, {GD}, v29
    v_cndmask_b32 v15, 0, v15, vcc
    v_add_u32 v228, v229, v15
    """)
    G = []
    for k in range(4): G += L(f"v_accvgpr_write_b32 a{aTW+k}, v{TWR+k}\n v_accvgpr_write_b32 a{aTW+8+k}, v{TWR+8+k}")
    for k, r in enumerate((252, 253, 228, 229)): G += L(f"v_accvgpr_write_b32 a{aAD+k}, v{r}")
    G += L(f"v_fma_f32 v{sp_}, v{fn}, 2.0, 1.0\n v_mul_f32 v{sp_}, {fbits(1/32)}, v{sp_}\n v_mul_f32 v{bs_}, v{fq4}, v{sp_}")
    G += angles(sp_, bs_, [0, 1, 2, 3], A4, C4, S4) + frag(aFA, aFA + 4) + frag(aNA, aNA + 4, neg=True)
    G += L(f"v_mul_f32 v{sp_}, {fbits(1/16)}, v{sp_}\n v_mul_f32 v{bs_}, {fbits(1/16)}, v{bs_}")
    G += angles(sp_, bs_, [0, 1, 2, 3], A4, C4, S4)
    for k in range(4): G += L(f"v_accvgpr_write_b32 a{aTW+4+k}, v{C4[k]}\n v_accvgpr_write_b32 a{aTW+12+k}, v{S4[k]}")
    gc = lambda sg, part: aGC + (sg * 2 + part) * 4
    G += L(f"""
    v_add_u32 v{sp_}, s{sW16}, v{vN}
    v_cvt_f32_u32 v{sp_}, v{sp_}
    v_and_b32 v147, 1, v{vN}
    v_mul_f32 v{sp_}, {fbits(1/64)}, v{sp_}
    v_mul_u32_u24 v147, 0x8000, v147
    v_mul_f32 v{bs_}, v{fq4}, v{sp_}
    v_lshl_or_b32 v147, v147, 16, v147
    """)
    for sg in range(2):
        G += angles(sp_, bs_, [16*sg + r for r in range(4)], A4, C4, S4) + frag(gc(sg, 0), gc(sg, 1), mask=147, dst2=gc(sg + 2, 0))
    k0 += take(G, P["ng0"])
    o += xld[:2] + spread(pr2, (xld[2:], 0, 40)) + st("start")
    WRAW, WA = 196, 192
    sWR = 44
    wad = srd(WR, 44, 2048 * 1026) + srd(WI, 46, 2048 * 1026)
    wad += L(f"""
    s_lshr_b32 s{t0}, s2, 6
    s_and_b32 s{t1}, s2, 3
    s_lshl2_add_u32 s{t0}, s{t0}, s{t1}
    s_lshl2_add_u32 s{t0}, s{t0}, s{sW}
    s_bfe_u32 s{t1}, s2, 0x10005
    s_bfe_u32 s{t2}, s2, 0x20002
    s_lshl2_add_u32 s{t1}, s{t1}, s{t2}
    s_bfe_u32 s{t2}, s2, 0x10004
    s_lshl1_add_u32 s{t1}, s{t1}, s{t2}
    s_lshl_b32 s{t1}, s{t1}, 7
    s_add_u32 s{t0}, s{t0}, s{t1}
    s_mul_i32 s{sWR}, s{t0}, 1026
    s_andn2_b32 s{sWR}, s{sWR}, 3
    s_add_u32 s{sWR+1}, s{sWR}, {64*1026}
    s_sub_u32 s{t0}, 2048, s{t0}
    s_and_b32 s{t1}, s{t0}, 2047
    s_mul_i32 s{t1}, s{t1}, 1026
    s_add_u32 s{t1}, s{t1}, {1018 - 504}
    s_andn2_b32 s{sWR+2}, s{t1}, 3
    s_mul_i32 s{t1}, s{t0}, 1026
    s_sub_u32 s{t1}, s{t1}, {64*1026 - 1018 + 504}
    s_andn2_b32 s{sWR+3}, s{t1}, 3
    v_lshlrev_b32 v{WA}, 3, v{vL}
    v_sub_u32 v{WA+1}, 504, v{WA}
    """)
    wad2 = L(f"""
    s_lshl_b32 s{t0}, s{sW}, 2
    v_add_u32 v184, s{t0}, v{vN}
    v_and_b32 v184, 15, v184
    v_and_or_b32 v184, v{vL}, 48, v184
    s_lshl_b32 s{t0}, s{sW}, 10
    s_add_u32 s{t0}, s{t0}, {SCR}
    v_lshl_add_u32 v{WA+2}, v184, 4, s{t0}
    v_lshrrev_b32 v185, 2, v{vL}
    v_and_b32 v186, 3, v{vL}
    v_lshl_add_u32 v184, v186, 2, v185
    v_and_b32 v184, 15, v184
    v_lshl_add_u32 v184, v186, 6, v184
    s_lshl_b32 s{t0}, s{sW}, 8
    s_add_u32 s{t0}, s{t0}, {SCR}
    v_lshl_add_u32 v{WA+3}, v184, 4, s{t0}
    s_mov_b64 s[{OUT_}:{OUT_+1}], s[90:91]
    s_mov_b32 s{OUT_+2}, 0x800000
    """)
    wl = []
    for ii in range(2):
        for up in range(2):
            wl.append(L(f"""
            buffer_load_dwordx3 {vr(WRAW + ii*16 + up*8, 3)}, v{WA+up}, s[{WR}:{WR+3}], s{sWR+2*up+ii} offen
            buffer_load_dwordx3 {vr(WRAW + ii*16 + up*8 + 4, 3)}, v{WA+up}, s[{WI}:{WI+3}], s{sWR+2*up+ii} offen
            """, tag="w"))
    p0 = len(o)
    o += L("s_nop 0") + k0[:40] + non + k0[40:] + wad + wad2
    o += st("consts")
    D1, TP, D2, OUT, T0 = ACC, 152, ACC + 32, 168, 184
    d1 = lambda e, tau, part: D1 + ((e*2 + tau)*2 + part)*4
    d2 = lambda e, tau, part: D2 + ((e*2 + tau)*2 + part)*4
    R = []
    for e in range(2):
        b = XL + e*8
        R += [W("vm", f"x{e}")] + L(f"v_swap_b32 v{b+1}, v{b+2}\n v_swap_b32 v{b+5}, v{b+6}\n v_swap_b32 v{b+2}, v{b+4}\n v_swap_b32 v{b+3}, v{b+5}")
    R += st("xwait")
    sal = L(f"""
    s_and_b32 s{t0}, s{sJ}, 3
    s_lshr_b32 s{t1}, s{sC}, 2
    s_lshl2_add_u32 s{t0}, s{t0}, s{t1}
    s_and_b32 s{t1}, s{sC}, 3
    s_lshl2_add_u32 s{t0}, s{t0}, s{t1}
    s_lshl_b32 s{t1}, s{sW}, 7
    s_add_u32 s{t0}, s{t0}, s{t1}
    s_lshl_b32 s{t0}, s{t0}, 6
    s_lshr_b32 s{t1}, s{sJ}, 2
    s_add_u32 s{t0}, s{t0}, s{t1}
    s_lshl_b32 s{u0}, s{t0}, 6
    s_lshr_b32 s{t1}, s{sW}, 1
    s_lshl1_add_u32 s{t0}, s{sJ}, s{t1}
    s_lshr_b32 s{t1}, s{t0}, 4
    s_lshl1_add_u32 s{t1}, s{t1}, s{sAH}
    s_lshl2_add_u32 s{t3}, s{sC}, s{t1}
    s_and_b32 s{t2}, s{t0}, 15
    s_lshl4_add_u32 s{t3}, s{t3}, s{t2}
    s_lshl_b32 s{t3}, s{t3}, 6
    s_add_u32 s{u1}, s{t3}, {WS_OMG}
    s_lshl_b32 s{t3}, s{sC}, 6
    s_add_u32 s{t1}, s{t1}, s{t3}
    s_and_b32 s{t2}, s{t0}, 3
    s_lshl2_add_u32 s{t1}, s{t1}, s{t2}
    s_bfe_u32 s{t2}, s{t0}, 0x20002
    s_lshl2_add_u32 s{t1}, s{t1}, s{t2}
    s_lshl_b32 s{t1}, s{t1}, 8
    s_add_u32 s{sCOMB}, s{t1}, {WS_COMB}
    s_getreg_b32 s{sXC}, hwreg(HW_REG_XCC_ID, 0, 4)
    s_and_b32 s{t0}, s2, 31
    s_lshl_b32 s{t0}, s{t0}, 10
    s_add_u32 s{sFL2}, s{t0}, {WS_FL2}
    s_and_b32 s{t0}, s2, 0xe0
    s_lshl2_add_u32 s{u2}, s{t0}, s{sFL2}
    """)
    m = []
    for e in range(2):
        for tau in range(2):
            for part in range(2):
                m += L(f"{MF} {vr(d1(e,tau,part),4)}, {vr(xr(e,tau),4)}, {ar(aF1+4*part,4)}, 0")
    R += [mark("x")] + spread(m, take(sal, 16)) + take(sal, 3)
    for e in range(2):
        for tau in range(2):
            for h in range(2):
                R += twid(d1(e,tau,0) + 2*h, d1(e,tau,1) + 2*h, TWR + tau*4 + 2*h, TWR + 8 + tau*4 + 2*h, T0 + 4*h, T0 + 4*h + 2)
            for i in range(4):
                R += L(f"v_cvt_pk_bf16_f32 v{TP+(e*2+tau)*4+i}, v{T0+4*(i>>1)+(i&1)}, v{T0+4*(i>>1)+2+(i&1)}")
    m = []
    for e in range(2):
        for tau in range(2):
            for part in range(2):
                m += L(f"{MF} {vr(d2(e,tau,part),4)}, {ar((aF2 if tau else aF1)+4*part,4)}, {vr(TP+(e*2+tau)*4,4)}, 0")
    R += spread(m, sal)
    for e in range(2):
        for part in range(2):
            for h in range(2):
                E, O = d2(e,0,part) + 2*h, d2(e,1,part) + 2*h
                R += [pk("add", d1(e,0,part) + 2*h, E, O), pk("add", d1(e,1,part) + 2*h, E, O, neg=[0,1])]
    for mu in range(2):
        for i in range(4):
            for e in range(2):
                R += L(f"v_cvt_pk_bf16_f32 v{OUT+(mu*4+i)*2+e}, v{d1(e,mu,0)+i}, {'-' if mu else ''}v{d1(e,mu,1)+i}")
            R += L(f"ds_write_b64 v{252+mu}, {vr(OUT+(mu*4+i)*2,2)} offset:{128*(i if mu == 0 else 3-i)}", tag="rfw")
    XU, DU = 64, 32
    xu = lambda e, tp, part: XU + ((e*2 + tp)*2 + part)*4
    du = lambda tp, part: DU + (tp*2 + part)*4
    for e in range(2):
        for tp in range(2):
            for i in range(4):
                R += L(f"v_lshlrev_b32 v{xu(e,tp,0)+i}, 16, v{xr(e,tp)+i}\n v_and_b32 v{xu(e,tp,1)+i}, 0xffff0000, v{xr(e,tp)+i}")
    R += [W("lg", "*"), W("vm", "gd")] + L("s_barrier")
    for i in range(4): R += L(f"ds_read_b64 {vr(GW+2*i,2)}, v254 offset:{128*i}", tag="gw")
    for i in range(4): R += L(f"ds_read_b64 {vr(DK+2*i,2)}, v254 offset:{2048+128*i}", tag="dk")
    ZO = 232
    for rho in range(4):
        for h in range(2):
            R += L(f"ds_read_b64 {vr(ZO+rho*4+2*h,2)}, v{228 if rho == 0 else 229} offset:{h*2080 + rho*512}", tag=f"rfr{rho}")
    R += L(f"""
    s_mul_i32 s{sT}, s{sN}, {HASH_A}
    s_add_u32 s{sT}, s{sT}, {HASH_B}
    s_cmp_eq_u32 s{sW}, 0
    s_cselect_b32 s{sE}, s{sT}, 0
    s_cselect_b32 s{sO}, 0, 2.0
    """)
    nrf = len(R)
    zst = []
    for rho in range(4):
        zst += L(f"buffer_store_dwordx4 {vr(ZO+rho*4,4)}, v230, {osr}, s{u0} offen sc1", tag="st1")
        if rho < 3: zst += L(f"s_add_u32 s{u0}, s{u0}, {4 << 19}")
    xst = L(f"v_mov_b32 v28, s{sXC}") + L(f"buffer_store_dword v28, v{vONE}, {wsr}, s{u2} offen sc1", tag="st1")
    if P["prew"]:
        zst += L(f"""
        s_lshl_b32 s{u1}, s{sPI}, 6
        s_add_u32 s{u1}, s{u1}, {WS_FL4}
        s_not_b32 s{u3}, s{sT}
        v_mov_b32 v28, s{u3}
        """) + L(f"buffer_store_dword v28, v{vONE}, {wsr}, s{u1} offen sc1", tag="st1") + L(f"s_add_u32 s{u1}, s{u1}, 16384") + L(f"buffer_store_dword v28, v{vONE}, {wsr}, s{u1} offen sc1", tag="st1")
        zst += L(f"s_lshl4_add_u32 s{u1}, s2, {WS_FL3}") + L(f"buffer_store_dword v28, v{vONE}, {wsr}, s{u1} offen sc1", tag="st1")
    g0, g1_, g2_, g3_ = 184, 185, 252, 253
    gt = [W("lg", "gw")]
    for k in range(8):
        for e in range(2):
            gt += L(f"v_dot2_f32_bf16 v{g0+e}, v{xr(e,k&1)+(k>>1)}, v{GW+k}, {'0' if k == 0 else 'v%d' % (g0+e)}")
    unp = [W("lg", "dk")]
    for i in range(4):
        for tp in range(2):
            unp += L(f"v_lshlrev_b32 v{du(tp,0)+i}, 16, v{DK+2*i+tp}\n v_and_b32 v{du(tp,1)+i}, 0xffff0000, v{DK+2*i+tp}")
    for e in range(2):
        for tp in range(2):
            for part in range(2):
                for h in range(2):
                    unp.append(pk("mul", xu(e,tp,part)+2*h, xu(e,tp,part)+2*h, du(tp,part)+2*h))
    red = []
    for sh in ("row_ror:8", "row_ror:4", "row_ror:2", "row_ror:1"):
        for e in range(2):
            red += L(f"v_add_f32_dpp v{g0+e}, v{g0+e}, v{g0+e} {sh} row_mask:0xf bank_mask:0xf")
    red += L(f"""
    v_permlane32_swap_b32 v{g0}, v{g1_}
    v_add_f32 v{g0}, v{g0}, v{g1_}
    v_mov_b32 v{g1_}, v{g0}
    v_permlane16_swap_b32 v{g0}, v{g1_}
    v_add_f32 v{g0}, v{g0}, v{g1_}
    v_cvt_pk_bf16_f32 v{g0}, v{g0}, v{g0}
    v_lshlrev_b32 v{g0}, 16, v{g0}
    v_mul_f32 v{g0}, {fbits(-LOG2E)}, v{g0}
    v_exp_f32 v{g0}, v{g0}
    v_add_f32 v{g0}, 1.0, v{g0}
    v_rcp_f32 v{g0}, v{g0}
    v_cvt_pk_bf16_f32 v{g0}, v{g0}, v{g0}
    v_lshlrev_b32 v{g0}, 16, v{g0}
    v_sub_f32 v{g2_}, 1.0, v{g0}
    v_cvt_pk_bf16_f32 v{g2_}, v{g2_}, v{g2_}
    v_lshlrev_b32 v{g2_}, 16, v{g2_}
    v_mov_b32 v{g1_}, v{g0}
    v_mov_b32 v{g3_}, v{g2_}
    v_permlane32_swap_b32 v{g0}, v{g1_}
    v_permlane32_swap_b32 v{g2_}, v{g3_}
    v_cmp_gt_u32 vcc, 8, v{vL}
    v_lshlrev_b32 v254, 3, v{vL}
    v_accvgpr_write_b32 a{aS+16}, v{g0}
    v_accvgpr_write_b32 a{aS+17}, v{g1_}
    v_cndmask_b32 v254, 2.0, v254, vcc
    """)
    gt += spread(unp, (red, 2, len(unp) - 1))
    oms = L(f"buffer_store_dwordx2 {vr(g2_,2)}, v254, {wsr}, s{u1} offen sc1", tag="omst")
    for e in range(2):
        for tp in range(2):
            for part in range(2):
                for h in range(2):
                    gt.append(pk("mul", xu(e,tp,part)+2*h, xu(e,tp,part)+2*h, g2_, sel="p" + "lh"[e]))
            for i in range(4):
                gt += L(f"v_cvt_pk_bf16_f32 v{190+(i&1)}, v{xu(e,tp,0)+i}, v{xu(e,tp,1)+i}\n v_accvgpr_write_b32 a{aS+(e*2+tp)*4+i}, v{190+(i&1)}")
    R2 = gt + G
    n2 = len(R2)
    o += R + st("rf") + [mark("rf")] + R2
    def pq(spec):
        q = []
        for it in filter(None, spec.split(".")):
            if it == "gd": q.append(pre)
            elif it == "b0": q.append(D0B)
            elif it == "a0": q.append(D0A)
            elif it == "w": q += [mark("x")] + wl
            elif it == "p": q.append(parl)
            elif it[0] == "d": d = dma(int(it[1:])); q += [d[:7], d[7:]]; pdone.append(int(it[1:]))
            elif it[0] == "g": q.append(("gap", int(it[1:])))
            else: q.append(mark(it))
        return q
    pdone = [0]
    o[p0:] = pace(o[p0:], pq(P["q0"]), 64)
    o += [W("lg", "*")]
    o += st("gate")
    WO = WU
    wt = [W("vm", "w")]
    wt += L(f"s_mov_b32 s{f0}, 0x05040100\n s_mov_b32 s{f1}, 0x07060302\n s_lshl_b32 s{t0}, s{sAH}, 4\n s_xor_b32 s{t1}, s{t0}, 16")
    for ii in range(2):
        for k in range(4):
            b = WRAW + ii*16 + k*4; sh = t0 if k < 2 else t1
            wt += L(f"v_alignbit_b32 v{b}, v{b+1}, v{b}, s{sh}\n v_alignbit_b32 v{b+1}, v{b+2}, v{b+1}, s{sh}")
            if k < 2: wt += L(f"v_lshrrev_b32 v{b+2}, s{sh}, v{b+2}")
    for ii in range(2): wt += L(f"v_perm_b32 v{184+2*ii}, v{WRAW+ii*16+6}, v{WRAW+ii*16+2}, s{f0}")
    wt += L(f"ds_write_b128 v{WA+2}, v[184:187] offset:16384", tag="wtw")
    wtb = []
    for m_ in range(4):
        for ii in range(2):
            b = WRAW + ii*16; mm = 3 - m_
            wtb += L(f"v_perm_b32 v{WO+m_*4+ii*2}, v{b+4+(m_>>1)}, v{b+(m_>>1)}, s{f0+(m_&1)}")
            wtb += L(f"v_perm_b32 v{WO+m_*4+ii*2+1}, v{b+12+(mm>>1)}, v{b+8+(mm>>1)}, s{f0+(mm&1)}")
        wtb += L(f"ds_write_b128 v{WA+2}, {vr(WO+m_*4,4)} offset:{4096*m_}", tag="wtw")
    wt2 = L(f"ds_read_b128 v[184:187], v{WA+3} offset:16384", tag="wtr")
    wtb += L(f"v_bfe_u32 v189, v{vL}, 2, 2\n v_lshl_add_u32 v228, v189, 8, v231\n v_lshl_add_u32 v189, v189, 12, v{WA+3}")
    wtb += L(f"v_xor_b32 v190, 0x1000, v189\n v_xor_b32 v191, 0x2000, v189\n v_xor_b32 v{WA}, 0x3000, v189\n v_xor_b32 v229, 0x100, v228\n v_xor_b32 v231, 0x200, v228\n v_xor_b32 v{WA+1}, 0x300, v228")
    for m_ in range(4): wt2 += L(f"ds_read_b128 {vr(WO+16+m_*4,4)}, v{(189, 190, 191, WA)[m_]}", tag=f"wtr")
    wt2 += L(f"s_lshr_b32 s{t2}, s2, 2\n s_lshl_b32 s{t3}, s{sW}, 9\n s_add_u32 s{t2}, s{t2}, s{t3}\n s_add_u32 s{t2}, s{t2}, 64\n s_lshl_b32 s{t2}, s{t2}, 6\n s_and_b32 s{t3}, s2, 3\n s_add_u32 s{t2}, s{t2}, s{t3}\n s_lshl_b32 s{f0}, s{t2}, 6")
    wt2 += L(f"s_lshl_b32 s{t2}, s{sW}, 10\n v_add_u32 v188, s{t2}, v{vL16}\n v_subrev_u32 v188, {252*16}, v188\n v_min_u32 v188, 2.0, v188\n s_lshl_b32 s{f1}, s2, 6")
    wt3 = [W("lg", "wtr")] + L(f"buffer_store_dwordx4 v[184:187], v188, {wsr}, s{f1} offen sc1", tag="st1")
    for m_ in range(4):
        wt3 += [W("lg", "wtr")] + L(f"buffer_store_dwordx4 {vr(WO+16+m_*4,4)}, v{(228, 229, 231, WA+1)[m_]}, {osr}, s{f0} offen sc1", tag="st1")
    F = []
    F += L(f"s_and_b32 s{t0}, s{sC}, 3")
    for ci in range(4):
        tab = sum((0 if k == 0 else 1 + (k - 1 + 2*ci) % 7) << (4*k) for k in range(8))
        F += L(f"s_mov_b32 s{sPT}, {tab}") if ci == 0 else [I(f"s_cmp_eq_u32 s{t0}, {ci}\n    s_cselect_b32 s{sPT}, {tab}, s{sPT}")]
    F += L(f"""
    s_lshr_b32 s{t0}, s2, 5
    s_mul_i32 s{t0}, s{t0}, 0x11111111
    s_add_u32 s{sPT}, s{sPT}, s{t0}
    s_and_b32 s{sPT}, s{sPT}, 0x77777777
    s_lshl_b32 s{t0}, s{sJ}, 6
    s_add_u32 s{t0}, s{t0}, s{sW}
    s_lshl_b32 s{t0}, s{t0}, 8
    s_add_u32 s{sLBA}, s{t0}, {WS_AGG}
    s_lshl_b32 s{t0}, s{sC}, 11
    s_add_u32 s{t0}, s{t0}, s{sJ}
    s_lshl_b32 s{sSL}, s{t0}, 8
    s_lshl_b32 s{t0}, s{sHT}, 16
    s_andn2_b32 s{sHB}, s{sSL}, 0x700
    s_add_u32 s{sHB}, s{sHB}, s{t0}
    """)
    F += [I(f"s_cmp_lt_u32 s{sW}, 2\n    s_cselect_b64 s[{CS}:{CS+1}], s[80:81], s[82:83]")] + L(f"s_mov_b32 s{CS+2}, 0x200000")
    F += [W("vm", "par")]
    F += L(f"""
    v_lshlrev_b32 v{PAR+2}, 16, v{PAR+2}
    v_lshlrev_b32 v{PAR}, 16, v{PAR}
    v_mul_f32 v{PAR+2}, {fbits(LOG2E)}, v{PAR+2}
    v_exp_f32 v{PAR+2}, v{PAR+2}
    v_lshlrev_b32 v{PAR+1}, 16, v{PAR+1}
    v_cvt_pk_bf16_f32 v{PAR+2}, v{PAR+2}, v{PAR+2}
    v_lshlrev_b32 v{PAR+2}, 16, v{PAR+2}
    v_mul_f32 v14, v{PAR+2}, v{PAR}
    v_mul_f32 v4, v{PAR+2}, v{PAR+1}
    v_mul_f32 v14, {fbits(LOG2E)}, v14
    v_mul_f32 v4, {fbits(0.15915494309189535)}, v4
    v_exp_f32 v14, v14
    v_fract_f32 v4, v4
    v_cos_f32 v5, v4
    v_sin_f32 v6, v4
    v_mul_f32 v{LAM}, v14, v5
    v_mul_f32 v{LAM+1}, v14, v6
    v_mul_f32 v14, v{PAR}, v{PAR}
    v_fma_f32 v14, v{PAR+1}, v{PAR+1}, v14
    v_rcp_f32 v14, v14
    v_add_f32 v4, -1.0, v{LAM}
    v_add_f32 v14, v14, v14
    v_mul_f32 v5, v4, v{PAR}
    v_fma_f32 v5, v{LAM+1}, v{PAR+1}, v5
    v_mul_f32 v6, v{LAM+1}, v{PAR}
    v_fma_f32 v6, -v4, v{PAR+1}, v6
    v_mul_f32 v{COEF}, v5, v14
    v_mul_f32 v{COEF+1}, v6, v14
    """)
    def csq(d, s):
        return L(f"v_mul_f32 v{d}, v{s}, v{s}\n v_mul_f32_e64 v{d+1}, v{s}, v{s+1} mul:2\n v_fma_f32 v{d}, -v{s+1}, v{s+1}, v{d}") if P.get("omod") else \
               L(f"v_mul_f32 v{d}, v{s}, v{s}\n v_mul_f32 v{d+1}, v{s}, v{s+1}\n v_fma_f32 v{d}, -v{s+1}, v{s+1}, v{d}\n v_add_f32 v{d+1}, v{d+1}, v{d+1}")
    F += csq(4, LAM) + csq(6, 4) + csq(4, 6) + csq(L16, 4) + csq(L32, L16) + csq(8, L32) + csq(L128, 8) + csq(4, L128) + csq(10, 4) + csq(12, 10)
    F += L(f"""
    v_and_b32 v14, 1, v{vQ}
    v_cmp_eq_u32 s[78:79], 1, v14
    v_cndmask_b32 v4, 1.0, v{L32}, s[78:79]
    v_cndmask_b32 v5, 0, v{L32+1}, s[78:79]
    v_cndmask_b32 v10, 1.0, v10, s[78:79]
    v_cndmask_b32 v11, 0, v11, s[78:79]
    v_cmp_lt_u32 s[78:79], 1, v{vQ}
    v_cndmask_b32 v8, 1.0, v8, s[78:79]
    v_cndmask_b32 v9, 0, v9, s[78:79]
    v_cndmask_b32 v12, 1.0, v12, s[78:79]
    v_cndmask_b32 v13, 0, v13, s[78:79]
    """)
    F += cmul1(L32Q, L32Q+1, 4, 5, 8, 9) + cmul1(L512Q, L512Q+1, 10, 11, 12, 13)
    F += L(f"v_add_u32 v{sp_}, s{sW16}, v{vN}\n v_cvt_f32_u32 v{sp_}, v{sp_}\n v_mul_f32 v{sp_}, {fbits(1/1024)}, v{sp_}\n v_mul_f32 v{bs_}, v{fq4}, v{sp_}")
    for hh in range(2):
        ix = list(range(4*hh, 4*hh + 4))
        F += angles(sp_, bs_, [0.5*k for k in ix], A4, [TWF + 2*k for k in ix], [TWF + 2*k + 1 for k in ix])
    F += L(f"""
    v_cvt_f32_u32 v9, s{sPI}
    v_mul_f32 v9, {fbits(1/1024)}, v9
    v_sin_f32 v11, v9
    v_cos_f32 v10, v9
    v_add_f32 v11, 1.0, v11
    v_rcp_f32 v9, v11
    v_mul_f32 v15, {fbits(2.0**-21)}, v11
    v_mul_f32_e64 v10, -v10, v9
    v_cvt_f32_u32 v14, s{sW16}
    v_readfirstlane_b32 s{sCT}, v10
    v_add_f32 v14, v14, v{fq4}
    """)
    for tp in range(2):
        F += L(f"v_fma_f32 v{sp_}, v{fn}, 2.0, {'1.0' if tp else '0'}\n v_mul_f32 v{sp_}, {fbits(1/2048)}, v{sp_}\n v_mul_f32 v{bs_}, v14, v{sp_}")
        F += angles(sp_, bs_, [0, 1, 2, 3], A4, [TWI + tp*8 + i for i in range(4)], [TWI + tp*8 + 4 + i for i in range(4)])
        for i in range(8): F += L(f"v_mul_f32 v{TWI+tp*8+i}, v15, v{TWI+tp*8+i}")
    ZL, WL, PL = WK, WK + 16, WK + 32
    fra = lambda ks, tau: aFR + ks * 40 + tau * 4
    frb = lambda ks, part: aFR + ks * 40 + 32 + part * 4
    def reads(s, ks):
        slot = s % 4; base = (slot & 1) * 32768; r = []
        ra, rb = (vRA + ks, vRB + ks) if slot < 2 else (vRH + ks, vRH + 2 + ks)
        for part in range(2): r += L(f"ds_read_b128 {ar(frb(ks,part),4)}, v{rb} offset:{base + part*8192}", tag="fr")
        for tau in range(8): r += L(f"ds_read_b128 {ar(fra(ks,tau),4)}, v{ra} offset:{base + tau*2048}", tag="fr")
        return r
    def mfmas(ks, first=False):
        r = []
        for tau in range(8):
            for part in range(2):
                a_ = vr(acc(tau, part), 4)
                r += L(f"{MF} {a_}, {ar(fra(ks,tau),4)}, {ar(frb(ks,part),4)}, {'0' if first else a_}")
        return r
    ZIT, WTI = P["zit"], P["wtit"]
    pl1 = f"buffer_load_dword v{PL}, v{PL+1}, {wsr}, s{u0} offen sc1"
    vDC, vR2 = 16, 20
    g2a = L(f"""
    v_and_b32 v6, 7, v{vL}
    v_xor_b32 v6, v6, v{vQ}
    s_and_b32 s{t0}, s{sJ}, 8
    s_lshl_b32 s{t0}, s{t0}, 7
    v_lshl_add_u32 v6, v6, 4, s{t0}
    v_lshrrev_b32 v8, 3, v{vL}
    s_xor_b32 s{t0}, s{sJ}, 8
    s_lshl_b32 s{t0}, s{t0}, 5
    s_add_u32 s{t0}, s{t0}, s{sAH}
    s_lshl_b32 s{t0}, s{t0}, 1
    v_lshl_add_u32 v8, v8, 2, s{t0}
    v_lshl_add_u32 v{vDC}, v8, 11, v6
    v_xor_b32 v8, 64, v{vDC}
    v_add_u32 v{vDC+1}, {32*2048 - 1024}, v8
    v_mov_b32 v{vDC+2}, v{vDC}
    v_add_u32 v{vDC+3}, {33*2048 - 3072}, v8
    """)
    def cdma(k, tag, fl=""):
        r = L(f"s_bfe_u32 s{sCK}, s{sPT}, {0x40000 | (4*k)}\n s_add_u32 m0, s{sM0}, {k*16384}\n s_lshl_b32 s{sCK}, s{sCK}, 7")
        for jj in range(4):
            r += L(f"buffer_load_dwordx4 v{vDC+jj}, s[{CS}:{CS+3}], s{sCK} offen offset:{1024*jj} {fl} lds", tag=tag)
        return r
    CSEND = [cdma(k, f"cs{k}") for k in range(8)]
    sTC = 92
    g2a += L(f"""
    s_lshl1_add_u32 s{t2}, s{sJ}, s{sAH}
    s_lshl_b32 s{t2}, s{t2}, 6
    s_lshr_b32 s{t3}, s{sJ}, 3
    s_add_u32 s{t2}, s{t2}, s{t3}
    s_and_b32 s{t3}, s{sC}, 3
    s_lshl2_add_u32 s{t2}, s{t2}, s{t3}
    s_and_b32 s{t3}, s2, 1
    s_lshl1_add_u32 s{t2}, s{t2}, s{t3}
    s_lshl_b32 s{sTC}, s{t2}, 7
    v_lshrrev_b32 v29, 1, v{vL}
    v_lshlrev_b32 v29, 11, v29
    """)
    tk = lambda x: L(f"s_xor_b32 s{t2}, s{sTC}, {x}") + L(f"buffer_load_dword a223, v29, s[{CS}:{CS+3}], s{t2} offen", tag="tch")
    tch = lambda where: ((tk(0x100000) + tk(0x100080)) if P["touchs"] == where else []) + (tk(0) if P["touchk"] == where else []) + (tk(128) if P["touchk2"] == where else [])
    wu = lambda which, part, mu, i: WU + (which * 2 + part) * 8 + mu * 4 + i
    unp = [W("vm", "wl")]
    for io in range(4):
        for ii in range(2):
            for wh in range(2):
                raw = WL + io*4 + ii*2 + wh; mu, i = io >> 1, 2*(io & 1) + ii
                unp += L(f"v_lshlrev_b32 v{wu(wh,0,mu,i)}, 16, v{raw}\n v_and_b32 v{wu(wh,1,mu,i)}, 0xffff0000, v{raw}")
    unp += L(f"v_accvgpr_read_b32 v28, a222\n v_cmp_ne_u32 s[78:79], s{sXC}, v28") + [I(f"s_and_b32 s78, s78, 0x5555\n    s_cmp_eq_u32 s78, {0 if P['local'] else 2}\n    s_cselect_b32 s{sLOC}, 0, 2.0\n    s_cselect_b32 s{sNLOC}, 2.0, 0")]
    def code_pf(lab, sink):
        return [I(f"s_getpc_b64 s[{WI}:{WI+1}]\n{lab}:\n    s_mov_b32 s{WI+2}, K_CODE_END-{lab}")] + L(f"""
        s_bfe_u32 s3, s2, 0x20003
        s_lshl2_add_u32 s3, s3, s{sW}
        s_lshl_b32 s3, s3, 11
        v_lshl_add_u32 v28, v{vL}, 5, s3
        """) + L(f"buffer_load_dword {sink}, v28, s[{WI}:{WI+3}], 0 offen", tag="pf")
    lfl = P["lfl"]
    zl = L(f"v_lshlrev_b32 v28, 12, v{vQ}\n v_lshl_add_u32 v28, v{vN}, 4, v28\n s_lshl4_add_u32 s{u0}, s{sM0}, s{sSL}")
    for f in range(4):
        zl += L(f"s_add_u32 m0, s{sM0}, {SCR + 1024*f}\n s_add_u32 s{u1}, s{u0}, {16384*f}") + L(f"buffer_load_dwordx4 v28, {osr}, s{u1} offen {lfl} lds", tag="zl")
    wll = []
    for f in range(4):
        wll += L(f"s_add_u32 s{u1}, s{u0}, {(64 << 12) + 16384*f}") + L(f"buffer_load_dwordx4 {vr(WL+4*f,4)}, v28, {osr}, s{u1} offen {lfl}", tag="wl")
    wll += [I("s_cmp_eq_u32 s2, 0\n    s_cbranch_scc1 K_W256\nK_W256_RET:")]
    wll += L(f"v_lshlrev_b32 v28, 6, v{vN}") + L(f"buffer_load_dword a222, v28, {wsr}, s{sFL2} offen sc1", tag="wl")
    tail += L(f"K_W256:")
    for f in range(4): tail += L(f"buffer_load_dwordx4 {ar(aW2+4*f,4)}, v{vL16}, {wsr}, s{sM0} offen offset:{1024*f} sc1")
    tail += L("s_branch K_W256_RET")
    assert WS_W256 == 0
    HW, HR = PL, PL + 4
    ha = L(f"""
    v_and_b32 v14, 8, v{vN}
    v_and_b32 v15, 3, v{vN}
    v_lshl_or_b32 v14, v15, 1, v14
    v_bfe_u32 v15, v{vN}, 2, 1
    v_lshlrev_b32 v13, 2, v{vQ}
    v_or_b32 v14, v14, v15
    v_xor_b32 v14, v14, v13
    v_lshl_add_u32 v14, v{vN}, 4, v14
    s_lshl1_add_u32 s{t0}, s{sM0}, {SCR}
    v_lshl_add_u32 v{HW}, v14, 4, s{t0}
    v_xor_b32 v{HW+1}, 16, v{HW}
    v_xor_b32 v{HW+2}, 32, v{HW}
    v_xor_b32 v{HW+3}, 48, v{HW}
    v_and_b32 v14, 1, v{vQ}
    v_lshrrev_b32 v15, 2, v{vN}
    v_lshl_add_u32 v12, v{vQ}, 3, v15
    v_lshlrev_b32 v14, 3, v14
    v_lshl_or_b32 v14, v15, 1, v14
    v_bfe_u32 v15, v{vN}, 1, 1
    v_xor_b32 v14, v14, v15
    v_lshl_add_u32 v12, v12, 4, v14
    v_and_b32 v15, 1, v{vN}
    v_lshl_add_u32 v12, v12, 1, v15
    s_lshl_b32 s{t0}, s{sHT}, 5
    s_add_u32 s{t0}, s{t0}, {SCR}
    v_lshlrev_b32 v12, 3, v12
    v_xor_b32 v{HR}, s{t0}, v12
    v_xor_b32 v{HR+1}, 16, v{HR}
    v_xor_b32 v{HR+2}, 64, v{HR}
    v_xor_b32 v{HR+3}, 80, v{HR}
    """)
    r2a = L(f"""
    v_and_b32 v8, 1, v{vQ}
    v_lshrrev_b32 v9, 1, v{vN}
    v_xor_b32 v8, v8, v9
    v_lshlrev_b32 v8, 4, v8
    v_lshl_add_u32 v8, v{vN}, 7, v8
    v_lshrrev_b32 v9, 1, v{vQ}
    v_lshl_add_u32 v{vR2}, v9, 13, v8
    v_lshlrev_b32 v9, 12, v{vQ}
    v_lshl_add_u32 v{vF}, v{vN}, 4, v9
    """)
    for kap in range(1, 4): r2a += L(f"v_xor_b32 v{vR2+kap}, {32*kap}, v{vR2}\n v_add_u32 v{vF+kap}, {16384*kap}, v{vF}")
    nF = -(-len(F) // (2 * (12 - WTI - 1) - 1))
    if P.get("nox"): xst = []
    if P.get("nowt"): wt = [x for x in wt if not x.t.startswith("ds_")]; wtb = [x for x in wtb if not x.t.startswith("ds_")]
    sts = [(0, xst + oms)] + [(0, zst[2*k:2*k+2]) for k in range(4)] + [(2*WTI + 3, wt3[2*k:2*k+2]) for k in range(5)]
    assert len(zst) == 7 and len(wt3) == 10
    def stq(hf):
        r = []
        for _ in range(P["stper"]):
            if sts and hf >= max(P["st0"], sts[0][0]) and (hf - P["st0"]) % P["stm"] < P["stk"]: r += sts.pop(0)[1]
        return r
    CSI = {13: [], 14: [], 15: []}
    cs_order = [1, 2, 0, 3, 4, 5, 6, 7] if P["touchs"] == "no" else list(range(8))
    assert P["c13"] <= 1 and P["c13"] + P["c14"] <= 4 and P["c13"] + P["c14"] + P["c15"] <= 5
    for it, n in zip((13, 14, 15), (P["c13"], P["c14"], P["c15"])):
        for _ in range(n): CSI[it] += CSEND[cs_order.pop(0)]
    for s in range(16):
        o += [W("lg", "fr")] + st(f"@g{s}b") + [W("vm", f"d{s}")] + st(f"@g{s}v")
        if s == WTI + 1: o += [W("lg", "wtw")]
        if s == ZIT: o += [W("vm", "poll")] + poll_check("K_POLL1", PL, sT, pl1)
        if s == P["sig1"]:
            assert not sts
            o += [W("vm", "st1")]
        o += L("s_barrier")
        if s in (0, 4, 8, 12): o += st(f"g1_{s}")
        o += st(f"@g{s}a")
        dm = dma(s + 3) if s + 3 < 16 else []
        if s == 0: dm = sum((dma(k) for k in range(1, 4) if k not in pdone), [])
        ex = []
        if s == P["sig1"]: dm = L(f"s_lshl_b32 s{u1}, s2, {P['fl1']}\n s_add_u32 s{u1}, s{u1}, {WS_FL1}") + signal(u1, P['fl1']) + dm
        if s == P["poll1"]: dm = L(f"v_lshlrev_b32 v{PL+1}, {P['fl1']}, v{vL}\n s_lshl_b32 s{u0}, s{sW}, {6+P['fl1']}\n s_add_u32 s{u0}, s{u0}, {WS_FL1}") + L(pl1, tag="poll") + dm
        if s == P["cpf"]: ex += code_pf("K_PC2", "a221")
        if s == ZIT: ex += tch("z") + zl + wll
        if s >= 13: ex += CSI[s] + tch(f"i{s}")
        allx = dm + ex
        n0 = (len(allx) + 1) // 2
        fa_, fb_ = [], []
        if s == WTI: fa_, fb_ = wt, wtb
        elif s == WTI + 1: fa_, fb_ = wt2, take(F, nF)
        elif WTI < s < 12: fa_, fb_ = take(F, nF), take(F, nF)
        if s == 12: n0 = max(n0, len(dm) - 5); fb_ = g2a + tch("i12")
        if s == 14: fa_, fb_ = ha[:15], ha[15:]
        if s == 15: fa_ = r2a
        sa_ = stq(2*s) if s else []
        sb_ = stq(2*s + 1)
        if s == 0: o += reads(0, 0) + allx[:n0]
        else: o += spread(mfmas(1), (reads(s, 0), 0, 10), allx[:n0], fa_, (sa_, 6, 9))
        o += [W("lg", "fr")]
        o += spread(mfmas(0, s == 0), (reads(s, 1), 0, 10), allx[n0:], fb_, (sb_, 6, 9))
    assert not F
    o += [W("lg", "fr")]
    nxt = lambda n: sum((CSEND[cs_order.pop(0)] for _ in range(min(n, len([k for k in cs_order if k < lim[0]])))), [])
    lim = [5]
    cf = lambda kap, sg: aFR + (kap * 4 + sg) * 4
    cfr = []
    for kap in range(4):
        for sg in range(4):
            cfr += L(f"ds_read_b128 {ar(cf(kap,sg),4)}, v28 offset:{(kap*4+sg)*1024}", tag=f"cf{kap}")
    LB, LA = TWF, 148
    AG = WK
    ex = L(f"v_add_u32 v28, {SCR}, v{vL16}\n v_lshlrev_b32 v12, 2, v{vQ}\n v_sub_u32 v12, s{sC}, v12\n v_lshlrev_b32 v12, 10, v12\n v_lshl_add_u32 v12, v{vN}, 4, v12")
    for e in range(4): ex += L(f"v_subrev_u32 v{LA+e}, {1024*(e+1)}, v12\n v_min_u32 v{LA+e}, 2.0, v{LA+e}")
    ex += L(f"""
    v_mov_b32 v{AG+2}, s{sT}
    v_mov_b32 v{AG+3}, s{sT}
    s_lshl_b32 s{t0}, s{sC}, 10
    s_add_u32 s{t0}, s{t0}, s{sLBA}
    v_cmp_gt_u32 s[78:79], 16, v{vL}
    v_cmp_eq_u32 s[46:47], 2, v{vQ}
    v_cmp_eq_u32 s[44:45], 3, v{vQ}
    v_cndmask_b32 v{AG+4}, 2.0, v{vL16}, s[78:79]
    """)
    o += spread(mfmas(1), ex)
    o += st("g1") + st("@w_g1")
    w2 = len(o)
    step = lambda k, part: acc(k >> 1, part) + 2 * (k & 1)
    G0, G1_ = 4, 8
    s1 = []
    src = (step(0, 0), step(0, 1))
    for k in range(1, 16):
        d = (G0, G0 + 2) if k & 1 else (G1_, G1_ + 2)
        s1 += [pk("fma", d[0], src[0], LAM, step(k, 0), sel="plp"), pk("fma", d[1], src[1], LAM, step(k, 1), sel="plp"),
               pk("fma", d[0], src[1], LAM, d[0], sel="php", neg=[1, 0, 0]), pk("fma", d[1], src[0], LAM, d[1], sel="php")]
        src = d
    s1 += [pk("mul", SA_R, 4, COEF, sel="pl"), pk("mul", SA_I, 6, COEF, sel="pl"),
           pk("fma", SA_R, 6, COEF, SA_R, sel="php", neg=[1, 0, 0]), pk("fma", SA_I, 4, COEF, SA_I, sel="php")]
    zp = P["zpos"]
    ncf = 8
    o += s1[:zp] + [W("vm", "zl")] + L("s_barrier")
    o += st("@w_b0") + cfr[:ncf] + s1[zp:] + st("@w_s1")
    sc = cmul1(4, 8, SA_R, SA_I, L16, L16+1, SA_R+1, SA_I+1)
    sc += L("""
    v_mov_b32 v6, v4
    v_mov_b32 v10, v8
    v_permlane32_swap_b32 v4, v6
    v_permlane32_swap_b32 v8, v10
    v_mov_b32 v5, v4
    v_mov_b32 v7, v6
    v_mov_b32 v9, v8
    v_mov_b32 v11, v10
    v_permlane16_swap_b32 v4, v5
    v_permlane16_swap_b32 v6, v7
    v_permlane16_swap_b32 v8, v9
    v_permlane16_swap_b32 v10, v11
    """)
    sc += cmul1(12, 13, 4, 8, L32, L32+1, 5, 9) + cmul1(14, 15, 12, 13, L32, L32+1, 6, 10) + cmul1(AG, AG+1, 14, 15, L32, L32+1, 7, 11)
    sc += L(f"buffer_store_dwordx4 {vr(AG,4)}, v{AG+4}, {wsr}, s{t0} offen sc1", tag="ag") + [mark("ag")]
    sc += L(f"""
    v_cndmask_b32 v{PFX}, v4, 0, s[78:79]
    v_cndmask_b32 v{PFX+1}, v8, 0, s[78:79]
    v_cndmask_b32 v{PFX}, v{PFX}, v12, s[46:47]
    v_cndmask_b32 v{PFX+1}, v{PFX+1}, v13, s[46:47]
    v_cndmask_b32 v{PFX}, v{PFX}, v14, s[44:45]
    v_cndmask_b32 v{PFX+1}, v{PFX+1}, v15, s[44:45]
    """)
    CD, CT, TT = WK + 40, WK, 4
    cd1 = lambda kap, part: CD + (kap*2 + part)*4
    m1 = []
    for kap in range(4):
        m1.append(W("lg", f"cf{kap}"))
        for sg in range(4):
            for part in range(2):
                d = vr(cd1(kap, part), 4)
                m1 += L(f"{MF} {d}, {ar(cf(kap,sg),4)}, {ar(gc(sg,part),4)}, {'0' if sg == 0 else d}")
    assert ncf >= 8
    o += spread(m1, (cfr[ncf:], 1, 8), (sc, 1, 26), (take(unp, 17), 27, 35))
    o += st("scan1+cc1")
    ct = lambda col, b: CT + (col*2 + b)*4
    tw = []
    for kap in range(4):
        for b in range(2):
            t_ = TWF + (kap*2 + b)*2
            tw += twid(cd1(kap, 0) + 2*b, cd1(kap, 1) + 2*b, t_, t_, TT + 4*b, TT + 4*b + 2, sel="l", sel2="h")
        for b in range(2):
            for col in range(2):
                tw += L(f"v_cvt_pk_bf16_f32 v{ct(col, b) + kap}, v{TT+4*b+col}, v{TT+4*b+2+col}")
    o += st("@w_m1") + [mark("tw")] + tw + st("@w_tw")
    cd2 = lambda col, mu, part: CD + ((col*2 + mu)*2 + part)*4
    m2 = []
    for col in range(2):
        for b in range(2):
            for part in range(2):
                m2 += L(f"{MF} {vr(cd2(col, b, part), 4)}, {ar((aF2 if b else aF1)+4*part,4)}, {vr(ct(col,b),4)}, 0")
    EXP, XA, XR, YA, YM, FA0, FA1, PA2 = 200, 204, 205, 206, 207, 208, 209, 210
    for e in range(4): unp += L(f"v_cmp_eq_u32 vcc, 2.0, v{LA+e}\n v_mov_b32 v{EXP+e}, s{sT}\n v_cndmask_b32 v{EXP+e}, v{EXP+e}, 0, vcc")
    o += spread(m2, take(unp, 17)) + unp
    lbl = "\n".join(f"buffer_load_dwordx4 {vr(LB+4*e,4)}, v{LA+e}, {wsr}, s{sLBA} offen sc1" for e in range(4))
    def bfly(col):
        r = []
        for part in range(2):
            for h in range(2):
                E, O = cd2(col,0,part) + 2*h, cd2(col,1,part) + 2*h
                r.append(pk("add", E, E, O))
        for part in range(2):
            for h in range(2):
                E, O = cd2(col,0,part) + 2*h, cd2(col,1,part) + 2*h
                r.append(pk("fma", O, O, "-2.0", E, sel="plp"))
        return r
    o += st("@w_m2") + bfly(0) + bfly(1) + st("@w_bf")
    o += st("cc2")
    o += [I("s_cmp_eq_u32 s2, 0\n    s_cbranch_scc1 K_SPECIAL\nK_SPECIAL_RET:")]
    SV, RV = WK, 81920
    PLN = 46
    assert RV + 4*PLN*256 <= SCR
    def revw(col, p0):
        r = []
        for mu in range(2):
            for i in range(4):
                r += L(f"ds_write2st64_b32 v12, v{cd2(col,mu,0)+i}, v{cd2(col,mu,1)+i} offset0:{p0+16*mu+i} offset1:{p0+PLN+16*mu+i}")
        return r + L(f"ds_write2st64_b32 v12, v{cd2(col,0,0)}, v{cd2(col,0,1)} offset0:{p0+32} offset1:{p0+PLN+32}")
    def revr(p0):
        r = L("s_waitcnt lgkmcnt(0)\n s_barrier")
        for mu in range(2):
            for h in range(2):
                k = p0 + 19 - 16*mu - 2*h
                for part in range(2):
                    r += L(f"ds_read2st64_b32 {vr(cd2(1,mu,part)+2*h,2)}, v13 offset0:{PLN*part+k} offset1:{PLN*part+k-1}")
        return r + L("s_waitcnt lgkmcnt(0)")
    sp = L(f"""
    K_SPECIAL:
    v_lshl_add_u32 v12, v{vQ}, 8, v{vN}
    v_add_u32 v12, s{sW16}, v12
    v_sub_u32 v13, {832 + RV//4}, v12
    v_add_u32 v12, {RV//4}, v12
    v_lshlrev_b32 v13, 2, v13
    v_lshlrev_b32 v12, 2, v12
    """)
    for mu in range(2):
        for part in range(2):
            for h in range(2):
                sp.append(pk("mul", cd2(0,mu,part)+2*h, cd2(0,mu,part)+2*h, "0.5", sel="pl"))
    sp += revw(0, 0)
    for mu in range(2):
        for h in range(2):
            a_ = aW2 + (mu*2 + h)*4
            sp += L(f"v_accvgpr_read_b32 v8, a{a_}\n v_accvgpr_read_b32 v9, a{a_+2}\n v_lshlrev_b32 v4, 16, v8\n v_lshlrev_b32 v5, 16, v9\n v_and_b32 v6, 0xffff0000, v8\n v_and_b32 v7, 0xffff0000, v9")
            qr, qi, sr_, si = cd2(1,mu,0)+2*h, cd2(1,mu,1)+2*h, SV + mu*8 + 2*h, SV + mu*8 + 4 + 2*h
            sp += [pk("mul", sr_, qr, 4), pk("mul", si, qi, 4), pk("fma", sr_, qi, 6, sr_, neg=[1,0,0]), pk("fma", si, qr, 6, si)]
    sp += L(f"s_add_u32 s{t1}, s{sN}, 1\n v_mov_b32 v6, s{t1}\n s_mov_b32 s{t1}, {WS_NONCE}\n buffer_store_dword v6, v{vONE}, {wsr}, s{t1} offen sc1")
    sp += revr(0)
    for mu in range(2):
        for h in range(2): sp.append(pk("mul", cd2(1,mu,1)+2*h, cd2(1,mu,1)+2*h, "-1.0", sel="pl"))
    sp += L("s_branch K_SPECIAL_RET\n K_SPECIAL2:") + revw(1, 2*PLN) + revr(2*PLN)
    for mu in range(2):
        for part in range(2):
            for h in range(2):
                sp += [pk("add", cd2(0,mu,part)+2*h, cd2(0,mu,part)+2*h, cd2(1,mu,part)+2*h, neg=[0, part]),
                       pk("add", cd2(1,mu,part)+2*h, SV + mu*8 + part*4 + 2*h, SV + mu*8 + part*4 + 2*h)]
    sp += L("s_barrier\n s_branch K_SPECIAL2_RET")
    tail += sp
    cw = f"s[{sCT}:{sCT+1}]"
    md = []
    for mu in range(2):
        for h in range(2):
            Pr, Pi, Qr, Qi = (cd2(0,mu,0)+2*h, cd2(0,mu,1)+2*h, cd2(1,mu,0)+2*h, cd2(1,mu,1)+2*h)
            W1r, W1i, W2r, W2i = (wu(0,0,mu,2*h), wu(0,1,mu,2*h), wu(1,0,mu,2*h), wu(1,1,mu,2*h))
            A, B, C_, D_ = 4, 6, 8, 10
            md += [pk("fma", A, Pr, cw, Qi, sel="plp"), pk("fma", B, Pi, cw, Qr, sel="plp", neg=[0,0,1]),
                   pk("fma", C_, Qr, cw, Pi, sel="plp"), pk("fma", D_, Qi, cw, Pr, sel="plp", neg=[0,0,1]),
                   pk("mul", Pr, A, W1r), pk("mul", Pi, B, W1r), pk("mul", Qr, C_, W2r), pk("mul", Qi, D_, W2r),
                   pk("fma", W1r, B, W1i, Pr, neg=[1,0,0]), pk("fma", W1i, A, W1i, Pi),
                   pk("fma", W2r, D_, W2i, Qr), pk("fma", W2i, C_, W2i, Qi, neg=[1,0,0]),
                   pk("fma", Pr, W1r, cw, W2i, sel="plp", neg=[0,0,1]), pk("fma", Pi, W1i, cw, W2r, sel="plp"),
                   pk("fma", Qr, W2r, cw, W1i, sel="plp", neg=[0,0,1]), pk("fma", Qi, W2i, cw, W1r, sel="plp")]
    md2 = []
    for col in range(2):
        md2 += bfly(col)
        for tp in range(2):
            for i in range(4):
                md2 += L(f"v_cvt_pk_bf16_f32 v{ct(col,tp)+i}, v{cd2(col,tp,0)+i}, -v{cd2(col,tp,1)+i}")
    o += [mark("md")] + md
    o += [I("s_cmp_eq_u32 s2, 0\n    s_cbranch_scc1 K_SPECIAL2\nK_SPECIAL2_RET:")]
    o += st("@w_md") + [mark("md2")] + md2
    o += st("mid") + st("@w_mid")
    XB = SCR - 4*4112
    cd3 = lambda col, tp, part: CD + ((col*2 + tp)*2 + part)*4
    mA = []
    for col in range(2):
        for tp in range(2):
            for part in range(2):
                mA += L(f"{MF} {vr(cd3(col,tp,part),4)}, {vr(ct(col,tp),4)}, {ar((aFA if tp else aF1)+4*part,4)}, 0")
    ex = L(f"""
    v_and_b32 v12, 3, v{vN}
    v_mul_u32_u24 v13, 4112, v12
    v_and_b32 v14, 60, v{vL}
    v_lshl_add_u32 v13, v14, 4, v13
    s_lshl_b32 s{t0}, s{sW}, 10
    s_add_u32 s{t0}, s{t0}, {XB}
    v_add_u32 v{XA}, s{t0}, v13
    v_add_u32 v{XR}, {XB}, v{vL16}
    v_lshlrev_b32 v12, 4, v12
    v_lshl_add_u32 v{YA}, v14, 14, v12
    v_lshlrev_b32 v{YM}, 31, v{vN}
    s_lshl_b32 s{u0}, s{sHT}, 16
    s_add_u32 s{u0}, s{u0}, s{sSL}
    s_add_u32 s{u1}, s{u0}, 0x20000
    s_lshl_b32 s{t0}, s{sW}, 14
    s_add_u32 s{t0}, s{t0}, s{sPI}
    s_lshl_b32 s{t0}, s{t0}, 6
    s_add_u32 s{t0}, s{t0}, {WS_Y}
    s_and_b32 s{u2}, s2, 0xe0
    s_lshl2_add_u32 s{u2}, s{u2}, s{sFL2}
    """)
    o += spread(mA, ex)
    cm = []
    for k in range(16):
        ur, ui = step(k, 0), step(k, 1)
        cm += [pk("mul", 4 + 4*(k&1), ui, COEF, sel="ph"), pk("mul", 6 + 4*(k&1), ur, COEF, sel="ph"),
               pk("fma", ur, ur, COEF, 4 + 4*(k&1), sel="plp", neg=[0,0,1]), pk("fma", ui, ui, COEF, 6 + 4*(k&1), sel="plp")]
    iv = []
    for col in range(2):
        for tp in range(2):
            for h in range(2):
                iv += twid(cd3(col,tp,0) + 2*h, cd3(col,tp,1) + 2*h, TWI + tp*8 + 2*h, TWI + tp*8 + 4 + 2*h, TT + 4*h, TT + 4*h + 2)
            for i in range(4):
                iv += L(f"v_cvt_pk_bf16_f32 v{ct(col,tp)+i}, v{TT+4*(i>>1)+(i&1)}, v{TT+4*(i>>1)+2+(i&1)}")
            iv += L(f"ds_write_b128 v{XA}, {vr(ct(col,tp),4)} offset:{tp*32 + col*16}", tag="xw")
    cgr = []
    for kap in range(4):
        for sg in range(4):
            cgr += L(f"ds_read_b128 {ar(cf(kap,sg),4)}, v{XR} offset:{kap*4112 + sg*1024}", tag=f"cg{kap}")
    o += st("@w_mA") + [mark("iv")] + iv + st("@w_iv") + [mark("cm")] + cm[:40] + st("@w_cm0")
    o += [W("lg", "xw")] + L("s_barrier")
    o += st("@w_b1") + take(cgr, 8) + cm[40:] + st("@w_cm1")
    cd4 = cd1
    def mB(kap):
        r = [W("lg", f"cg{kap}")]
        for sg in range(4):
            for part in range(2):
                d = vr(cd4(kap, part), 4)
                r += L(f"{MF} {d}, {ar(gc(sg,part),4)}, {ar(cf(kap,sg),4)}, {'0' if sg == 0 else d}")
        return r
    def ypack(kap):
        r = []
        for i in range(4): r += L(f"v_cvt_pk_bf16_f32 v{CT+kap*4+i}, v{cd4(kap,0)+i}, v{cd4(kap,1)+i}")
        for i in range(4): r += L(f"v_xor_b32 v{CT+kap*4+i}, v{YM}, v{CT+kap*4+i}")
        r += L(f"buffer_store_dwordx4 {vr(CT+kap*4,4)}, v{YA}, {wsr}, s{t0} offen sc1", tag="yst")
        if kap < 3: r += L(f"s_add_u32 s{t0}, s{t0}, {YS}")
        return r
    TW, SK, GG, AD = 96, 112, 128, 130
    up0, up = [], []
    for k in range(16): up0 += L(f"v_accvgpr_read_b32 v{SK+k}, a{aS+k}")
    for k in range(16): up += L(f"v_accvgpr_read_b32 v{TW+k}, a{aTW+k}")
    for k in range(2): up += L(f"v_accvgpr_read_b32 v{GG+k}, a{aS+16+k}")
    for k in range(4): up += L(f"v_accvgpr_read_b32 v{AD+k}, a{aAD+k}")
    o += st("invA")
    o += [mark("mb")] + spread(mB(0), (cgr, 1, 8))
    for kap in range(1, 4): o += spread(mB(kap), (take(up0, 4), 1, 3), (ypack(kap - 1), 4, 8))
    o += up0 + L("s_nop 1") + ypack(3)
    cgr = []
    def wq(spec):
        q = []
        for it in filter(None, spec.split(".")):
            if it[0] == "c" and it[1:].isdigit():
                k = int(it[1:]); assert k < 6; cs_order.remove(k)
                q += ([mark("md2")] if k == 5 else []) + [CSEND[k]]
            elif it in ("k0", "k1"): q += [tk(128 * int(it[1]))]
            elif it == "lb": q += [mark("md"), L(lbl, tag="lb")]
            elif it[0] == "g" and it[1:].isdigit(): q.append(("gap", int(it[1:])))
            else: q.append(mark(it))
        return q
    o[w2:] = pace(o[w2:], wq(P["q1"]), P["gap"])
    o += st("invB")
    o += [W("vm", "lb")]
    o += st("lbwait")
    chk = "".join(f"v_xor_b32 v{4+e}, v{EXP+e}, v{LB+4*e+2}\n" for e in range(4))
    chk += "v_or3_b32 v4, v4, v5, v6\n v_or_b32 v4, v4, v7\n v_cmp_ne_u32 vcc, 0, v4\n"
    o += L(chk + "s_cbranch_vccnz K_POLL2\n K_POLL2_OK:")
    tail += L(f"K_POLL2:\n s_mov_b32 s{u3}, 0\n K_POLL2_L:\n {lbl}\n s_add_u32 s{u3}, s{u3}, 1\n s_waitcnt vmcnt(0)\n {chk} s_cbranch_vccz K_POLL2_OK\n s_cmp_lt_u32 s{u3}, {SPIN}\n s_cbranch_scc1 K_POLL2_L\n s_branch K_POLL2_OK")
    o += st("lbok")
    fx = cmul1(4, 5, LB+12, LB+13, L128, L128+1, LB+8, LB+9) + cmul1(6, 7, 4, 5, L128, L128+1, LB+4, LB+5)
    fx += cmul1(4, 5, 6, 7, L128, L128+1, LB, LB+1) + cmul1(6, 8, 4, 5, L512Q, L512Q+1)
    misc = L(f"""
    v_and_b32 v{PA2}, 7, v{vL}
    v_lshl_add_u32 v{PA2}, v{PA2}, 7, s{sO}
    v_add_u32 v{FA0}, s{sLOC}, v{vONE}
    v_add_u32 v{FA1}, s{sNLOC}, v{vONE}
    v_mov_b32 v28, s{sT}
    s_nop 0
    """)
    fx += take(misc, 2) + L("v_permlane32_swap_b32 v6, v8\n v_add_f32 v6, v6, v8\n v_mov_b32 v8, v6") + take(misc, 2)
    fx += L("v_permlane16_swap_b32 v6, v8\n v_add_f32 v6, v6, v8\n v_mov_b32 v8, v6") + take(misc, 2) + L("v_permlane32_swap_b32 v6, v8")
    fx += cmul1(10, 12, 6, 8, L32Q, L32Q+1, PFX, PFX+1) + cmul1(11, 13, 10, 12, L16, L16+1, SA_R, SA_I)
    HP = CD
    src = (10, 12)
    half = [[], []]
    for k in range(16):
        d = (step(k, 0), step(k, 1))
        half[k >> 3] += [pk("fma", d[0], src[0], LAM, d[0], sel="plp"), pk("fma", d[1], src[1], LAM, d[1], sel="plp"),
                         pk("fma", d[0], src[1], LAM, d[0], sel="php", neg=[1, 0, 0]), pk("fma", d[1], src[0], LAM, d[1], sel="php")]
        src = d
        if k & 1:
            tau = k >> 1
            for part in range(2):
                for i0 in range(2):
                    sg = "-" if part else ""
                    half[k >> 3] += L(f"v_cvt_pk_bf16_f32 v{HP+(part*2+i0)*8+tau}, {sg}v{acc(tau,part)+i0}, {sg}v{acc(tau,part)+2+i0}")
    hw = lambda hf: sum((L(f"ds_write_b128 v{HW+2*i0+hf}, {vr(HP+(part*2+i0)*8+4*hf,4)} offset:{part*4096}", tag="hw") for part in range(2) for i0 in range(2)), [])
    o += pace([I("s_nop 0"), mark("md2")] + fx + half[0] + hw(0) + half[1], wq(P["q2"]), P["gap"])
    o += st("fix")
    o += hw(1) + up
    issued = [k for k in range(8) if k not in cs_order]
    assert 0 in issued
    o += [W("lg", "hw")] + [W("vm", f"cs{k}") for k in issued] + L("s_barrier")
    lim[0] = 8
    A0 = 64
    for tau in range(2):
        for kap in range(4):
            r = A0 + (tau*4 + kap)*4
            o += L(f"ds_read_b64_tr_b16 {vr(r,2)}, v{HR+2*tau} offset:{kap*8192}\n ds_read_b64_tr_b16 {vr(r+2,2)}, v{HR+2*tau+1} offset:{kap*8192+1024}", tag="hr")
    def hstores(fl, tag="hst"):
        r = []
        for kap in range(4):
            for tau in range(2):
                r += L(f"buffer_store_dwordx4 {vr(A0+(tau*4+kap)*4,4)}, v{vF+kap}, {osr}, s{u0+tau} offen {fl}", tag=tag)
        return r
    AC, BF = (32, 216), 152
    ac2 = lambda ps, tau, jt: AC[ps] + (tau*4 + jt)*4
    af = lambda k, tau, kap: (vr(A0 + (tau*4 + kap)*4, 4) if k == 0 else ar((k-1)*32 + (tau*4 + kap)*4, 4))
    def reads2(n):
        k, kap = (n >> 2) & 7, n & 3
        base = (k & 3) * 16384; r = []
        for jt in range(4): r += L(f"ds_read_b128 {vr(BF+(kap&1)*16+jt*4,4)}, v{vR2+kap} offset:{base + jt*2048}", tag="fr")
        return r
    flip = lambda n: L(f"v_xor_b32 v{vR2+(n&3)}, 0x10000, v{vR2+(n&3)}") if (n >> 2) & 3 == 3 and n < 60 else []
    def mfmas2(n):
        ps, k, kap = n >> 5, (n >> 2) & 7, n & 3
        r = []
        for jt in range(4):
            for tau in range(2):
                a_ = vr(ac2(ps, tau, jt), 4)
                r += L(f"{MF} {a_}, {af(k,tau,kap)}, {vr(BF+(kap&1)*16+jt*4,4)}, {'0' if n & 31 == 0 else a_}")
        return r
    def aload(k):
        r = L(f"s_bfe_u32 s{sA}, s{sPT}, {0x40000 | (4*k)}\n s_lshl_b32 s{sA}, s{sA}, 8\n s_add_u32 s{sA}, s{sA}, s{sHB}\n s_add_u32 s{sA2}, s{sA}, 0x20000")
        for kap in range(4):
            r += L(f"buffer_load_dwordx4 {af(k,0,kap)}, v{vF+kap}, {osr}, s{sA} offen {lfl}\n buffer_load_dwordx4 {af(k,1,kap)}, v{vF+kap}, {osr}, s{sA2} offen {lfl}", tag=f"a{k}{kap}")
        return r
    MEM = {n: [] for n in range(66)}
    VAL = {n: [] for n in range(66)}
    LDX = {n: [] for n in range(66)}
    PRE = {n: [] for n in range(66)}
    def put(tab, n, lst, per):
        lst = list(lst)
        while lst: tab[n] += take(lst, per); n += 1
        return n
    pl2 = f"buffer_load_dword v4, v{PA2}, {wsr}, s{sFL2} offen offset:64 sc1"
    YL, PL3 = 184, 8
    pl3 = f"buffer_load_dword v{PL3}, v13, {wsr}, s{u2} offen sc1"
    pl4 = f"buffer_load_dword v10, v5, {wsr}, s{u2} offen sc1"
    pl5 = f"buffer_load_dword v6, v9, {wsr}, s{u2} offen sc1"
    keepx = [I(f"v_xor_b32 v{vDC+jj}, 0x100000, v{vDC+jj}") for jj in range(4)]
    CKEEP = [cdma(e, f"ck{e}", P["ckfl"]) for e in range(8)]
    c67 = nxt(P["ch"]); c67b = nxt(P["ch2"])
    assert not cs_order
    POLL3, CHK3, YS_, YW, NY, NR = P["poll3"], P["chk3"], P["ys"], P["yw"], P["ny"], P["nr"]
    SIG5, SIG4, POLL4, CHK4, POLL5, CHK5 = P["sig5"], P["sig4"], P["poll4"], P["chk4"], P["poll5"], P["chk5"]
    assert CHK3 <= YS_ < YW and YW + NY <= NR <= 31 and NR + 2 <= SIG4 < POLL4 < CHK4 and 36 <= SIG5 < POLL5 < CHK5 <= 60
    PRE[4] = [W("vm", "poll")] + poll_check("K_POLL3", 4, sE, pl2, P["slp2"])
    al = sum((aload(k) for k in range(1, 8)), [])
    MEM[4] += take(al, P["a0"])
    n = 5
    while al:
        c = 0
        while al and c < (P["a1"] if n < P["a1n"] else 2):
            x = al.pop(0); MEM[n].append(x); c += x.t.startswith("buffer_")
        n += 1
    ALAST = n - 1
    for nn in range(4, ALAST + 1):
        for x in MEM[nn]:
            if x.tag and x.t.startswith('buffer_'): assert nn <= 4*int(x.tag[1]) + int(x.tag[2]), x.tag
    if P["cpf2"] >= 0: MEM[P["cpf2"]] += code_pf("K_PC3", "v11")
    sig3 = L(f"s_lshl_b32 s{u2}, s2, {P['fl3']}\n s_add_u32 s{u2}, s{u2}, {WS_FL3}") + signal(u2, P['fl3'])
    MEM[POLL3] = L(f"v_lshlrev_b32 v13, {P['fl3']}, v{vL}\n s_lshl_b32 s{u2}, s{sW}, {6+P['fl3']}\n s_add_u32 s{u2}, s{u2}, {WS_FL3}") + L(pl3, tag="poll") + MEM[POLL3]
    PRE[CHK3] += [W("vm", "poll")] + poll_check("K_POLL4", PL3, sT, pl3)
    yl = L(f"s_lshl4_add_u32 s{u2}, s{sPI}, s{sW}\n s_lshl_b32 s{u2}, s{u2}, 10\n s_add_u32 s{u2}, s{u2}, {WS_Y}")
    for rho in range(4):
        yl += L(f"buffer_load_dwordx4 {vr(YL+4*rho,4)}, v{vL16}, {wsr}, s{u2} offen {P['yfl']}", tag="y")
        if rho < 3: yl += L(f"s_add_u32 s{u2}, s{u2}, 4096")
    MEM[YS_] = yl + MEM[YS_]
    yw = []
    for rho in range(4):
        for h in range(2):
            yw += L(f"ds_write_b64 v{AD+2 if rho == 0 else AD+3}, {vr(YL+4*rho+2*h,2)} offset:{h*2080 + rho*512}", tag="yw")
    LDX[YW].append(W("vm", "y")); put(LDX, YW, yw, 8 // NY)
    PRE[NR] += [W("lg", "yw")]
    AO = YL
    yr = []
    for e in range(2):
        for mu in range(2):
            for h in range(2):
                o0, o1 = (64*h + e, 64*h + 32 + e) if mu == 0 else (96 - 64*h + e, 64 - 64*h + e)
                yr += L(f"ds_read2_b32 {vr(AO+(e*2+mu)*4+2*h,2)}, v{AD+mu} offset0:{o0} offset1:{o1}", tag=f"yr{e}")
    XU = 216
    xu = lambda e, tp, part: XU + ((e*2 + tp)*2 + part)*4
    unp = []
    for e in range(2):
        for tp in range(2):
            for i in range(4):
                unp += L(f"v_lshlrev_b32 v{xu(e,tp,0)+i}, 16, v{SK+(e*2+tp)*4+i}\n v_and_b32 v{xu(e,tp,1)+i}, 0xffff0000, v{SK+(e*2+tp)*4+i}")
    sPA, sCA, sPB, sOM, sOU, sF4, sF5 = 52, 53, 54, 55, 56, 57, 58
    unp += keepx + L(f"""
    v_lshlrev_b32 v4, 16, v{vQ}
    v_lshl_add_u32 v4, v{vN}, 4, v4
    s_lshl_b32 s{t0}, s2, 14
    s_add_u32 s{t0}, s{t0}, s{sM0}
    s_add_u32 s{sPA}, s{t0}, {WS_PART}
    s_xor_b32 s{t0}, s{t0}, {4 << 14}
    s_add_u32 s{sPB}, s{t0}, {WS_PART}
    s_lshl_b32 s{t0}, s{sPI}, 14
    s_add_u32 s{t0}, s{t0}, s{sM0}
    s_add_u32 s{sCA}, s{t0}, {WS_COMB}
    s_lshl2_add_u32 s{t0}, s{sC}, s{sW}
    s_lshl_b32 s{t0}, s{t0}, 10
    s_add_u32 s{sOM}, s{t0}, {WS_OMG}
    v_lshlrev_b32 v7, 8, v{vQ}
    s_lshl_b32 s{t0}, s{sHT}, 16
    s_add_u32 s{sOU}, s{t0}, s{sSL}
    v_lshlrev_b32 v12, 14, v{vQ}
    v_lshl_add_u32 v12, v{vN}, 4, v12
    s_lshl_b32 s{t0}, s{sPI}, 6
    s_add_u32 s{sF5}, s{t0}, {WS_FL5}
    s_add_u32 s{sF4}, s{t0}, {WS_FL4}
    v_lshl_add_u32 v5, v{vN}, 6, s{sO}
    s_xor_b32 s{t0}, s{sJ}, {8 + 256}
    s_lshl_b32 s{t0}, s{t0}, 6
    s_add_u32 s{t0}, s{t0}, s{sO}
    v_mov_b32 v9, s{t0}
    """)
    assert put(VAL, 8, unp, 6) <= NR - 1
    DA = BF
    da = lambda e, tp, part: DA + ((e*2 + tp)*2 + part)*4
    order = (0, 1) if (NR - 1) & 1 else (1, 0)
    mA = []
    for e in order:
        mA.append(W("lg", "yr1" if e else "yr0"))
        for mu in range(2):
            for tp in range(2):
                for part in range(2):
                    d = vr(da(e, tp, part), 4)
                    cst = aF1 if tp == 0 else (aNA if mu else aFA)
                    mA += L(f"{MF} {d}, {vr(AO+(e*2+mu)*4,4)}, {ar(cst+4*part,4)}, {'0' if mu == 0 else d}")
    if order[0]: yr = yr[4:] + yr[:4]
    TP, T0 = AO, 134
    ri = []
    for e in order:
        for tp in range(2):
            for h in range(2):
                ri += twid(da(e,tp,0) + 2*h, da(e,tp,1) + 2*h, TW + tp*4 + 2*h, TW + 8 + tp*4 + 2*h, T0 + 4*h, T0 + 4*h + 2)
            for i in range(4):
                ri += L(f"v_cvt_pk_bf16_f32 v{TP+(e*2+tp)*4+i}, v{T0+4*(i>>1)+(i&1)}, v{T0+4*(i>>1)+2+(i&1)}")
    m = []
    for e in order:
        for tp in range(2):
            for part in range(2):
                m += L(f"{MF} {vr(da(e,tp,part),4)}, {ar(aF1+4*part,4)}, {vr(TP+(e*2+tp)*4,4)}, 0")
    fm = []
    for e in order:
        for tp in range(2):
            for part in range(2):
                for h in range(2):
                    fm.append(pk("fma", xu(e,tp,part)+2*h, da(e,tp,part)+2*h, GG, xu(e,tp,part)+2*h, sel="p" + "lh"[e] + "p", neg=[part, 0, 0]))
    CO = YL
    cst_ = []
    for i in range(4):
        for e in range(2):
            for tp in range(2):
                cst_ += L(f"v_cvt_pk_bf16_f32 v{CO+i*4+e*2+tp}, v{xu(e,tp,0)+i}, v{xu(e,tp,1)+i}")
    cst2 = []
    for i in range(4):
        cst2 += L(f"buffer_store_dwordx4 {vr(CO+i*4,4)}, v4, {wsr}, s{sCOMB} offen {P['stfl']}", tag="st4")
        if i < 3: cst2 += L(f"s_add_u32 s{sCOMB}, s{sCOMB}, 16384")
    MEM[NR + 1] = cst2[3:] + MEM[NR + 1]
    cki = {}; ckR = []
    for e, it in enumerate(str(P["cki"]).split("_")):
        cki[e] = NR if it == "r" else int(it)
        assert max(b for b in (4, CHK3, NR, 32) if b <= cki[e]) >= 4*e + 4 and (e == 0 or cki[e] >= cki[e-1])
        if it == "r": ckR.append(CKEEP[e])
        else: MEM[cki[e]] += CKEEP[e]
    if len(ckR) > 2: ckR[1], ckR[2] = ckR[2], ckR[1]
    ckR += [[]] * 4
    vis = 0
    for k in range(8):
        if k >= vis:
            vis = max([k] + [e for e in range(8) if cki[e] <= 32 + 4*k - P['ckl']]) + 1
            assert cki[k] < 32 + 4*k
            PRE[32 + 4*k] += [W("vm", f"ck{vis-1}")]
    PO = 200
    snd = []
    for i in range(4):
        for tau in range(2):
            for h in range(2):
                snd += L(f"v_cvt_pk_bf16_f32 v{PO+i*4+tau*2+h}, v{ac2(0,tau,2*h)+i}, v{ac2(0,tau,2*h+1)+i}")
    put(VAL, 33, snd, 8)
    for i in range(4): MEM[34 + (i >> 1)] = MEM[34 + (i >> 1)] + L(f"buffer_store_dwordx4 {vr(PO+i*4,4)}, v{vL16}, {wsr}, s{sPA} offen offset:{1024*i} {P['stfl']}", tag="st5")
    CB, PB, OM, CU, PU = 96, 112, 128, 184, 32
    PRE[SIG4] += [W("vm", "st4"), W("vm", "a73")]; MEM[SIG4] = signal(sF4) + MEM[SIG4]
    PRE[SIG5] += [W("vm", "st5")]; MEM[SIG5] = signal(sF5) + MEM[SIG5]
    MEM[NR + 1] += L(f"s_lshl_b32 s{u2}, s{sC}, 10\n s_add_u32 s{u2}, s{u2}, {WS_FL4}")
    MEM[POLL4] += L(pl4, tag="poll"); MEM[POLL5] += L(pl5, tag="poll5")
    PRE[CHK4] += [W("vm", "poll")] + poll_check("K_POLL5", 10, sE, pl4)
    PRE[CHK5] += [W("vm", "poll5")] + poll_check("K_POLL6", 6, sE, pl5)
    flp, flc = [], []
    for i in range(4): flp += L(f"buffer_load_dwordx4 {vr(PB+4*i,4)}, v{vL16}, {wsr}, s{sPB} offen offset:{1024*i} {P['once']}", tag=f"pb{i}")
    for h in range(4): flc += L(f"buffer_load_dwordx2 {vr(OM+2*h,2)}, v7, {wsr}, s{sOM} offen offset:{64*h} sc1", tag="om")
    for i in range(4): flc += L(f"buffer_load_dwordx4 {vr(CB+4*i,4)}, v{vL16}, {wsr}, s{sCA} offen offset:{1024*i} {P['once']}", tag="cb")
    MEM[CHK5] = flp + MEM[CHK5]; put(MEM, CHK4, flc, 4)
    cun = [W("vm", "cb")]
    for k in range(16): cun += L(f"v_lshlrev_b32 v{CU+2*k}, 16, v{CB+k}\n v_and_b32 v{CU+2*k+1}, 0xffff0000, v{CB+k}")
    assert P["cun"] > max(CHK4 + 1, 36)
    put(VAL, P["cun"], cun, 11)
    pun = [[W("vm", f"pb{i}")] + sum((L(f"v_lshlrev_b32 v{PU+2*k}, 16, v{PB+k}\n v_and_b32 v{PU+2*k+1}, 0xffff0000, v{PB+k}") for k in range(4*i, 4*i+4)), []) for i in range(4)]
    npun = P["npun"]
    for i in range(npun): VAL[64 - (npun - 1 - i) // 2] += pun[i]
    flag2 = L(f"buffer_store_dword v28, v{FA0}, {wsr}, s{u2} offen offset:64\n buffer_store_dword v28, v{FA1}, {wsr}, s{u2} offen offset:64 sc1", tag="fl")
    def own(fl):
        hs = hstores(fl)
        r = hs[:2] + spread(mfmas2(0), (reads2(1), 0, 3), hs[2:5]) + L("s_waitcnt lgkmcnt(0)")
        return r + spread(mfmas2(1), (reads2(2), 0, 3), hs[5:])
    o += reads2(0) + [W("lg", "fr")] + st("htr")
    o += [I(f"s_cmp_lg_u32 s{sLOC}, 0\n    s_cbranch_scc1 K_HFAR")] + own(P["hfl"]) + L("K_HFAR_RET:")
    tail += L("K_HFAR:") + own("sc1") + L("s_branch K_HFAR_RET")
    o += c67
    o += st("hst")
    o += [W("vm", "hst")] + L("s_barrier")
    o += flag2 + st("hack")
    o += [W("lg", "fr")] + spread(mfmas2(2), (reads2(3), 0, 3), (c67b + L(pl2, tag="poll") + sig3, 0 if c67b else P["pp2"], 7))
    for n in range(4, 65):
        o += [W("lg", "fr")] + PRE[n] + (L("s_barrier") if PRE[n] else [])
        if 5 <= n <= 32: o += [W("vm", f"a{(n-1) >> 2}{(n-1) & 3}")]
        if n in (4, 5, 9, 17, 25, 33, 44, 52, 60): o += st(f"n{n}")
        o += st(f"@q_n{n}") if n & 1 == 0 else []
        if n == NR:
            o += spread(mfmas2(n - 1), (yr, 0, 5), MEM[n], VAL[n]) + st("preri")
            o += spread(mA, (ckR[0], 1, 12)) + ri[:20] + ckR[2] + ri[20:] + spread(m, ckR[1]) + fm + ckR[3] + reads2(n) + cst_ + cst2[:3] + flip(n) + st("ri")
        else:
            o += spread(mfmas2(n - 1), (reads2(n) if n < 64 else [], 0, 3), (LDX[n], 4, 5), MEM[n], (VAL[n], 2 if n == 33 else 0, 7), (flip(n), 6, 7))
    o += st("p1") + st("@q_p1")
    for i in range(4):
        if i >= npun: o += pun[i]
        if i == 0: o += st("pbwait")
        for tau in range(2):
            d = CU + (i*2 + tau)*4
            for h in range(2):
                pu = PU + (i*4 + tau*2 + h)*2
                o += L(f"v_add_f32 v{pu}, v{pu}, v{ac2(1,tau,2*h)+i}\n v_add_f32 v{pu+1}, v{pu+1}, v{ac2(1,tau,2*h+1)+i}")
            for h in range(2):
                pu = PU + (i*4 + tau*2 + h)*2
                o += [pk("fma", d+2*h, pu, OM+2*i, d+2*h, sel="p" + "lh"[tau] + "p")]
            o += L(f"s_add_u32 s{t1}, s{sOU}, {(32*tau + i)*4096}")
            o += L(f"buffer_store_dwordx4 {vr(d,4)}, v12, s[{OUT_}:{OUT_+3}], s{t1} offen {P['outfl']}", tag="ost")
    o += st("ost") + st("@r_ost")
    if diag:
        o += L("s_waitcnt vmcnt(0)") + st("drain") + st.real("rt1")
        o += L(f"s_lshl2_add_u32 s3, s2, s{sW}\n s_lshl_b32 s3, s3, 8\n s_add_u32 s3, s3, {WS_STAMP}\n v_lshlrev_b32 v4, 2, v{vL}\n buffer_store_dword v{vST}, v4, {wsr}, s3 offen")
    o += L("K_END:\n s_endpgm")
    drop = set(str(P.get("drop", "")).split("+")) - {""}
    if drop: o = [x for x in o if not (x.tag and any(x.tag.startswith(d) for d in drop) and x.t.startswith(("buffer_", "global_")) and "v30," not in x.t)]
    return dict(name=KNAME, body=finish(o, tail) + "K_CODE_END:\n", grid=256, block=256, lds=163840, vgpr=256, agpr=256, sgpr=102), st.names

def build(diag=False, hdbg=False, P=None, single=True):
    k, names = kernel(diag, hdbg, P)
    txt = build_file([k], extra_comments=([("rtstamps: " if diag == 2 else "stamps: ") + " ".join(names)] if diag else []) + (["hdbg"] if hdbg else []))
    if single: txt = txt.replace(f"@launch kernel={KNAME} ", "@launch ")
    return txt

if __name__ == "__main__":
    P = {}
    for a in sys.argv[1:]:
        if a.startswith("-P"):
            k, v = a[2:].split("=")
            try: P[k] = int(v)
            except ValueError:
                try: P[k] = float(v)
                except ValueError: P[k] = v
    out = [a for a in sys.argv[1:] if not a.startswith("-")]
    open(out[0] if out else "k.s", "w").write(build(2 if "--rt" in sys.argv else ("--diag" in sys.argv), "--hdbg" in sys.argv, P, "--list" not in sys.argv))
```
